```python
import torch

def _softmax(x, axis=-1):
    return torch.softmax(x, dim=axis)
def _gelu(x):
    return torch.nn.functional.gelu(x, approximate="tanh")
def _silu(x):
    return torch.nn.functional.silu(x)
def _sigmoid(x):
    return torch.sigmoid(x)
def _layernorm(x, axis=-1, eps=1e-5):
    m = x.mean(dim=axis, keepdim=True)
    v = x.var(dim=axis, keepdim=True, unbiased=False)
    return (x - m) / torch.sqrt(v + eps)
def _scatter_add(tgt, idx, src, axis=0):
    return tgt.clone().index_add_(axis, idx, src)
def _segment_sum(src, seg, n):
    out = torch.zeros((n,) + src.shape[1:], dtype=src.dtype)
    return out.index_add_(0, seg, src)
def _pad(x, pw):
    flat = tuple(v for pair in reversed(pw) for v in pair)
    return torch.nn.functional.pad(x, flat)

kernel_name = 'standalone__cheap_equivariant_egnn__graph'

def setup_inputs():

    _w = (lambda a: (lambda t: t.to(torch.bfloat16) if t.is_floating_point() else t)(torch.as_tensor(a)))
    N, deg, D, De = 10000, 64, 64, max(0, 1)
    E = N * deg
    return {
        "h": _w((lambda *s: torch.randn(*s, dtype=torch.bfloat16) * 0.1)(N, D)),
        "pos": _w((lambda *s: torch.randn(*s, dtype=torch.bfloat16) * 0.8)(N, 3)),
        "e_attr": _w((lambda *s: torch.randn(*s, dtype=torch.bfloat16) * 0.8)(E, De)),
        "src": _w((lambda lo, hi, *s: torch.randint(lo, hi, s))(0, N, E).to(torch.int64)),
        "dst": _w((lambda lo, hi, *s: torch.randint(lo, hi, s))(0, N, E).to(torch.int64)),
        "w_e": _w(0.1 * (lambda *s: torch.randn(*s, dtype=torch.bfloat16) * 0.8)(2 * D + 1 + De, D)),
        "w_x": _w(0.1 * (lambda *s: torch.randn(*s, dtype=torch.bfloat16) * 0.1)(D, 1)),
        "w_h": _w(0.1 * (lambda *s: torch.randn(*s, dtype=torch.bfloat16) * 0.1)(2 * D, D)),
    }

def reference(h, pos, e_attr, src, dst, w_e, w_x, w_h):
    N, D = h.shape[0], h.shape[1]
    diff = pos[dst] - pos[src]
    dist2 = torch.sum(diff * diff, axis=-1, keepdims=True)
    e_in = torch.concatenate([h[dst], h[src], dist2, e_attr], axis=-1)
    m_ij = _silu(e_in @ w_e)
    coord_scale = m_ij @ w_x
    pos_new = pos + _segment_sum(diff * coord_scale, dst, N)
    m_i = _segment_sum(m_ij, dst, N)
    h_new = h + _silu(torch.concatenate([h, m_i], axis=-1) @ w_h)
    return h_new, pos_new
```

```python
import re
REG = re.compile(r'(?<![\w.])([vsa])(?:(\d+)|\[(\d+):(\d+)\])(?![\w])')
TRANS = ('v_exp_f32','v_log_f32','v_rcp_f32','v_rsq_f32','v_sqrt_f32','v_sin_f32','v_cos_f32','v_rcp_iflag_f32','v_exp_f16','v_rcp_f16')
def regs(op):
    out=set()
    for m in REG.finditer(op):
        k=m.group(1)
        if m.group(2) is not None: out.add((k,int(m.group(2))))
        else: out.update((k,i) for i in range(int(m.group(3)),int(m.group(4))+1))
    if re.search(r'\bvcc\b',op): out.add(('s','vcc'))
    if re.search(r'\bexec(_lo|_hi)?\b',op): out.add(('s','exec'))
    if re.search(r'\bm0\b',op): out.add(('s','m0'))
    return out
def split_ops(s):
    out=[];d=0;cur=''
    for ch in s:
        if ch=='[': d+=1
        if ch==']': d-=1
        if ch==',' and d==0: out.append(cur.strip()); cur=''
        else: cur+=ch
    if cur.strip(): out.append(cur.strip())
    return out
class I:
    def __init__(s, text):
        s.text=text.strip()
        t=s.text.split(';')[0].strip()
        s.label = t.endswith(':')
        s.dir = t.startswith('.')
        p=t.split(None,1); s.mn=p[0] if p else ''
        ops=split_ops(p[1]) if len(p)>1 else []
        s.ops=ops
        mn=s.mn
        s.mfma=mn.startswith('v_mfma'); s.valu=mn.startswith('v_') and not s.mfma
        s.trans=any(mn.startswith(x) for x in TRANS)
        s.ds=mn.startswith('ds_'); s.vmem=mn.startswith(('buffer_','global_')) and mn not in ('buffer_inv','buffer_wbl2')
        s.smem=mn.startswith(('s_load','s_memtime','s_memrealtime','s_buffer_load','s_atomic'))
        s.salu=mn.startswith('s_') and not s.smem
        s.dpp=('_dpp' in mn) or bool(re.search(r'quad_perm|row_shr|row_shl|row_ror|row_bcast|row_mirror|row_half_mirror|wave_sh|row_newbcast',t))
        s.sdwa='_sdwa' in mn
        s.w=set(); s.r=set(); s.A=s.B=s.C=set()
        s.states=1
        if s.label or s.dir or not mn: s.states=0; return
        if mn=='s_nop': s.states=int(ops[0],0)+1; return
        R=[regs(o) for o in ops]
        allr=lambda l:set().union(*l) if l else set()
        if s.mfma:
            s.w=R[0]; s.A,s.B,s.C=R[1],R[2],R[3]; s.r=R[1]|R[2]|R[3]
            s.passes = 8 if '32x32' in mn else 4
        elif s.ds:
            if 'read' in mn or '_rtn' in mn or 'permute' in mn or 'swizzle' in mn: s.w=R[0]; s.r=allr(R[1:])
            else: s.r=allr(R)
            if 'addtid' in mn: s.r|={('s','m0')}
        elif s.vmem:
            lds = bool(re.search(r'\blds\b',t)) or '_lds_' in mn
            if lds: s.r=allr(R)|{('s','m0')}
            elif 'load' in mn: s.w=R[0]; s.r=allr(R[1:])
            elif 'atomic' in mn and re.search(r'\bsc0\b',t):
                s.w=R[0]; s.r=allr(R if mn.startswith('buffer') else R[1:])
            else: s.r=allr(R)
            s.store = 'store' in mn
            s.wide = s.store and ('x3' in mn or 'x4' in mn)
            if s.wide: s.data = R[0] if mn.startswith('buffer') else R[1]
        elif s.smem:
            s.w=R[0]; s.r=allr(R[1:])
        elif s.valu:
            s.w=set(R[0]); s.r=allr(R[1:])
            if mn.startswith(('v_add_co','v_sub_co','v_addc_co','v_subb_co','v_subrev_co','v_mad_u64','v_div_scale')): s.w|=R[1]; s.r=allr(R[2:])
            if mn.startswith(('v_fmac','v_mac','v_pk_fmac','v_dot2c','v_writelane')) or s.dpp or 'UNUSED_PRESERVE' in t: s.r|=R[0]
            if mn.startswith('v_permlane') and 'swap' in mn: s.w=R[0]|R[1]; s.r=R[0]|R[1]
            if mn.startswith('v_cmpx'): s.w|={('s','exec')}
            if mn.startswith('v_cndmask') and len(ops)==3: s.r|={('s','vcc')}
        elif s.salu:
            if mn.startswith(('s_cmp','s_cbranch','s_branch','s_waitcnt','s_barrier','s_endpgm','s_setprio','s_sleep','s_bitcmp','s_setreg')): s.r=allr(R)
            else:
                s.w=R[0] if R else set(); s.r=allr(R[1:])
                if 'saveexec' in mn: s.w=s.w|{('s','exec')}
                if mn.startswith(('s_addk','s_mulk','s_bitset','s_cmov')): s.r|=R[0]
def need_states(p, c):
    n=0
    vw={x for x in p.w if x[0] in 'va'}; sw={x for x in p.w if x[0]=='s'}
    if p.valu:
        if c.mfma and vw & c.r: n=max(n,2)
        if p.trans and c.valu and not c.trans and vw & (c.r): n=max(n,1)
        if c.valu and c.dpp and vw & c.r: n=max(n,2)
        if c.mn.startswith('v_permlane') and vw & c.r: n=max(n,2)
        if c.mn.startswith(('v_readlane','v_readfirstlane')) and vw & c.r: n=max(n,1)
        if (p.sdwa or 'op_sel' in p.text) and c.valu and vw & (c.r|c.w): n=max(n,1)
        if sw:
            if c.vmem and sw & c.r: n=max(n,5)
            if c.valu and sw & c.r: n=max(n, 4 if c.mn.startswith(('v_readlane','v_writelane')) else 2)
            if c.salu and sw & c.r: n=max(n,1)
            if ('s','exec') in sw:
                if c.dpp: n=max(n,5)
                if c.mfma or c.mn.startswith(('v_readlane','v_readfirstlane','v_writelane','v_permlane')): n=max(n,4)
        if p.mn.startswith('v_dot') and (c.valu or c.mfma or c.ds or c.vmem) and vw & (c.r|c.w):
            n=max(n,3)
    if p.mfma:
        big = {8:12,4:8}[p.passes]; ov={8:10,4:6}[p.passes]; war={8:7,4:3}[p.passes]
        if c.mfma:
            if p.w & (c.A|c.B): n=max(n,big)
            if p.w & c.C and not (p.w==c.C and p.passes==c.passes): n=max(n,ov)
            if p.w & c.w and not (p.w==c.w): n=max(n,ov)
        elif c.valu or c.ds or c.vmem:
            if p.w & (c.r|c.w): n=max(n,big)
            if p.C & c.w: n=max(n,war)
    if p.vmem and getattr(p,'wide',False) and (c.valu or c.mfma) and p.data & c.w: n=max(n,2)
    if p.vmem and getattr(p,'wide',False) and (c.ds or c.vmem) and p.data & c.w: n=max(n,1)
    if p.salu and ('s','m0') in p.w and (c.vmem or c.ds) and ('s','m0') in c.r: n=max(n,1)
    return n
class Asm:
    def __init__(s):
        s.out=[]; s.lg=[]; s.vm=[]; s.hists=[[]]; s.npad=0; s.cstack=[]; s.uid=0
    def raw(s, text):
        s.out.append(text)
    def state(s): return ([list(x) for x in s.lg], [list(x) for x in s.vm], [list(h) for h in s.hists])
    def set_state(s, st): s.lg, s.vm, s.hists = [list(x) for x in st[0]], [list(x) for x in st[1]], [list(h) for h in st[2]]
    def _emit(s, i):
        s.out.append(('' if i.label else '    ')+i.text)
        if i.states:
            for k,h in enumerate(s.hists):
                h.append(i); s.hists[k]=h[-24:]
            u=[]
            for h in s.hists:
                if not any(len(h)==len(g) and all(x is y for x,y in zip(h,g)) for g in u): u.append(h)
            s.hists=u
    @staticmethod
    def _trim(l, n):
        keep=[]; y=0
        for e in reversed(l):
            if y<n: keep.append(e)
            if e[2]: y+=1
        return keep[::-1]
    def wait(s, vm=None, lg=None):
        p=[]
        if vm is not None:
            p.append(f'vmcnt({vm})'); s.vm=s._trim(s.vm,vm)
        if lg is not None:
            p.append(f'lgkmcnt({lg})')
            if lg==0 or not any(e[1] for e in s.lg): s.lg=s._trim(s.lg,lg)
        s._emit(I('s_waitcnt '+' '.join(p)))
    def cond_begin(s):
        s.cstack.append(s.state())
    def cond_end(s, label):
        b=s.cstack.pop()
        def merge(before, now):
            ids={e[3] for e in before}
            return [list(e) for e in before]+[[e[0],e[1],False,e[3]] for e in now if e[3] not in ids]
        s.lg=merge(b[0],s.lg); s.vm=merge(b[1],s.vm); s.hists=s.hists+[list(h) for h in b[2]]
        s.out.append(label+':')
    def __call__(s, text):
        for line in text.split('\n'):
            line=line.strip()
            if not line: continue
            if line.startswith(';'): s.out.append('    '+line); continue
            i=I(line)
            if i.label or i.dir: s._emit(i); continue
            if i.mn=='s_waitcnt':
                m=re.search(r'vmcnt\((\d+)\)',line); n=re.search(r'lgkmcnt\((\d+)\)',line)
                s.wait(int(m.group(1)) if m else None, int(n.group(1)) if n else None); continue
            touch=i.r|i.w
            vm=lg=None
            for k,e in enumerate(s.vm):
                if e[0] & touch: vm=sum(1 for x in s.vm[k+1:] if x[2])
            for k,e in enumerate(s.lg):
                t = touch if not (i.ds and not e[1]) else i.r
                if e[0] & t: lg=sum(1 for x in s.lg[k+1:] if x[2])
            if lg is not None and any(e[1] for e in s.lg): lg=0
            if vm is not None: vm=min(vm,63)
            if lg is not None: lg=min(lg,15)
            if vm is not None or lg is not None: s.wait(vm,lg)
            pad=0
            for h in s.hists:
                dist=0
                for p in reversed(h):
                    n=need_states(p,i)
                    if n>dist: pad=max(pad,n-dist)
                    dist+=p.states
            if pad:
                s.npad+=pad
                while pad>0:
                    k=min(pad,16); s._emit(I(f's_nop {k-1}')); pad-=k
            s._emit(i)
            Asm.ctr+=1
            if i.ds: s.lg.append([i.w,False,True,Asm.ctr])
            if i.smem: s.lg.append([i.w,True,True,Asm.ctr])
            if i.vmem: s.vm.append([i.w,False,True,Asm.ctr])
    ctr=0
    def loop(s, label, body, pad=True):
        t=Asm(); t.set_state(s.state()); body(t)
        for _ in range(2):
            st=t.state(); t=Asm(); t.set_state(st); t.hists+= [list(h) for h in s.hists]; body(t)
        s.out.append(label+':')
        s.out+=t.out; s.npad+=t.npad
        s.set_state(t.state())
    def text(s): return '\n'.join(s.out)+'\n'
```

```python
import sys, struct
from asmgen import *
def V(b,n=1): return f'v{b}' if n==1 else f'v[{b}:{b+n-1}]'
def fbits(x): return struct.unpack('<I',struct.pack('<f',x))[0]
MF='v_mfma_f32_32x32x16_bf16'; MF16='v_mfma_f32_16x16x32_bf16'
LOG2E=1.4426950408889634; LN2=0.6931471805599453
KS=68
BT=0x000000; AT=0x140000; P8=0x280000; WF=0x298000; OFFS=0x2A0000; RECS=0x300000; CHS=20480
OPT=dict(stamp=0)

def scan64(a, v):
    for sh in (1,2,4,8): a(f'v_add_u32_dpp {v}, {v}, {v} row_shr:{sh} row_mask:0xf bank_mask:0xf')
    a(f'v_add_u32_dpp {v}, {v}, {v} row_bcast:15 row_mask:0xa bank_mask:0xf')
    a(f'v_add_u32_dpp {v}, {v}, {v} row_bcast:31 row_mask:0xc bank_mask:0xf')

def stamp(a, k, base=70):
    if OPT['stamp']:
        a(f's_memrealtime s[{base+2*k}:{base+2*k+1}]')
def stamp_out(a, n, wg, wave, base=70, tag=''):
    if OPT['stamp']:
        a(f's_load_dwordx2 s[68:69], s[0:1], 72\ns_waitcnt lgkmcnt(0)')
        a(f's_cmp_eq_u32 s2, {wg}\ns_cbranch_scc0 L_nost{tag}\ns_cmp_eq_u32 s3, {wave}\ns_cbranch_scc0 L_nost{tag}')
        a('s_mov_b64 exec, -1\nv_mov_b32 v1, 0')
        for k in range(n):
            a(f'v_mov_b32 v2, s{base+2*k}\nglobal_store_dword v1, v2, s[68:69] offset:{4*k}')
        a(f's_waitcnt vmcnt(0)\nL_nost{tag}:')

def k1():
    a=Asm()
    HIST=0; OFF=1024; SORT=2048; WL=22528; HL=38912; WHL=47104
    a('''s_cmp_ge_u32 s2, 256
    s_cbranch_scc1 L1_end''')
    stamp(a,0)
    a('''s_load_dwordx16 s[4:19], s[0:1], 0
    s_load_dwordx2 s[20:21], s[0:1], 80
    v_lshrrev_b32 v1, 6, v0
    v_readfirstlane_b32 s3, v1
    v_and_b32 v3, 63, v0
    s_cmp_ge_u32 s3, 10
    s_cbranch_scc1 L1_help''')
    st=a.state()
    a(f'''v_lshlrev_b32 v1, 4, v0
    v_lshlrev_b32 v2, 3, v0
    s_mul_i32 s25, s2, 10000
    s_mul_i32 s26, s2, 5000
    v_cmp_gt_u32 vcc, 625, v0
    s_mov_b64 s[30:31], vcc
    s_mov_b64 exec, vcc
    s_waitcnt lgkmcnt(0)
    s_add_u32 s12, s12, s25
    s_addc_u32 s13, s13, 0
    s_add_u32 s10, s10, s25
    s_addc_u32 s11, s11, 0
    s_add_u32 s8, s8, s26
    s_addc_u32 s9, s9, 0
    global_load_dwordx4 v[4:7], v1, s[12:13]
    global_load_dwordx4 v[8:11], v1, s[10:11]
    global_load_dwordx2 v[12:13], v2, s[8:9]
    s_mov_b32 s27, 214749
    s_mov_b32 s28, 0x3f0
    v_mov_b32 v22, 8
    s_mul_i32 s25, s2, {CHS}
    s_add_u32 s25, s25, {RECS}
    s_add_u32 s32, s20, s25
    s_addc_u32 s33, s21, 0
    s_add_u32 s34, s32, 10000
    s_addc_u32 s35, s33, 0
    s_lshl_b32 s25, s2, 10
    s_add_u32 s25, s25, {OFFS}
    s_add_u32 s36, s20, s25
    s_addc_u32 s37, s21, 0
    s_barrier''')
    stamp(a,1)
    for i in range(4): a(f'v_mul_u32_u24 v{14+i}, s27, v{4+i}')
    for i in range(4): a(f'v_lshrrev_b32 v{14+i}, 21, v{14+i}')
    for i in range(4): a(f'v_and_b32 v{14+i}, 0x3fc, v{14+i}')
    for i in range(4): a(f'ds_add_rtn_u32 v{18+i}, v{14+i}, v22 offset:{HIST}')
    for i in range(4): a(f'v_lshlrev_b32 v{4+i}, 4, v{4+i}')
    for i in range(4): a(f'v_lshlrev_b32 v{25+2*i}, 2, v{8+i}')
    for i in range(4):
        e=12+(i>>1)
        a(f'v_and_b32 v{24+2*i}, 0xffff0000, v{e}' if i&1 else f'v_lshlrev_b32 v{24+2*i}, 16, v{e}')
    for i in range(4): a(f'v_and_or_b32 v{24+2*i}, v{4+i}, s28, v{24+2*i}')
    a(f'''s_mov_b64 exec, -1
    v_lshlrev_b32 v23, 4, v3
    s_waitcnt lgkmcnt(0)
    s_barrier''')
    stamp(a,2)
    a(f'''ds_read_b128 v[4:7], v23 offset:{HIST}
    v_add3_u32 v12, v4, v5, v6
    v_add_u32 v12, v12, v7
    v_mov_b32 v13, v12''')
    scan64(a,'v13')
    a(f'''v_sub_u32 v8, v13, v12
    v_add_u32 v9, v8, v4
    v_add_u32 v10, v9, v5
    v_add_u32 v11, v10, v6
    ds_write_b128 v23, v[8:11] offset:{OFF}
    s_mov_b64 exec, s[30:31]''')
    for i in range(4): a(f'ds_read_b32 v{14+i}, v{14+i} offset:{OFF}')
    a('s_cmp_lg_u32 s3, 0\ns_cbranch_scc1 L1_notab'); a.cond_begin()
    for i in range(4): a(f'v_lshl_or_b32 v{32+i}, v{4+i}, 16, v{8+i}')
    a('global_store_dwordx4 v23, v[32:35], s[36:37]')
    a.cond_end('L1_notab')
    for i in range(4):
        a(f'v_add_u32 v{14+i}, v{14+i}, v{18+i}')
        a(f'ds_write_b64 v{14+i}, v[{24+2*i}:{25+2*i}] offset:{SORT}')
    a(f'''s_waitcnt lgkmcnt(0)
    s_barrier''')
    stamp(a,3)
    a(f'''ds_read_b128 v[4:7], v1 offset:{SORT}
    ds_read_b128 v[8:11], v1 offset:{SORT+10000}
    global_store_dwordx4 v1, v[4:7], s[32:33]
    global_store_dwordx4 v1, v[8:11], s[34:35]''')
    if OPT['stamp']:
        stamp(a,4); a('s_waitcnt vmcnt(0)'); stamp(a,5); stamp_out(a,6,OPT.get('wg',5),0,tag='1')
    a('s_endpgm')
    a.set_state(st)
    a(f'''L1_help:
    s_mul_i32 s23, s2, 625
    s_add_u32 s24, s23, 640
    s_add_u32 s23, s23, 15
    s_lshr_b32 s23, s23, 4
    s_lshr_b32 s24, s24, 4
    s_sub_u32 s24, s24, s23
    v_lshlrev_b32 v1, 4, v3
    s_cmp_eq_u32 s3, 14
    s_cbranch_scc1 L1_w14
    s_cmp_eq_u32 s3, 15
    s_cbranch_scc1 L1_w15''')
    st=a.state()
    a(f'''s_sub_u32 s25, s3, 10
    s_lshl_b32 s26, s25, 12
    s_add_u32 s27, s26, {WL}
    s_mov_b32 m0, s27
    s_waitcnt lgkmcnt(0)
    s_add_u32 s14, s14, s26
    s_addc_u32 s15, s15, 0''')
    for i in range(4): a(f'global_load_lds_dwordx4 v1, s[14:15] offset:{1024*i}')
    a(f'''s_and_b32 s28, s25, 1
    s_lshr_b32 s29, s25, 1
    v_lshrrev_b32 v4, 5, v3
    v_bfe_u32 v5, v3, 2, 2
    v_lshl_add_u32 v5, v4, 3, v5
    v_lshlrev_b32 v5, 7, v5
    v_and_b32 v6, 3, v3
    v_lshl_add_u32 v5, v6, 3, v5
    v_and_b32 v6, 16, v3
    v_lshl_add_u32 v5, v6, 1, v5
    s_lshl_b32 s26, s29, 13
    v_add_u32 v5, s26, v5
    v_and_b32 v6, 31, v3
    v_and_b32 v7, 7, v3
    v_xor_b32 v7, v7, v4
    v_lshlrev_b32 v7, 4, v7
    v_lshl_add_u32 v7, v6, 7, v7
    s_lshl_b32 s26, s28, 12
    v_add_u32 v8, s26, v7
    v_xor_b32 v9, 32, v8
    v_xor_b32 v10, 64, v8
    v_xor_b32 v11, 96, v8
    s_lshl_b32 s26, s28, 5
    s_add_u32 s30, s23, s26
    s_sub_u32 s31, s24, s26
    s_lshl_b32 s30, s30, 7
    s_cmp_eq_u32 s29, 0
    s_cselect_b32 s26, {AT}, {BT}
    s_add_u32 s30, s30, s26
    s_add_u32 s40, s20, s30
    s_addc_u32 s41, s21, 0
    s_and_b32 s41, s41, 0xffff
    s_lshl_b32 s42, s31, 7
    s_mov_b32 s43, 0x20000
    s_mov_b32 s44, {hex((127-KS)<<23)}
    s_mov_b32 s45, {hex(fbits(LOG2E))}
    s_mov_b32 s46, 0x7fff0000
    s_mov_b32 s47, 0x80000000
    s_waitcnt vmcnt(0)
    s_barrier''')
    H=12; W=28; D=60
    for kb in range(4): a(f'ds_read_b128 {V(H+4*kb,4)}, v{8+kb} offset:{HL}')
    for kb in range(4):
        for t in range(2):
            for u in range(2):
                a(f'ds_read_b64_tr_b16 {V(W+8*kb+4*t+2*u,2)}, v5 offset:{WL+kb*2048+u*512+t*64}')
    for kb in range(4):
        for t in range(2):
            a(f'{MF} {V(D+16*t,16)}, {V(H+4*kb,4)}, {V(W+8*kb+4*t,4)}, {V(D+16*t,16) if kb else 0}')
    a('''s_barrier
    s_cmp_eq_u32 s29, 0
    s_cbranch_scc1 L1_apack''')
    st2=a.state()
    a('v_lshlrev_b32 v2, 2, v6\nv_lshl_add_u32 v2, v4, 9, v2')
    for j in range(4):
        rs=range(4*j,4*j+4)
        for r in rs: a(f'v_mul_f32 v{D+r}, s44, v{D+r}')
        for r in rs: a(f'v_mul_f32 v{D+16+r}, s45, v{D+16+r}')
        for r in rs: a(f'v_cvt_pk_bf16_f32 v{D+r}, v{D+r}, 0')
        for r in rs: a(f'v_and_b32 v{H+r}, 0x7fffffff, v{D+16+r}')
        for r in rs: a(f'v_add_u32 v{H+r}, 0x8000, v{H+r}')
        for r in rs: a(f'v_sub_u32 v{H+r}, v{H+r}, v{D+r} clamp')
        for r in rs: a(f'v_and_or_b32 v{D+r}, v{D+16+r}, s47, v{D+r}')
        for r in rs: a(f'v_and_or_b32 v{D+r}, v{H+r}, s46, v{D+r}')
        for r in rs: a(f'buffer_store_dword v{D+r}, v2, s[40:43], 0 offen offset:{(8*j+(r&3))*128}')
        if j==0: a('s_cmp_eq_u32 s28, 1\ns_cbranch_scc1 L1_gend')
    a('L1_gend:\ns_barrier\ns_endpgm')
    a.set_state(st2)
    a('L1_apack:\nv_lshlrev_b32 v2, 1, v6\nv_lshl_add_u32 v2, v4, 9, v2')
    for j in range(4):
        rs=range(4*j,4*j+4)
        for r in rs: a(f'v_mul_f32 v{D+r}, s44, v{D+r}')
        for r in rs: a(f'v_mul_f32 v{D+16+r}, s45, v{D+16+r}')
        for r in rs: a(f'v_cvt_pk_bf16_f32 v{D+r}, v{D+r}, v{D+16+r}')
        for r in rs:
            a(f'buffer_store_short v{D+r}, v2, s[40:43], 0 offen offset:{(8*j+(r&3))*128}')
            a(f'buffer_store_short_d16_hi v{D+r}, v2, s[40:43], 0 offen offset:{(8*j+(r&3))*128+64}')
        if j==0: a('s_cmp_eq_u32 s28, 1\ns_cbranch_scc1 L1_gend')
    a('s_barrier\ns_endpgm')
    a.set_state(st)
    a(f'''L1_w14:
    v_mov_b32 v8, 0
    v_mov_b32 v9, 0
    v_mov_b32 v10, 0
    v_mov_b32 v11, 0
    ds_write_b128 v1, v[8:11] offset:{HIST}
    v_lshrrev_b32 v4, 3, v3
    v_and_b32 v5, 7, v3
    v_xor_b32 v5, v5, v4
    v_lshlrev_b32 v5, 4, v5
    v_lshl_add_u32 v5, v4, 7, v5
    v_add_u32 v6, s23, v3
    v_mul_u32_u24 v7, 6, v6
    v_lshlrev_b32 v6, 3, v3
    s_lshl_b32 s25, s23, 7
    s_mov_b32 m0, {HL}
    s_waitcnt lgkmcnt(0)
    s_add_u32 s40, s4, s25
    s_addc_u32 s41, s5, 0
    s_and_b32 s41, s41, 0xffff
    s_sub_u32 s42, 1280000, s25
    s_mov_b32 s43, 0x20000
    s_mov_b32 s44, s6
    s_and_b32 s45, s7, 0xffff
    s_mov_b32 s46, 60000
    s_mov_b32 s47, 0x20000''')
    for i in range(4): a(f'buffer_load_dwordx4 v5, s[40:43], 0 offen offset:{1024*i} lds')
    a(f'''s_mov_b32 m0, {HL+4096}
    s_movk_i32 s25, 0x1000
    buffer_load_dwordx4 v5, s[40:43], s25 offen lds
    buffer_load_ushort v8, v7, s[44:47], 0 offen
    buffer_load_ushort v10, v7, s[44:47], 0 offen offset:2
    buffer_load_ushort v9, v7, s[44:47], 0 offen offset:4
    s_lshl_b32 s25, s23, 3
    s_add_u32 s25, s25, {P8}
    s_add_u32 s48, s20, s25
    s_addc_u32 s49, s21, 0
    s_and_b32 s49, s49, 0xffff
    s_lshl_b32 s50, s24, 3
    s_mov_b32 s51, 0x20000
    s_waitcnt vmcnt(3)
    s_barrier
    v_lshl_or_b32 v8, v10, 16, v8
    buffer_store_dwordx2 v[8:9], v6, s[48:51], 0 offen
    s_barrier
    s_barrier
    s_endpgm''')
    a.set_state(st)
    a(f'''L1_w15:
    s_cmp_ge_u32 s2, 2
    s_cbranch_scc1 L1_end
    s_lshl_b32 s25, s2, 13
    s_mov_b32 m0, {WHL}
    s_waitcnt lgkmcnt(0)
    s_add_u32 s18, s18, s25
    s_addc_u32 s19, s19, 0''')
    for i in range(4): a(f'global_load_lds_dwordx4 v1, s[18:19] offset:{1024*i}')
    a(f's_add_u32 s18, s18, 4096\ns_addc_u32 s19, s19, 0\ns_mov_b32 m0, {WHL+4096}')
    for i in range(4): a(f'global_load_lds_dwordx4 v1, s[18:19] offset:{1024*i}')
    a(f'''v_lshrrev_b32 v4, 4, v3
    v_bfe_u32 v5, v3, 2, 2
    v_lshl_add_u32 v5, v4, 3, v5
    v_lshlrev_b32 v5, 7, v5
    v_and_b32 v6, 3, v3
    v_lshl_add_u32 v5, v6, 3, v5
    s_lshl_b32 s25, s2, 11
    s_add_u32 s25, s25, {WF}
    s_add_u32 s26, s20, s25
    s_addc_u32 s27, s21, 0
    s_barrier
    s_waitcnt vmcnt(0)''')
    for nt in range(4):
        for kb in range(2):
            for u in range(2):
                a(f'ds_read_b64_tr_b16 {V(8+8*nt+4*kb+2*u,2)}, v5 offset:{WHL+kb*4096+u*512+nt*32}')
    a('s_barrier')
    for nt in range(4):
        for kb in range(2): a(f'global_store_dwordx4 v1, {V(8+8*nt+4*kb,4)}, s[26:27] offset:{kb*1024}')
        a('v_add_u32 v1, 4096, v1')
    a('s_barrier\nL1_end:\ns_endpgm')
    return a

OH=0; HIST=1024; MASK=1280; FLAG=1536; PD=1600; CR=2112; WX=2624; AL=3072; XZ=9216
CAP=3232; VB=16384; REC=VB+CAP*4; NEGROWS=134-KS; LUT=163840-65536-NEGROWS*256
POSTOP=255-KS
XLO=NEGROWS-32
MA=LUT+(192-XLO-1+32)*256; MSTR=272
assert REC+CAP*16<=LUT and MA+56*MSTR<=LUT+255*256 and 192-XLO-1+32>=POSTOP and 163840-LUT>=81920
class R:
    FK=4; XAD=5; vV=6; vR=7; vQ=8; vK=9
    ACC=[12,28]; L=[44,60]; YL=76; T=92; SA=108; XA=116; XB=[120,124]
sLUT='s36'; sOFF='s37'; sCNT='s38'; SRD='s[20:23]'

def main_loop(a):
    def mad(r): return f'v_mad_u32_u16 {V(R.YL+r)}, {V(R.YL+r)}, 2, {sLUT} op_sel:[1,0,0,0]'
    def rd(r): return f'ds_read_u16{"_d16_hi" if r&4 else ""} {V(R.YL+r)}, {V(R.YL+r)}'
    def sh(b,r): return f'v_lshlrev_b32 {V(R.YL+r)}, 16, {V(R.L[b]+r)}'
    def ex(b,r): return f'v_exp_f32 {V(R.T+r)}, -{V(R.L[b]+r)}'
    def rc(r): return f'v_rcp_f32 {V(R.T+r)}, {V(R.T+r)}'
    def pa(i): return f'v_pk_add_f32 {V(R.T+2*i,2)}, {V(R.T+2*i,2)}, 1.0 op_sel_hi:[1,0]'
    def pm(b,i): return f'v_pk_mul_f32 {V(R.T+2*i,2)}, {V(R.T+2*i,2)}, {V(R.L[b]+2*i,2)}'
    def cv(kb,i): return f'v_cvt_pk_bf16_f32 {V(R.T+8*kb+i)}, {V(R.T+8*kb+i)}, {V(R.T+8*kb+4+i)}'
    def g2(acc,kb,M): return f'{MF} {V(R.ACC[acc],16)}, {V(R.SA+4*kb,4)}, {V(M,4)}, {V(R.ACC[acc],16)}'
    ylx=f'{MF} {V(R.YL,16)}, {V(R.XA,4)}, {V(R.XB[0],4)}, {V(R.YL,16)}'
    def hi(b): return f'{MF} {V(R.L[b],16)}, {V(R.XA,4)}, {V(R.XB[1],4)}, {V(R.L[b],16)}'
    def ta(u): return f'v_add_u32_dpp {V(R.SA+2*u)}, {V(R.FK)}, {V(R.vK)} quad_perm:[{u},{u},{u},{u}] row_mask:0xf bank_mask:0xf bound_ctrl:1'
    def tr(u,off): return f'ds_read_b64_tr_b16 {V(R.SA+2*u,2)}, {V(R.SA+2*u)} offset:{off+(128*(u>>1)+32*(u&1))}'
    def it(a,b,last):
        n=1-b; o=512*b
        ld=(lambda b,r: '') if last else P.ld
        fe0,fe1,xa,fq=('','','','') if last else (P.fe0,P.fe1,P.xa,P.fq(o+512))
        S=['s_waitcnt vmcnt(0)']
        S+=[sh(b,r) for r in range(16)]+[ta(0),ta(1),hi(b), tr(0,o), tr(1,o), ld(n,0), ld(n,1), ta(2), ta(3), fe0, ylx, tr(2,o), tr(3,o), fe1, ld(n,2), ld(n,3)]
        S+=[ex(b,r) for r in range(0,4)]
        S+=[mad(r) for r in range(0,4)]+[rd(r) for r in range(0,4)]+[ld(n,4),ld(n,5)]
        S+=[ex(b,r) for r in range(4,8)]
        S+=[mad(r) for r in range(4,8)]+[rd(r) for r in range(4,8)]+[ld(n,6),ld(n,7)]
        S+=[ex(b,r) for r in range(8,16)]
        S+=[mad(r) for r in range(8,12)]+[rd(r) for r in range(8,12)]+[ld(n,8),ld(n,9)]
        S+=[pa(i) for i in range(8)]
        S+=[mad(r) for r in range(12,16)]+[rd(r) for r in range(12,16)]+[xa, fq, ld(n,10),ld(n,11)]
        S+=[rc(r) for r in range(0,4)]
        S+=[g2(0,0,R.YL), ld(n,12)]+[rc(r) for r in range(4,7)]
        S+=[g2(0,0,R.YL+4), ld(n,13)]+[rc(r) for r in range(7,10)]
        S+=[g2(0,1,R.YL+8), ld(n,14)]+[rc(r) for r in range(10,13)]
        S+=[g2(0,1,R.YL+12), ld(n,15)]+[rc(r) for r in range(13,16)]
        S+=[pm(b,i) for i in range(8)]
        S+=[cv(0,i) for i in range(4)]+[cv(1,i) for i in range(4)]
        if b==1 and not last:
            S+=[f'v_add_u32 {V(R.vQ)}, 1024, {V(R.vQ)}', f'v_add_u32 {V(R.vK)}, 1024, {V(R.vK)}']
        S+=[g2(1,0,R.T)]+([] if last else [P.vr(b,j,256+128*b) for j in range(4)])+[g2(1,1,R.T+8)]
        if b==1 and not last: S+=[f'v_add_u32 {V(R.vV)}, 256, {V(R.vV)}']
        for x in S: a(x)
    cap={}
    def head(a,k):
        a(f's_cmp_gt_u32 {sCNT}, 3\ns_cbranch_scc1 L_go{k}\ns_setprio 2\ns_cmp_eq_u32 {sCNT}, 3\ns_cbranch_scc1 L_go{k}\ns_setprio 1\ns_cmp_eq_u32 {sCNT}, 1\ns_cbranch_scc1 L_last{k}')
        a.raw(f'L_go{k}:')
    def body(a):
        for b in range(2):
            cap[b]=a.state()
            st=a.state(); head(a,b); a.hists+=[h+[I('s_nop 0'),I('s_nop 0')] for h in st[2]]
            it(a,b,False)
            a(f's_sub_u32 {sCNT}, {sCNT}, 1')
        a('s_branch L_mloop')
    a('s_setprio 3')
    a.loop('L_mloop', body)
    ends=[]
    for b in range(2):
        a.set_state(cap[b]); a(f'L_last{b}:\ns_setprio 0')
        it(a,b,True)
        if b==0: a('s_branch L_mdone')
        ends.append(a.state())
    a.hists+=ends[0][2]
    a('L_mdone:\ns_waitcnt lgkmcnt(0)')
class P:
    @staticmethod
    def vr(b,j,off): return f'ds_read_b128 {V(R.L[b]+4*j,4)}, {V(R.vV)} offset:{off+16*j}'
    @staticmethod
    def ld(b,r): return (f'v_min_u32 {V(R.L[b]+r)}, 39996, {V(R.L[b]+r)}\n' if OPT.get('safe') else '')+f'buffer_load_dword {V(R.L[b]+r)}, {V(R.L[b]+r)}, {SRD}, 0 offen'
    fe0=f'v_add_u32 {V(R.XAD)}, {sOFF}, {V(R.vR)}'
    fe1=f's_mov_b32 exec_hi, 0\nds_read_u16 {V(R.XAD)}, {V(R.XAD)} offset:8\ns_mov_b32 exec_hi, -1\ns_add_u32 {sOFF}, {sOFF}, 512'
    xa=f'ds_read_b128 {V(R.XA,4)}, {V(R.XAD)}'
    @staticmethod
    def fq(off): return f'ds_read_u16_d16_hi {V(R.FK)}, {V(R.vQ)} offset:{off+8}'

def xyz_reduce(a, x, y, z):
    a(f'v_add_f32_dpp {x}, {x}, {x} row_ror:8 row_mask:0xf bank_mask:0xf')
    a(f'v_add_f32_dpp {z}, {z}, {z} row_ror:8 row_mask:0xf bank_mask:0xf')
    a(f'v_add_f32_dpp {x}, {y}, {y} row_ror:8 row_mask:0xf bank_mask:0xc')
    a(f'v_add_f32_dpp {x}, {x}, {x} row_shl:4 row_mask:0xf bank_mask:0x5')
    a(f'v_add_f32_dpp {x}, {z}, {z} row_shr:4 row_mask:0xf bank_mask:0x2')

def k2():
    a=Asm()
    RR=[12+6*i for i in range(4)]
    RK=36; PS=44; PDr=60; TM=76
    E=R.T; BS=R.T+4; LA=R.T+8; LD=R.T+11; EA=R.T+14
    vO=108; vKey=109; vP=110; vC=112; vI=113; vFour=114; vCW=116
    a('''s_cmp_ge_u32 s2, 256
    s_cbranch_scc1 L2_end''')
    stamp(a,0)
    a(f'''s_load_dwordx2 s[14:15], s[0:1], 80
    s_load_dwordx2 s[4:5], s[0:1], 0
    s_load_dwordx4 s[8:11], s[0:1], 40
    s_load_dwordx2 s[12:13], s[0:1], 64
    v_lshrrev_b32 v1, 6, v0
    v_readfirstlane_b32 s3, v1
    v_and_b32 v3, 63, v0
    s_and_b32 s16, s2, 7
    s_lshl_b32 s16, s16, 5
    s_lshr_b32 s19, s2, 3
    s_add_u32 s16, s16, s19
    s_mul_i32 s17, s16, 625
    s_add_u32 s18, s17, 640
    s_add_u32 s17, s17, 15
    s_lshr_b32 s17, s17, 4
    s_lshr_b32 s18, s18, 4
    s_sub_u32 s18, s18, s17
    v_lshrrev_b32 v10, 2, v0
    v_lshlrev_b32 v1, 10, v10
    v_lshlrev_b32 v2, 4, v3
    s_lshl_b32 s56, s16, 2
    s_add_u32 s56, s56, {OFFS}
    s_mul_i32 s57, s3, 5120
    s_add_u32 s58, s57, {LUT}
    s_add_u32 s57, s57, {P8}
    s_mov_b32 m0, s58
    s_mov_b32 s26, {RECS+256*CHS+4096}
    s_mov_b32 s27, 0x20000
    s_waitcnt lgkmcnt(0)
    s_mov_b32 s24, s14
    s_and_b32 s25, s15, 0xffff
    s_cmp_lg_u32 s3, 8
    s_cbranch_scc1 L2_nocw''')
    a.cond_begin()
    a(f'''v_lshlrev_b32 v11, 1, v3
    s_add_u32 s8, s8, {128*128}
    s_addc_u32 s9, s9, 0
    global_load_short_d16_hi {V(vCW)}, v11, s[8:9]
    global_load_short_d16_hi {V(vCW+1)}, v11, s[8:9] offset:128
    global_load_short_d16_hi {V(vCW+2)}, v11, s[10:11]''')
    a.cond_end('L2_nocw')
    a(f'buffer_load_dword {V(vO)}, v1, s[24:27], s56 offen')
    for i in range(4): a(f'buffer_load_dwordx4 v2, s[24:27], s57 offen offset:{1024*i} lds')
    a(f'''s_add_u32 s58, s58, 4096
    s_add_u32 s57, s57, 4096
    s_mov_b32 m0, s58
    buffer_load_dwordx4 v2, s[24:27], s57 offen lds
    s_mov_b32 s20, s14
    s_or_b32 s21, s25, 0x80000000
    s_mov_b32 s22, 1280000
    s_mov_b32 s23, 0x00c00000
    s_lshl_b32 s59, s17, 7
    s_add_u32 s60, s59, {AT}
    s_add_u32 s28, s14, s60
    s_addc_u32 s29, s15, 0
    s_and_b32 s29, s29, 0xffff
    s_sub_u32 s30, 1280000, s59
    s_mov_b32 s31, 0x20000
    s_mov_b32 s32, s14
    s_mov_b32 s33, s25
    s_mov_b32 s34, 1280000
    s_mov_b32 s35, 0x20000
    s_mov_b32 {sLUT}, {LUT}
    s_mov_b32 {sOFF}, 0
    s_cmp_lg_u32 s3, 6
    s_cbranch_scc1 L2_nooh''')
    a.cond_begin()
    a(f'''v_and_b32 v76, 1, v3
    v_lshlrev_b32 v76, 4, v76
    v_mov_b32 v77, 0x3f80
    v_lshlrev_b32 v76, v76, v77
    v_bfe_u32 v77, v3, 1, 2''')
    for i in range(4): a(f'v_cmp_eq_u32 vcc, {i}, v77\nv_cndmask_b32 v{80+i}, 0, v76, vcc')
    a(f'''ds_write_b128 v2, v[80:83] offset:{OH}
    v_mov_b32 v84, 0
    v_mov_b32 v85, 0
    v_lshlrev_b32 v76, 3, v3
    ds_write_b64 v76, v[84:85] offset:{HIST}
    ds_write_b32 v84, v84 offset:{FLAG}''')
    a.cond_end('L2_nooh')
    D_=0x00800080
    a(f'''v_and_b32 v76, 15, v0
    v_lshlrev_b32 v77, 19, v76
    v_or_b32 v77, {hex((KS<<23)|0x8000)}, v77
    s_mov_b32 s60, {hex(fbits(LOG2E/2))}
    s_mov_b32 s61, {hex(D_)}
    s_mov_b32 s62, {hex(fbits(LOG2E))}''')
    for i in range(8): a(f'v_add_u32 v{80+i}, {hex(i<<16)}, v77')
    for i in range(8): a(f'v_mul_f32 v{80+i}, s60, v{80+i}')
    for i in range(4): a(f'v_cvt_pk_bf16_f32 v{BS+i}, v{80+2*i}, v{81+2*i}')
    a(f'''v_lshrrev_b32 v78, 4, v0
    v_lshl_add_u32 v79, v76, 4, {sLUT}''')
    B2=192-XLO-1
    assert XLO<=64 and B2>=128
    a(f'''v_cmp_gt_u32 vcc, {XLO}, v78
    v_cndmask_b32 v80, 32, 0, vcc
    v_cndmask_b32 v81, 33, 0, vcc
    v_add_u32 v80, v80, v78
    v_add_u32 v81, v81, v78
    v_lshl_add_u32 v{LA}, v80, 8, v79
    v_mul_lo_u32 v{LD}, v81, s61
    v_add_u32 v80, 96, v78
    v_add_u32 v81, 97, v78
    v_lshl_add_u32 v{LA+1}, v80, 8, v79
    v_mul_lo_u32 v{LD+1}, v81, s61
    v_cmp_gt_u32 vcc, {B2-128}, v78
    v_mov_b32 v82, {255-B2+128}
    v_mov_b32 v83, 160
    v_cndmask_b32 v80, v82, v83, vcc
    v_mov_b32 v83, 161
    v_cndmask_b32 v81, v82, v83, vcc
    v_add_u32 v80, v80, v78
    v_add_u32 v81, v81, v78
    v_lshl_add_u32 v{LA+2}, v80, 8, v79
    v_mul_lo_u32 v{LD+2}, v81, s61
    v_mov_b32 {V(vFour)}, 4
    v_add_u32 v80, s17, v3
    v_lshl_add_u32 {V(vP)}, v80, 3, {sLUT}
    v_and_b32 v80, 63, v80
    v_lshlrev_b32 {V(vKey)}, 2, v80
    s_mov_b32 s57, {CHS}
    v_and_b32 v80, 3, v0
    v_lshlrev_b32 v80, 4, v80
    v_mad_u32_u24 v81, v10, s57, v80
    s_mov_b32 s57, {RECS}''')
    stamp(a,1)
    a(f'''v_add_u32_sdwa v81, {V(vO)}, v81 dst_sel:DWORD dst_unused:UNUSED_PAD src0_sel:WORD_0 src1_sel:DWORD
    v_lshrrev_b32 {V(vO)}, 16, {V(vO)}
    v_sub_u32 v82, {V(vO)}, v80
    v_cmp_lt_i32 vcc, 128, v82
    s_mov_b64 s[48:49], vcc
    s_mov_b64 s[50:51], 0
    s_mov_b64 s[52:53], 0
    s_mov_b64 s[54:55], 0
    s_mov_b32 s63, 0
    s_cbranch_vccz L2_nr23''')
    a.cond_begin()
    a(f'''buffer_load_dwordx4 {V(RR[2]+2,4)}, v81, s[24:27], s57 offen offset:128
    buffer_load_dwordx4 {V(RR[3]+2,4)}, v81, s[24:27], s57 offen offset:192
    v_cmp_lt_i32 vcc, 136, v82
    s_mov_b64 s[50:51], vcc
    v_cmp_lt_i32 vcc, 192, v82
    s_mov_b64 s[52:53], vcc
    v_cmp_lt_i32 vcc, 200, v82
    s_mov_b64 s[54:55], vcc
    v_cmp_lt_u32 vcc, 256, {V(vO)}
    s_cmp_lg_u64 vcc, 0
    s_cselect_b32 s63, 1, 0''')
    a.cond_end('L2_nr23')
    a(f'''buffer_load_dwordx4 {V(RR[0]+2,4)}, v81, s[24:27], s57 offen
    v_cmp_lt_i32 vcc, 64, v82
    s_mov_b64 s[44:45], vcc
    v_bfrev_b32 v83, 2
    v_cndmask_b32 v83, v83, v81, vcc
    buffer_load_dwordx4 {V(RR[1]+2,4)}, v83, s[24:27], s57 offen offset:64
    s_mul_i32 s58, s3, 384
    s_add_u32 s59, s58, {AL}
    s_mov_b32 m0, s59
    s_mov_b64 exec, 0xffffff
    buffer_load_dwordx4 v2, s[28:31], s58 offen lds
    s_mov_b64 exec, 0xfffff
    s_lshl_b32 s58, s19, 4
    s_add_u32 s58, s58, s3
    s_mul_i32 s58, s58, 2560
    v_lshlrev_b32 v84, 7, v3
    buffer_load_dword v11, v84, s[32:35], s58 offen
    s_mov_b64 exec, -1
    v_cmp_lt_i32 s[40:41], 0, v82
    v_cmp_lt_i32 s[42:43], 8, v82
    v_cmp_lt_i32 vcc, 72, v82
    s_mov_b64 s[46:47], vcc''')
    stamp(a,2)
    a(f'''v_bfe_u32 v80, v0, 4, 5
    v_lshrrev_b32 v81, 9, v0
    v_lshl_add_u32 v80, v81, 8, v80
    v_add_u32 v80, {XLO}, v80
    v_lshl_add_u32 v{EA}, v80, 8, v79
    v_lshl_add_u32 v77, v80, 23, v77''')
    for h in range(2):
        for i in range(4): a(f'v_add_u32 v{80+i}, {hex((4*h+i)<<16)}, v77')
        for i in range(4): a(f'v_mul_f32 v{80+i}, s62, v{80+i}')
        for i in range(4): a(f'v_exp_f32 v{84+i}, -v{80+i}')
        for i in range(4): a(f'v_add_f32 v{84+i}, 1.0, v{84+i}')
        for i in range(4): a(f'v_rcp_f32 v{84+i}, v{84+i}')
        for i in range(4): a(f'v_mul_f32 v{80+i}, v{80+i}, v{84+i}')
        for i in range(2): a(f'v_cvt_pk_bf16_f32 v{E+2*h+i}, v{80+2*i}, v{81+2*i}')
    a('s_cmp_lg_u32 s3, 8\ns_cbranch_scc1 L2_nocr'); a.cond_begin()
    a(f'''v_cmp_gt_u32 vcc, 32, v3
    v_mov_b32 v80, s62
    v_mov_b32 v81, {hex((127-KS)<<23)}
    v_cndmask_b32 v80, v80, v81, vcc
    v_mul_f32 v81, {V(vCW)}, v80
    v_mul_f32 v82, {V(vCW+1)}, v80
    v_cvt_pk_bf16_f32 v82, v82, v81
    v_and_b32 v83, 0xffff0000, v82
    v_fma_f32 v81, {V(vCW)}, v80, -v83
    v_cvt_pk_bf16_f32 v81, v81, 0
    v_lshlrev_b32 v84, 1, v3
    v_lshlrev_b32 v85, 2, v3
    v_mul_f32 v83, {hex(fbits(LN2))}, {V(vCW+2)}
    ds_write_b16_d16_hi v84, v81 offset:{CR}
    ds_write_b16 v84, v82 offset:{CR+128}
    ds_write_b16_d16_hi v84, v82 offset:{CR+256}
    ds_write_b16 v84, v81 offset:{CR+384}
    ds_write_b32 v85, v83 offset:{WX}''')
    a.cond_end('L2_nocr')
    a('s_waitcnt vmcnt(4) lgkmcnt(0)\ns_barrier')
    stamp(a,3)
    a(f'ds_read_b64 {V(vP,2)}, {V(vP)}')
    def pre(i):
        for j in range(2):
            A=RR[i]+2+2*j; s=2*i+j
            a(f'''v_bfe_u32 v{RK+s}, v{A}, 2, 8
            v_lshl_add_u32 v{PS+2*s}, v{A+1}, 1, {sLUT}
            v_bfe_u32 v{PDr+2*s}, v{A}, 1, 9''')
        for j in range(2):
            s=2*i+j
            a(f'''s_mov_b64 exec, s[{40+2*s}:{41+2*s}]
            ds_add_rtn_u32 v{RK+s}, v{RK+s}, {V(vFour)} offset:{HIST}
            ds_read_b64 {V(PS+2*s,2)}, v{PS+2*s}''')
        a('s_mov_b64 exec, -1')
    pre(0); pre(1)
    a('s_cmp_eq_u64 s[48:49], 0\ns_cbranch_scc1 L2_np23'); a.cond_begin()
    pre(2); pre(3)
    a(f'v_mov_b32 v80, s63\nv_mov_b32 v81, 0\ns_mov_b64 exec, 1\nds_or_b32 v81, v80 offset:{FLAG}\ns_mov_b64 exec, -1')
    a.cond_end('L2_np23')
    a('s_waitcnt vmcnt(1) lgkmcnt(0)\ns_barrier')
    stamp(a,4)
    a(f'''ds_read_b32 {V(vC)}, {V(vKey)} offset:{HIST}
    v_lshlrev_b32 {V(vKey)}, 1, {V(vKey)}
    s_mov_b32 s60, 0x0000bf80
    s_mov_b32 s61, 0xbf800000
    v_mov_b32 {V(vI)}, {V(vC)}''')
    scan64(a,V(vI))
    a(f'''v_sub_u32 {V(vC)}, {V(vI)}, {V(vC)}
    v_readlane_b32 s56, {V(vI)}, 63
    v_lshl_or_b32 {V(vP+1)}, {V(vC)}, 16, {V(vP+1)}
    ds_write_b64 {V(vKey)}, {V(vP,2)} offset:{PD}''')
    for s in range(4): a(f'ds_read_b64 {V(PDr+2*s,2)}, v{PDr+2*s} offset:{PD}')
    a(f'''s_cmp_gt_u32 s56, {4*(CAP-32)}
    s_cbranch_scc1 L2_slow0
    s_add_u32 s57, s56, 124
    s_lshr_b32 s57, s57, 7
    s_lshr_b32 s58, s57, 4
    s_and_b32 s57, s57, 15
    s_mul_i32 s59, s58, s3
    s_min_u32 s63, s3, s57
    s_add_u32 s59, s59, s63
    s_cmp_lt_u32 s3, s57
    s_addc_u32 {sCNT}, s58, 0
    s_lshl_b32 s64, s59, 7
    s_lshl_b32 s65, {sCNT}, 7
    s_add_u32 s65, s65, s64
    s_min_u32 s65, s65, s56
    s_sub_u32 s65, s65, 4
    v_cmp_ge_u32 vcc, s64, {V(vI)}
    s_bcnt1_i32_b64 s66, vcc
    v_cmp_ge_u32 vcc, s65, {V(vI)}
    s_bcnt1_i32_b64 s67, vcc
    s_sub_u32 s67, s67, s66''')
    stslow=a.state()
    def post(sl):
        t=lambda k,n: TM+4*k+n
        for k,s in enumerate(sl): a(f'v_add_u32_sdwa v{RK+s}, v{PDr+2*s+1}, v{RK+s} dst_sel:DWORD dst_unused:UNUSED_PAD src0_sel:WORD_1 src1_sel:DWORD')
        for k,s in enumerate(sl): a(f'v_lshlrev_b32 v{t(k,0)}, 16, v{PDr+2*s}\nv_and_b32 v{t(k,1)}, 0xffff0000, v{PDr+2*s}\nv_lshlrev_b32 v{t(k,2)}, 16, v{PDr+2*s+1}')
        A=lambda s: RR[s>>1]+2+2*(s&1)
        for k,s in enumerate(sl): a(f's_mov_b64 exec, s[{40+2*s}:{41+2*s}]\nds_write_b32 v{RK+s}, v{A(s)+1} offset:{VB}')
        a('s_mov_b64 exec, -1')
        for k,s in enumerate(sl): a(f'v_dot2_f32_bf16 v{t(k,0)}, v{PS+2*s}, s60, v{t(k,0)}')
        for k,s in enumerate(sl): a(f'v_dot2_f32_bf16 v{t(k,1)}, v{PS+2*s}, s61, v{t(k,1)}')
        for k,s in enumerate(sl): a(f'v_dot2_f32_bf16 v{t(k,2)}, v{PS+2*s+1}, s60, v{t(k,2)}')
        for k,s in enumerate(sl): a(f'v_cvt_pk_bf16_f32 v{A(s)-2}, 1.0, v{t(k,0)}')
        for k,s in enumerate(sl): a(f'v_mul_f32 v{t(k,0)}, v{t(k,0)}, v{t(k,0)}')
        for k,s in enumerate(sl): a(f'v_cvt_pk_bf16_f32 v{A(s)-1}, v{t(k,1)}, v{t(k,2)}')
        for k,s in enumerate(sl): a(f'v_dot2_f32_bf16 v{t(k,0)}, v{A(s)-1}, v{A(s)-1}, v{t(k,0)}')
        for k,s in enumerate(sl): a(f'v_lshlrev_b32 v{RK+s}, 2, v{RK+s}')
        for k,s in enumerate(sl): a(f'v_cvt_pk_bf16_f32 v{A(s)+1}, v{t(k,0)}, v{t(k,0)}')
        for k,s in enumerate(sl): a(f's_mov_b64 exec, s[{40+2*s}:{41+2*s}]\nds_write_b128 v{RK+s}, {V(A(s)-2,4)} offset:{REC}')
        a('s_mov_b64 exec, -1')
    post([0,2]); post([1,3])
    a('s_cmp_eq_u64 s[48:49], 0\ns_cbranch_scc1 L2_nq23'); a.cond_begin()
    for s in range(4,8): a(f'ds_read_b64 {V(PDr+2*s,2)}, v{PDr+2*s} offset:{PD}')
    post([4,6]); post([5,7])
    a.cond_end('L2_nq23')
    a('s_cmp_lg_u32 s3, 15\ns_cbranch_scc1 L2_nopad'); a.cond_begin()
    a(f'''v_mov_b32 v80, 0
    v_mov_b32 v81, 0
    v_mov_b32 v82, 0
    v_mov_b32 v83, 0
    v_lshl_add_u32 v84, v3, 2, s56
    v_lshlrev_b32 v85, 2, v84
    s_mov_b32 exec_hi, 0
    ds_write_b32 v84, v80 offset:{VB}
    ds_write_b128 v85, v[80:83] offset:{REC}
    s_mov_b32 exec_hi, -1''')
    a.cond_end('L2_nopad')
    a(f's_cmp_eq_u32 {sCNT}, 0\ns_cbranch_scc1 L2_nowin'); a.cond_begin()
    a(f'''s_add_u32 s63, s17, s66
    s_cmp_gt_u32 s67, 7
    s_cselect_b32 s58, 1, 0
    s_lshl_b32 s57, 1, s3
    v_add_u32 v80, s66, v3
    v_lshlrev_b32 v80, 2, v80
    v_mov_b32 v81, s57
    v_mov_b32 v82, s58
    v_mov_b32 v83, 0
    v_cmp_ge_u32 vcc, s67, v3
    s_mov_b64 exec, vcc
    ds_or_b32 v80, v81 offset:{MASK}
    s_mov_b64 exec, 1
    ds_or_b32 v83, v82 offset:{FLAG}
    s_mov_b64 exec, -1
    v_lshrrev_b32 v76, 5, v3
    v_bfe_u32 v77, v3, 2, 2
    v_and_b32 v78, 3, v3
    v_bfe_u32 v79, v3, 4, 1
    v_lshlrev_b32 v80, 3, v78
    v_lshl_add_u32 v80, v79, 5, v80
    v_subrev_u32 v81, s63, v77
    v_add_u32 v82, 4, v81
    v_and_b32 v81, 7, v81
    v_and_b32 v82, 7, v82
    s_lshl_b32 s58, s66, 7
    s_add_u32 s58, s58, {AL}
    v_lshl_add_u32 v81, v81, 7, s58
    v_lshl_add_u32 v82, v82, 7, s58
    v_mov_b32 v83, {CR}
    v_lshl_add_u32 v84, v77, 7, v83
    v_cmp_gt_u32 vcc, 32, v3
    v_cndmask_b32 v81, v83, v81, vcc
    v_cndmask_b32 v82, v84, v82, vcc
    v_add_u32 v81, v81, v80
    v_add_u32 v82, v82, v80
    ds_read_b64_tr_b16 {V(R.XB[0],2)}, v81
    ds_read_b64_tr_b16 {V(R.XB[0]+2,2)}, v82
    ds_read_b64_tr_b16 {V(R.XB[1],2)}, v81 offset:64
    ds_read_b64_tr_b16 {V(R.XB[1]+2,2)}, v82 offset:64
    s_add_u32 s58, s64, {VB}
    v_lshl_add_u32 {V(R.vV)}, v76, 6, s58
    s_lshl_b32 s58, s64, 2
    s_add_u32 s58, s58, {REC}
    v_and_b32 v80, 1, v77
    v_bfe_u32 v81, v3, 3, 2
    v_lshl_add_u32 v82, v81, 2, v78
    v_lshl_add_u32 v82, v80, 4, v82
    v_lshl_add_u32 {V(R.vR)}, v82, 4, s58
    v_lshrrev_b32 v81, 1, v77
    v_lshl_add_u32 v81, v80, 2, v81
    v_lshl_add_u32 v81, v76, 4, v81
    v_lshl_add_u32 v81, v81, 4, s58
    v_lshrrev_b32 v82, 1, v78
    v_and_b32 v83, 1, v78
    v_lshl_add_u32 v82, v82, 2, v83
    v_lshl_add_u32 {V(R.vQ)}, v82, 5, v81
    v_lshl_add_u32 v82, v79, 2, v78
    v_subrev_u32 v82, s63, v82
    v_and_b32 v82, 7, v82
    v_add_u32 v82, s63, v82
    v_and_b32 v82, 63, v82
    v_lshlrev_b32 v82, 20, v82
    v_sub_u32 {V(R.vK)}, v81, v82''')
    a.cond_end('L2_nowin')
    a(f'v_mov_b32 v10, 0\ns_waitcnt lgkmcnt(0)\ns_barrier')
    stamp(a,5)
    a(f'ds_read_b32 v10, v10 offset:{FLAG}')
    for b in range(2):
        for j in range(4): a(P.vr(b,j,128*b))
    a(P.fe0); a(P.fe1); a(P.fq(0))
    a('v_cmp_ne_u32 vcc, 0, v10\ns_cbranch_vccnz L2_slow')
    a(f's_cmp_eq_u32 {sCNT}, 0\ns_cbranch_scc1 L2_nog'); a.cond_begin()
    for r in range(16): a(P.ld(0,r))
    a(P.xa)
    a.cond_end('L2_nog')
    a(f'ds_write_b128 v{EA}, {V(E,4)}')
    for p in range(3):
        for i in range(4): a(f'v_add_u32 v{76+4*p+i}, v{BS+i}, v{LD+p}')
        a(f'ds_write_b128 v{LA+p}, {V(76+4*p,4)}')
    for r in range(32): a(f'v_mov_b32 v{R.ACC[0]+r}, 0')
    a('s_waitcnt lgkmcnt(0)\ns_barrier')
    stamp(a,6)
    a(f's_cmp_eq_u32 {sCNT}, 0\ns_cbranch_scc1 L2_epi')
    main_loop(a)
    stamp(a,7)
    a(f'''v_and_b32 v76, 31, v3
    v_lshlrev_b32 v76, 2, v76
    v_add_u32 v77, {WX}, v76
    ds_read2_b32 v[78:79], v77 offset0:0 offset1:32''')
    a(f'''v_lshrrev_b32 v80, 5, v3
    v_subrev_u32 v80, s63, v80
    s_add_u32 s57, s66, s3
    s_mul_i32 s58, s57, {MSTR}
    s_add_u32 s58, s58, {MA}
    s_lshl_b32 s57, s57, 7
    s_add_u32 s57, s57, {XZ}
    v_add_u32 v81, s58, v76
    v_add_u32 v82, s57, v76
    s_movk_i32 s58, {MSTR}''')
    for j in range(4):
        A0=R.ACC[0]+4*j; A1=R.ACC[1]+4*j
        a(f'''v_add_u32 v83, {2*j}, v80
        v_and_b32 v83, 7, v83
        v_cmp_ge_u32 vcc, s67, v83
        s_cbranch_vccz L2_nf{j}''')
        a.cond_begin()
        a(f'v_mad_u32_u24 v84, v83, s58, v81\nv_lshl_add_u32 v85, v83, 7, v82')
        for q in range(1,4): a(f'v_mul_f32 v{A0+q}, v{A0+q}, v78')
        for q in range(1,4): a(f'v_fmac_f32 v{A0+q}, v{A1+q}, v79')
        xyz_reduce(a, V(A0+1), V(A0+2), V(A0+3))
        a(f'''s_mov_b64 exec, vcc
        ds_write2_b32 v84, v{A0}, v{A1} offset0:0 offset1:32
        ds_write_b32 v85, v{A0+1}
        s_mov_b64 exec, -1''')
        a.cond_end(f'L2_nf{j}')
    WFr=44; HF=60; HR=68; S=12; U=28
    a(f'''L2_epi:
    s_nop 7
    s_waitcnt vmcnt(0)
    s_cmp_ge_u32 s3, 12
    s_cbranch_scc1 L2_posw''')
    st=a.state()
    a(f'''s_and_b32 s57, s3, 3
    s_lshr_b32 s58, s3, 2
    s_lshl_b32 s59, s57, 12
    s_add_u32 s59, s59, {WF}''')
    for kb in range(4): a(f'buffer_load_dwordx4 {V(WFr+4*kb,4)}, v2, s[24:27], s59 offen offset:{1024*kb}')
    a(f'''s_lshl_b32 s59, s17, 7
    s_add_u32 s28, s4, s59
    s_addc_u32 s29, s5, 0
    s_and_b32 s29, s29, 0xffff
    s_lshl_b32 s30, s18, 7
    s_add_u32 s32, s12, s59
    s_addc_u32 s33, s13, 0
    s_and_b32 s33, s33, 0xffff
    s_mov_b32 s34, s30
    s_lshl_b32 s58, s58, 4
    v_and_b32 v76, 15, v3
    v_add_u32 v76, s58, v76
    v_lshrrev_b32 v77, 4, v3
    v_lshlrev_b32 v78, 7, v76
    v_lshl_add_u32 v79, v77, 4, v78
    v_lshl_add_u32 v78, v77, 3, v78
    s_lshl_b32 s57, s57, 5
    v_add_u32 v78, s57, v78
    buffer_load_dwordx4 {V(HF,4)}, v79, s[28:31], 0 offen
    buffer_load_dwordx4 {V(HF+4,4)}, v79, s[28:31], 0 offen offset:64
    buffer_load_dwordx2 {V(HR,2)}, v78, s[28:31], 0 offen
    v_lshlrev_b32 v80, 2, v76
    s_mov_b32 s58, {MA}
    v_lshl_add_u32 v77, v77, 5, s58
    s_movk_i32 s58, {MSTR}
    s_waitcnt lgkmcnt(0)
    s_barrier''')
    stamp(a,8)
    def psum(getmask, node, base, stride, reads, n, tag):
        a(f'''{getmask}
        v_ffbl_b32 v81, v80
        v_bcnt_u32_b32 v80, v80, 0
        v_add_u32 v81, v81, {node}
        v_mad_u32_u24 v81, v81, {stride}, {base}
        v_cmp_lt_u32 vcc, 0, v80
        v_bfrev_b32 v84, 2
        v_cndmask_b32 v82, v84, v81, vcc''')
        for k,o in enumerate(reads): a(f'ds_read_b128 {V(S+4*k,4)}, v82 offset:{o}')
        a(f's_mov_b32 s59, 1')
        a(f's_nop 1\nL2_ps{tag}:')
        a(f'''v_add_u32 v81, {stride}, v81
        v_cmp_lt_u32 vcc, s59, v80
        v_cndmask_b32 v82, v84, v81, vcc''')
        for k,o in enumerate(reads): a(f'ds_read_b128 {V(U+4*k,4)}, v82 offset:{o}')
        a('s_add_u32 s59, s59, 1\nv_cmp_lt_u32 vcc, s59, v80')
        for k in range(n//2): a(f'v_pk_add_f32 {V(S+2*k,2)}, {V(S+2*k,2)}, {V(U+2*k,2)}')
        a(f's_cbranch_vccnz L2_ps{tag}')
    psum(f'ds_read_b32 v80, v80 offset:{MASK}', 'v76', 'v77', 's58', [0,16,128,144], 16, 'h')
    a(f'{MF16} v[84:87], {V(WFr,4)}, {V(HF,4)}, 0')
    for k in range(8): a(f'v_cvt_pk_bf16_f32 v{S+k}, v{S+2*k}, v{S+2*k+1}')
    a(f'''{MF16} v[84:87], {V(WFr+4,4)}, {V(HF+4,4)}, v[84:87]
    {MF16} v[88:91], {V(WFr+8,4)}, {V(S,4)}, 0
    {MF16} v[88:91], {V(WFr+12,4)}, {V(S+4,4)}, v[88:91]
    v_lshlrev_b32 v92, 16, v{HR}
    v_and_b32 v93, 0xffff0000, v{HR}
    v_lshlrev_b32 v94, 16, v{HR+1}
    v_and_b32 v95, 0xffff0000, v{HR+1}
    s_mov_b32 s59, {hex(fbits(LN2))}''')
    for i in range(4): a(f'v_fma_f32 v{84+i}, v{84+i}, s62, v{88+i}')
    for i in range(4): a(f'v_exp_f32 v{88+i}, -v{84+i}')
    for i in range(4): a(f'v_mul_f32 v{84+i}, s59, v{84+i}')
    for i in range(4): a(f'v_add_f32 v{88+i}, 1.0, v{88+i}')
    for i in range(4): a(f'v_rcp_f32 v{88+i}, v{88+i}')
    for i in range(4): a(f'v_fmac_f32 v{92+i}, v{84+i}, v{88+i}')
    a(f'''v_cvt_pk_bf16_f32 v92, v92, v93
    v_cvt_pk_bf16_f32 v93, v94, v95
    buffer_store_dwordx2 v[92:93], v78, s[32:35], 0 offen''')
    if OPT['stamp']:
        stamp(a,9); a('s_waitcnt vmcnt(0)'); stamp(a,10); stamp_out(a,11,OPT.get('wg',5),OPT.get('wave',0),tag='2')
    a('s_endpgm')
    a.set_state(st)
    a(f'''L2_posw:
    s_sub_u32 s58, s3, 12
    s_lshl_b32 s58, s58, 4
    v_lshrrev_b32 v76, 2, v3
    v_add_u32 v76, s58, v76
    v_and_b32 v78, 3, v3
    v_add_u32 v79, s17, v76
    v_and_b32 v85, 63, v79
    v_lshlrev_b32 v85, 3, v85
    v_lshl_add_u32 v85, v78, 1, v85
    ds_read_u16_d16_hi v86, v85 offset:{PD}
    v_mul_u32_u24 v79, 6, v79
    v_lshl_add_u32 v79, v78, 1, v79
    v_bfrev_b32 v77, v78
    v_lshrrev_b32 v77, 26, v77
    v_add_u32 v77, {XZ}, v77
    v_lshlrev_b32 v80, 2, v76
    s_add_u32 s32, s12, 1280000
    s_addc_u32 s33, s13, 0
    s_and_b32 s33, s33, 0xffff
    s_mov_b32 s34, 60000
    s_movk_i32 s58, 128
    s_waitcnt lgkmcnt(0)
    s_barrier
    s_cmp_eq_u32 s3, 15
    s_cbranch_scc1 L2_end''')
    psum(f'ds_read_b32 v80, v80 offset:{MASK}', 'v76', 'v77', 's58', [0,64], 8, 'p')
    a(f'''v_pk_add_f32 {V(S,2)}, {V(S,2)}, {V(S+2,2)}
    v_pk_add_f32 {V(S+4,2)}, {V(S+4,2)}, {V(S+6,2)}
    v_pk_add_f32 {V(S,2)}, {V(S,2)}, {V(S+4,2)}
    v_add_f32 v{S}, v{S}, v{S+1}
    v_add_f32 v{S}, v{S}, v86
    v_cvt_pk_bf16_f32 v{S}, v{S}, v{S}
    v_cmp_gt_u32 vcc, s18, v76
    v_cmp_gt_u32 s[40:41], 3, v78
    s_and_b64 vcc, vcc, s[40:41]
    v_cndmask_b32 v79, v84, v79, vcc
    buffer_store_short v{S}, v79, s[32:35], 0 offen
    s_endpgm''')
    a.set_state(stslow)
    a(f'''L2_slow0:
    s_waitcnt lgkmcnt(0)
    s_barrier
    L2_slow:
    s_waitcnt vmcnt(0) lgkmcnt(0)
    s_barrier
    s_load_dwordx2 s[8:9], s[0:1], 40
    s_mov_b32 s40, s3
    v_lshlrev_b32 v12, 1, v3
    v_cmp_gt_u32 s[42:43], 32, v3
    v_mov_b32 v13, 1.0
    v_mov_b32 v14, {hex(fbits(LOG2E*2.0**KS))}
    v_cndmask_b32 v13, v13, v14, s[42:43]
    v_and_b32 v14, 31, v3
    v_lshlrev_b32 v14, 2, v14
    v_lshlrev_b32 v15, 2, v3
    v_mov_b32 v16, 0
    v_mov_b32 v17, 0
    s_waitcnt lgkmcnt(0)
    s_add_u32 s8, s8, {128*128}
    s_addc_u32 s9, s9, 0
    global_load_short_d16_hi v16, v12, s[8:9]
    global_load_short_d16_hi v17, v12, s[8:9] offset:128
    ds_read_b32 v18, v15 offset:{WX}
    v_mul_f32 v16, s62, v16
    v_mul_f32 v17, s62, v17
    s_lshl_b32 s56, s16, 2
    s_add_u32 s56, s56, {OFFS}
    s_waitcnt vmcnt(0) lgkmcnt(0)
    L2_sn:
    s_cmp_ge_u32 s40, s18
    s_cbranch_scc1 L2_epi
    s_add_u32 s41, s17, s40
    s_and_b32 s44, s41, 63
    s_lshl_b32 s45, s44, 3
    s_lshl_b32 s44, s44, 4
    v_mov_b32 v19, s45
    ds_read_b64 v[20:21], v19 offset:{PD}
    s_lshl_b32 s45, s40, 7
    v_add_u32 v19, s45, v12
    v_mov_b32 v22, 0
    ds_read_u16_d16_hi v22, v19 offset:{AL}
    v_lshlrev_b32 v23, 16, v20
    v_and_b32 v24, 0xffff0000, v20
    v_lshlrev_b32 v25, 16, v21
    v_mov_b32 v26, 0
    v_mov_b32 v27, 0
    v_mov_b32 v28, 0
    v_mov_b32 v29, 0
    s_mov_b32 s46, 0
    s_waitcnt lgkmcnt(0)
    L2_sc:
    s_lshl_b32 s47, s46, 10
    v_mov_b32 v19, s47
    buffer_load_dword v30, v19, s[24:27], s56 offen
    v_readfirstlane_b32 s48, v30
    s_mul_i32 s49, s46, {CHS}
    s_add_u32 s49, s49, {RECS}
    s_and_b32 s47, s48, 0xffff
    s_add_u32 s49, s49, s47
    s_lshr_b32 s48, s48, 16
    s_mov_b32 s50, 0
    L2_sb:
    s_cmp_ge_u32 s50, s48
    s_cbranch_scc1 L2_sbe
    v_lshl_add_u32 v19, v3, 3, s50
    buffer_load_dwordx2 v[30:31], v19, s[24:27], s49 offen
    v_cmp_gt_u32 s[52:53], s48, v19
    v_and_b32 v32, 0xffff, v30
    v_cmp_eq_u32 vcc, s44, v32
    s_and_b64 s[52:53], s[52:53], vcc
    L2_se:
    s_cmp_eq_u64 s[52:53], 0
    s_cbranch_scc1 L2_see
    s_ff1_i32_b64 s51, s[52:53]
    s_bitset0_b64 s[52:53], s51
    v_readlane_b32 s54, v30, s51
    v_readlane_b32 s55, v31, s51
    s_and_b32 s54, s54, 0xffff0000
    s_lshl_b32 s57, s55, 1
    s_add_u32 s57, s57, {P8}
    s_lshl_b32 s55, s55, 5
    v_mov_b32 v33, s57
    v_add_u32 v36, s55, v14
    buffer_load_dwordx2 v[34:35], v33, s[24:27], 0 offen
    buffer_load_dword v36, v36, s[24:27], 0 offen
    v_dot2_f32_bf16 v37, v34, s60, v23
    v_dot2_f32_bf16 v38, v34, s61, v24
    v_dot2_f32_bf16 v39, v35, s60, v25
    v_cvt_pk_bf16_f32 v40, 1.0, v37
    v_mul_f32 v37, v37, v37
    v_cvt_pk_bf16_f32 v41, v38, v39
    v_dot2_f32_bf16 v37, v41, v41, v37
    v_cvt_pk_bf16_f32 v37, 0, v37
    v_lshlrev_b32 v42, 16, v36
    v_cndmask_b32 v36, v36, v42, s[42:43]
    v_add_f32 v36, v36, v22
    v_mul_f32 v36, v36, v13
    v_fmac_f32 v36, v37, v16
    v_fmac_f32 v36, s54, v17
    v_exp_f32 v42, -v36
    v_add_f32 v42, 1.0, v42
    v_rcp_f32 v42, v42
    v_mul_f32 v36, v36, v42
    v_and_b32 v40, 0xffff0000, v40
    v_lshlrev_b32 v42, 16, v41
    v_and_b32 v41, 0xffff0000, v41
    v_add_f32 v26, v26, v36
    v_fmac_f32 v27, v36, v40
    v_fmac_f32 v28, v36, v42
    v_fmac_f32 v29, v36, v41
    s_branch L2_se
    L2_see:
    s_add_u32 s50, s50, 512
    s_branch L2_sb
    L2_sbe:
    s_add_u32 s46, s46, 1
    s_cmp_lt_u32 s46, 256
    s_cbranch_scc1 L2_sc
    s_nop 4
    v_mul_f32 v27, v27, v18
    v_mul_f32 v28, v28, v18
    v_mul_f32 v29, v29, v18''')
    xyz_reduce(a,'v27','v28','v29')
    a(f'''v_mov_b32 v28, v27
    v_permlane32_swap_b32 v27, v28
    v_add_f32 v27, v27, v28
    s_mul_i32 s45, s40, {MSTR}
    s_add_u32 s45, s45, {MA}
    v_add_u32 v19, s45, v15
    ds_write_b32 v19, v26
    s_lshl_b32 s45, s40, 7
    v_add_u32 v19, s45, v14
    ds_write_b32 v19, v27 offset:{XZ}
    s_lshl_b32 s45, s40, 2
    v_mov_b32 v19, s45
    v_mov_b32 v20, 1
    ds_write_b32 v19, v20 offset:{MASK}
    s_add_u32 s40, s40, 16
    s_waitcnt lgkmcnt(0)
    s_branch L2_sn
    L2_end:
    s_endpgm''')
    return a

HEAD=open('standalone__cheap_equivariant_egnn__graph.s.ref').read().split('; Override launch')[0]
def kd(name, vg):
    return f'''.amdhsa_kernel {name}
  .amdhsa_next_free_vgpr {vg}
  .amdhsa_next_free_sgpr 96
  .amdhsa_accum_offset {vg}
  .amdhsa_group_segment_fixed_size 0
  .amdhsa_kernarg_size 88
  .amdhsa_user_sgpr_count 2
  .amdhsa_user_sgpr_kernarg_segment_ptr 1
  .amdhsa_system_sgpr_workgroup_id_x 1
  .amdhsa_float_denorm_mode_32 3
.end_amdhsa_kernel
'''
def build():
    N1='egnn_bin_kernel'; N2='standalone__cheap_equivariant_egnn__graph_kernel'
    a1=k1(); a2=k2()
    s=HEAD
    s+=f'; @launch kernel={N1} grid=(256,1,1) block=(1024,1,1) lds=90112\n'
    s+=f'; @launch kernel={N2} grid=(256,1,1) block=(1024,1,1) lds=163840\n'
    s+='.amdgcn_target "amdgcn-amd-amdhsa--gfx950"\n.text\n'
    for n,a in ((N1,a1),(N2,a2)):
        s+=f'.globl {n}\n.p2align 8\n.type {n},@function\n{n}:\n'+a.text()
    s+='.section .rodata,"a"\n.p2align 6\n'+kd(N1,96)+'.p2align 6\n'+kd(N2,128)
    return s
if __name__=='__main__':
    out=sys.argv[1]
    for x in sys.argv[2:]:
        k,v=x.split('='); OPT[k]=int(v)
    open(out,'w').write(build())
```

```python
import sys, struct
from asmgen import *
def V(b,n=1): return f'v{b}' if n==1 else f'v[{b}:{b+n-1}]'
def fbits(x): return struct.unpack('<I',struct.pack('<f',x))[0]
MF='v_mfma_f32_32x32x16_bf16'; MF16='v_mfma_f32_16x16x32_bf16'
LOG2E=1.4426950408889634; LN2=0.6931471805599453
KS=68
BT=0x000000; AT=0x140000; P8=0x280000; WF=0x298000; OFFS=0x2A0000; RECS=0x300000; CHS=20480
OPT=dict(stamp=0)

def scan64(a, v):
    for sh in (1,2,4,8): a(f'v_add_u32_dpp {v}, {v}, {v} row_shr:{sh} row_mask:0xf bank_mask:0xf')
    a(f'v_add_u32_dpp {v}, {v}, {v} row_bcast:15 row_mask:0xa bank_mask:0xf')
    a(f'v_add_u32_dpp {v}, {v}, {v} row_bcast:31 row_mask:0xc bank_mask:0xf')

def stamp(a, k, base=70):
    if OPT['stamp']:
        a(f's_memrealtime s[{base+2*k}:{base+2*k+1}]')
STB=0x1000000
def stamp_out(a, n, kidx, wave, base=70, tag=''):
    if OPT['stamp']:
        a(f's_load_dwordx2 s[68:69], s[0:1], 80\ns_waitcnt lgkmcnt(0)')
        a(f's_cmp_eq_u32 s3, {wave}\ns_cbranch_scc0 L_nost{tag}')
        a(f's_lshl_b32 s3, s2, 6\ns_add_u32 s3, s3, {STB+kidx*65536}\ns_mov_b64 exec, -1\nv_mov_b32 v1, s3')
        for k in range(n):
            a(f'v_mov_b32 v2, s{base+2*k}\nglobal_store_dword v1, v2, s[68:69] offset:{4*k}')
        a(f's_waitcnt vmcnt(0)\nL_nost{tag}:')
def k3():
    ka,ia,kb,ib,mult=OPT['ka'],OPT['ia'],OPT['kb'],OPT['ib'],OPT.get('mult',20)
    a=Asm()
    a(f'''s_cmp_ge_u32 s2, 1
    s_cbranch_scc1 L3_end
    s_load_dwordx2 s[4:5], s[0:1], 80
    s_memrealtime s[8:9]
    v_lshlrev_b32 v1, 6, v0
    v_add_u32 v2, {STB+ka*65536+4*ia}, v1
    v_add_u32 v3, {STB+kb*65536+4*ib}, v1
    s_waitcnt lgkmcnt(0)''')
    for i in range(4):
        a(f'global_load_dword v{10+i}, v2, s[4:5]\nglobal_load_dword v{20+i}, v3, s[4:5]\nv_add_u32 v2, 4096, v2\nv_add_u32 v3, 4096, v3')
    for i in range(4): a(f'v_sub_u32 v{10+i}, s8, v{10+i}\nv_sub_u32 v{20+i}, s8, v{20+i}')
    opa='max' if not OPT.get('amax') else 'min'; opb='min' if not OPT.get('bmin') else 'max'
    for i in range(1,4): a(f'v_{opa}_u32 v10, v10, v{10+i}\nv_{opb}_u32 v20, v20, v{20+i}')
    a('v_readlane_b32 s10, v10, 0\nv_readlane_b32 s11, v20, 0')
    for l in range(1,64):
        a(f'v_readlane_b32 s12, v10, {l}\nv_readlane_b32 s13, v20, {l}\ns_{opa}_u32 s10, s10, s12\ns_{opb}_u32 s11, s11, s13')
    a(f'''s_sub_u32 s10, s10, s11
    s_max_i32 s10, s10, 0
    s_min_u32 s10, s10, 10000
    s_mul_i32 s10, s10, {mult}
    L3_spin:
    s_memrealtime s[12:13]
    s_waitcnt lgkmcnt(0)
    s_sub_u32 s12, s12, s8
    s_cmp_lt_u32 s12, s10
    s_cbranch_scc1 L3_spin
    L3_end:
    s_endpgm''')
    return a

def k1():
    a=Asm()
    HIST=0; OFF=1024; SORT=2048; WL=22528; HL=38912; WHL=47104
    a('''s_cmp_ge_u32 s2, 256
    s_cbranch_scc1 L1_end''')
    stamp(a,0)
    a('''s_load_dwordx16 s[4:19], s[0:1], 0
    s_load_dwordx2 s[20:21], s[0:1], 80
    v_lshrrev_b32 v1, 6, v0
    v_readfirstlane_b32 s3, v1
    v_and_b32 v3, 63, v0
    s_cmp_ge_u32 s3, 10
    s_cbranch_scc1 L1_help''')
    st=a.state()
    a(f'''v_lshlrev_b32 v1, 4, v0
    v_lshlrev_b32 v2, 3, v0
    s_mul_i32 s25, s2, 10000
    s_mul_i32 s26, s2, 5000
    v_cmp_gt_u32 vcc, 625, v0
    s_mov_b64 s[30:31], vcc
    s_mov_b64 exec, vcc
    s_waitcnt lgkmcnt(0)
    s_add_u32 s12, s12, s25
    s_addc_u32 s13, s13, 0
    s_add_u32 s10, s10, s25
    s_addc_u32 s11, s11, 0
    s_add_u32 s8, s8, s26
    s_addc_u32 s9, s9, 0
    global_load_dwordx4 v[4:7], v1, s[12:13]
    global_load_dwordx4 v[8:11], v1, s[10:11]
    global_load_dwordx2 v[12:13], v2, s[8:9]
    s_mov_b32 s27, 214749
    s_mov_b32 s28, 0x3f0
    v_mov_b32 v22, 8
    s_mul_i32 s25, s2, {CHS}
    s_add_u32 s25, s25, {RECS}
    s_add_u32 s32, s20, s25
    s_addc_u32 s33, s21, 0
    s_add_u32 s34, s32, 10000
    s_addc_u32 s35, s33, 0
    s_lshl_b32 s25, s2, 10
    s_add_u32 s25, s25, {OFFS}
    s_add_u32 s36, s20, s25
    s_addc_u32 s37, s21, 0
    s_barrier''')
    stamp(a,1)
    for i in range(4): a(f'v_mul_u32_u24 v{14+i}, s27, v{4+i}')
    for i in range(4): a(f'v_lshrrev_b32 v{14+i}, 21, v{14+i}')
    for i in range(4): a(f'v_and_b32 v{14+i}, 0x3fc, v{14+i}')
    for i in range(4): a(f'ds_add_rtn_u32 v{18+i}, v{14+i}, v22 offset:{HIST}')
    for i in range(4): a(f'v_lshlrev_b32 v{4+i}, 4, v{4+i}')
    for i in range(4): a(f'v_lshlrev_b32 v{25+2*i}, 2, v{8+i}')
    for i in range(4):
        e=12+(i>>1)
        a(f'v_and_b32 v{24+2*i}, 0xffff0000, v{e}' if i&1 else f'v_lshlrev_b32 v{24+2*i}, 16, v{e}')
    for i in range(4): a(f'v_and_or_b32 v{24+2*i}, v{4+i}, s28, v{24+2*i}')
    a(f'''s_mov_b64 exec, -1
    v_lshlrev_b32 v23, 4, v3
    s_waitcnt lgkmcnt(0)
    s_barrier''')
    stamp(a,2)
    a(f'''ds_read_b128 v[4:7], v23 offset:{HIST}
    v_add3_u32 v12, v4, v5, v6
    v_add_u32 v12, v12, v7
    v_mov_b32 v13, v12''')
    scan64(a,'v13')
    a(f'''v_sub_u32 v8, v13, v12
    v_add_u32 v9, v8, v4
    v_add_u32 v10, v9, v5
    v_add_u32 v11, v10, v6
    ds_write_b128 v23, v[8:11] offset:{OFF}
    s_mov_b64 exec, s[30:31]''')
    for i in range(4): a(f'ds_read_b32 v{14+i}, v{14+i} offset:{OFF}')
    a('s_cmp_lg_u32 s3, 0\ns_cbranch_scc1 L1_notab'); a.cond_begin()
    for i in range(4): a(f'v_lshl_or_b32 v{32+i}, v{4+i}, 16, v{8+i}')
    a('global_store_dwordx4 v23, v[32:35], s[36:37]')
    a.cond_end('L1_notab')
    for i in range(4):
        a(f'v_add_u32 v{14+i}, v{14+i}, v{18+i}')
        a(f'ds_write_b64 v{14+i}, v[{24+2*i}:{25+2*i}] offset:{SORT}')
    a(f'''s_waitcnt lgkmcnt(0)
    s_barrier''')
    stamp(a,3)
    a(f'''ds_read_b128 v[4:7], v1 offset:{SORT}
    ds_read_b128 v[8:11], v1 offset:{SORT+10000}
    global_store_dwordx4 v1, v[4:7], s[32:33]
    global_store_dwordx4 v1, v[8:11], s[34:35]''')
    if OPT['stamp']:
        stamp(a,4); a('s_waitcnt vmcnt(0)'); stamp(a,5); stamp_out(a,6,0,0,tag='1')
    a('s_endpgm')
    a.set_state(st)
    a(f'''L1_help:
    s_mul_i32 s23, s2, 625
    s_add_u32 s24, s23, 640
    s_add_u32 s23, s23, 15
    s_lshr_b32 s23, s23, 4
    s_lshr_b32 s24, s24, 4
    s_sub_u32 s24, s24, s23
    v_lshlrev_b32 v1, 4, v3
    s_cmp_eq_u32 s3, 14
    s_cbranch_scc1 L1_w14
    s_cmp_eq_u32 s3, 15
    s_cbranch_scc1 L1_w15''')
    st=a.state()
    a(f'''s_sub_u32 s25, s3, 10
    s_lshl_b32 s26, s25, 12
    s_add_u32 s27, s26, {WL}
    s_mov_b32 m0, s27
    s_waitcnt lgkmcnt(0)
    s_add_u32 s14, s14, s26
    s_addc_u32 s15, s15, 0''')
    for i in range(4): a(f'global_load_lds_dwordx4 v1, s[14:15] offset:{1024*i}')
    a(f'''s_and_b32 s28, s25, 1
    s_lshr_b32 s29, s25, 1
    v_lshrrev_b32 v4, 5, v3
    v_bfe_u32 v5, v3, 2, 2
    v_lshl_add_u32 v5, v4, 3, v5
    v_lshlrev_b32 v5, 7, v5
    v_and_b32 v6, 3, v3
    v_lshl_add_u32 v5, v6, 3, v5
    v_and_b32 v6, 16, v3
    v_lshl_add_u32 v5, v6, 1, v5
    s_lshl_b32 s26, s29, 13
    v_add_u32 v5, s26, v5
    v_and_b32 v6, 31, v3
    v_and_b32 v7, 7, v3
    v_xor_b32 v7, v7, v4
    v_lshlrev_b32 v7, 4, v7
    v_lshl_add_u32 v7, v6, 7, v7
    s_lshl_b32 s26, s28, 12
    v_add_u32 v8, s26, v7
    v_xor_b32 v9, 32, v8
    v_xor_b32 v10, 64, v8
    v_xor_b32 v11, 96, v8
    s_lshl_b32 s26, s28, 5
    s_add_u32 s30, s23, s26
    s_sub_u32 s31, s24, s26
    s_lshl_b32 s30, s30, 7
    s_cmp_eq_u32 s29, 0
    s_cselect_b32 s26, {AT}, {BT}
    s_add_u32 s30, s30, s26
    s_add_u32 s40, s20, s30
    s_addc_u32 s41, s21, 0
    s_and_b32 s41, s41, 0xffff
    s_lshl_b32 s42, s31, 7
    s_mov_b32 s43, 0x20000
    s_mov_b32 s44, {hex((127-KS)<<23)}
    s_mov_b32 s45, {hex(fbits(LOG2E))}
    s_mov_b32 s46, 0x7fff0000
    s_mov_b32 s47, 0x80000000
    s_waitcnt vmcnt(0)
    s_barrier''')
    H=12; W=28; D=60
    for kb in range(4): a(f'ds_read_b128 {V(H+4*kb,4)}, v{8+kb} offset:{HL}')
    for kb in range(4):
        for t in range(2):
            for u in range(2):
                a(f'ds_read_b64_tr_b16 {V(W+8*kb+4*t+2*u,2)}, v5 offset:{WL+kb*2048+u*512+t*64}')
    for kb in range(4):
        for t in range(2):
            a(f'{MF} {V(D+16*t,16)}, {V(H+4*kb,4)}, {V(W+8*kb+4*t,4)}, {V(D+16*t,16) if kb else 0}')
    a('''s_barrier
    s_cmp_eq_u32 s29, 0
    s_cbranch_scc1 L1_apack''')
    st2=a.state()
    a('v_lshlrev_b32 v2, 2, v6\nv_lshl_add_u32 v2, v4, 9, v2')
    for j in range(4):
        rs=range(4*j,4*j+4)
        for r in rs: a(f'v_mul_f32 v{D+r}, s44, v{D+r}')
        for r in rs: a(f'v_mul_f32 v{D+16+r}, s45, v{D+16+r}')
        for r in rs: a(f'v_cvt_pk_bf16_f32 v{D+r}, v{D+r}, 0')
        for r in rs: a(f'v_and_b32 v{H+r}, 0x7fffffff, v{D+16+r}')
        for r in rs: a(f'v_add_u32 v{H+r}, 0x8000, v{H+r}')
        for r in rs: a(f'v_sub_u32 v{H+r}, v{H+r}, v{D+r} clamp')
        for r in rs: a(f'v_and_or_b32 v{D+r}, v{D+16+r}, s47, v{D+r}')
        for r in rs: a(f'v_and_or_b32 v{D+r}, v{H+r}, s46, v{D+r}')
        for r in rs: a(f'buffer_store_dword v{D+r}, v2, s[40:43], 0 offen offset:{(8*j+(r&3))*128}')
        if j==0: a('s_cmp_eq_u32 s28, 1\ns_cbranch_scc1 L1_gend')
    a('L1_gend:\ns_barrier\ns_endpgm')
    a.set_state(st2)
    a('L1_apack:\nv_lshlrev_b32 v2, 1, v6\nv_lshl_add_u32 v2, v4, 9, v2')
    for j in range(4):
        rs=range(4*j,4*j+4)
        for r in rs: a(f'v_mul_f32 v{D+r}, s44, v{D+r}')
        for r in rs: a(f'v_mul_f32 v{D+16+r}, s45, v{D+16+r}')
        for r in rs: a(f'v_cvt_pk_bf16_f32 v{D+r}, v{D+r}, v{D+16+r}')
        for r in rs:
            a(f'buffer_store_short v{D+r}, v2, s[40:43], 0 offen offset:{(8*j+(r&3))*128}')
            a(f'buffer_store_short_d16_hi v{D+r}, v2, s[40:43], 0 offen offset:{(8*j+(r&3))*128+64}')
        if j==0: a('s_cmp_eq_u32 s28, 1\ns_cbranch_scc1 L1_gend')
    a('s_barrier\ns_endpgm')
    a.set_state(st)
    a(f'''L1_w14:
    v_mov_b32 v8, 0
    v_mov_b32 v9, 0
    v_mov_b32 v10, 0
    v_mov_b32 v11, 0
    ds_write_b128 v1, v[8:11] offset:{HIST}
    v_lshrrev_b32 v4, 3, v3
    v_and_b32 v5, 7, v3
    v_xor_b32 v5, v5, v4
    v_lshlrev_b32 v5, 4, v5
    v_lshl_add_u32 v5, v4, 7, v5
    v_add_u32 v6, s23, v3
    v_mul_u32_u24 v7, 6, v6
    v_lshlrev_b32 v6, 3, v3
    s_lshl_b32 s25, s23, 7
    s_mov_b32 m0, {HL}
    s_waitcnt lgkmcnt(0)
    s_add_u32 s40, s4, s25
    s_addc_u32 s41, s5, 0
    s_and_b32 s41, s41, 0xffff
    s_sub_u32 s42, 1280000, s25
    s_mov_b32 s43, 0x20000
    s_mov_b32 s44, s6
    s_and_b32 s45, s7, 0xffff
    s_mov_b32 s46, 60000
    s_mov_b32 s47, 0x20000''')
    for i in range(4): a(f'buffer_load_dwordx4 v5, s[40:43], 0 offen offset:{1024*i} lds')
    a(f'''s_mov_b32 m0, {HL+4096}
    s_movk_i32 s25, 0x1000
    buffer_load_dwordx4 v5, s[40:43], s25 offen lds
    buffer_load_ushort v8, v7, s[44:47], 0 offen
    buffer_load_ushort v10, v7, s[44:47], 0 offen offset:2
    buffer_load_ushort v9, v7, s[44:47], 0 offen offset:4
    s_lshl_b32 s25, s23, 3
    s_add_u32 s25, s25, {P8}
    s_add_u32 s48, s20, s25
    s_addc_u32 s49, s21, 0
    s_and_b32 s49, s49, 0xffff
    s_lshl_b32 s50, s24, 3
    s_mov_b32 s51, 0x20000
    s_waitcnt vmcnt(3)
    s_barrier
    v_lshl_or_b32 v8, v10, 16, v8
    buffer_store_dwordx2 v[8:9], v6, s[48:51], 0 offen
    s_barrier
    s_barrier
    s_endpgm''')
    a.set_state(st)
    a(f'''L1_w15:
    s_cmp_ge_u32 s2, 2
    s_cbranch_scc1 L1_end
    s_lshl_b32 s25, s2, 13
    s_mov_b32 m0, {WHL}
    s_waitcnt lgkmcnt(0)
    s_add_u32 s18, s18, s25
    s_addc_u32 s19, s19, 0''')
    for i in range(4): a(f'global_load_lds_dwordx4 v1, s[18:19] offset:{1024*i}')
    a(f's_add_u32 s18, s18, 4096\ns_addc_u32 s19, s19, 0\ns_mov_b32 m0, {WHL+4096}')
    for i in range(4): a(f'global_load_lds_dwordx4 v1, s[18:19] offset:{1024*i}')
    a(f'''v_lshrrev_b32 v4, 4, v3
    v_bfe_u32 v5, v3, 2, 2
    v_lshl_add_u32 v5, v4, 3, v5
    v_lshlrev_b32 v5, 7, v5
    v_and_b32 v6, 3, v3
    v_lshl_add_u32 v5, v6, 3, v5
    s_lshl_b32 s25, s2, 11
    s_add_u32 s25, s25, {WF}
    s_add_u32 s26, s20, s25
    s_addc_u32 s27, s21, 0
    s_barrier
    s_waitcnt vmcnt(0)''')
    for nt in range(4):
        for kb in range(2):
            for u in range(2):
                a(f'ds_read_b64_tr_b16 {V(8+8*nt+4*kb+2*u,2)}, v5 offset:{WHL+kb*4096+u*512+nt*32}')
    a('s_barrier')
    for nt in range(4):
        for kb in range(2): a(f'global_store_dwordx4 v1, {V(8+8*nt+4*kb,4)}, s[26:27] offset:{kb*1024}')
        a('v_add_u32 v1, 4096, v1')
    a('s_barrier\nL1_end:\ns_endpgm')
    return a

OH=0; HIST=1024; MASK=1280; FLAG=1536; PD=1600; CR=2112; WX=2624; AL=3072; XZ=9216
CAP=3232; VB=16384; REC=VB+CAP*4; NEGROWS=134-KS; LUT=163840-65536-NEGROWS*256
POSTOP=255-KS
XLO=NEGROWS-32
MA=LUT+(192-XLO-1+32)*256; MSTR=272
assert REC+CAP*16<=LUT and MA+56*MSTR<=LUT+255*256 and 192-XLO-1+32>=POSTOP and 163840-LUT>=81920
class R:
    FK=4; XAD=5; vV=6; vR=7; vQ=8; vK=9
    ACC=[12,28]; L=[44,60]; YL=76; T=92; SA=108; XA=116; XB=[120,124]
sLUT='s36'; sOFF='s37'; sCNT='s38'; SRD='s[20:23]'

def main_loop(a):
    def mad(r): return f'v_mad_u32_u16 {V(R.YL+r)}, {V(R.YL+r)}, 2, {sLUT} op_sel:[1,0,0,0]'
    def rd(r): return f'ds_read_u16{"_d16_hi" if r&4 else ""} {V(R.YL+r)}, {V(R.YL+r)}'
    def sh(b,r): return f'v_lshlrev_b32 {V(R.YL+r)}, 16, {V(R.L[b]+r)}'
    def ex(b,r): return f'v_exp_f32 {V(R.T+r)}, -{V(R.L[b]+r)}'
    def rc(r): return f'v_rcp_f32 {V(R.T+r)}, {V(R.T+r)}'
    def pa(i): return f'v_pk_add_f32 {V(R.T+2*i,2)}, {V(R.T+2*i,2)}, 1.0 op_sel_hi:[1,0]'
    def pm(b,i): return f'v_pk_mul_f32 {V(R.T+2*i,2)}, {V(R.T+2*i,2)}, {V(R.L[b]+2*i,2)}'
    def cv(kb,i): return f'v_cvt_pk_bf16_f32 {V(R.T+8*kb+i)}, {V(R.T+8*kb+i)}, {V(R.T+8*kb+4+i)}'
    def g2(acc,kb,M): return f'{MF} {V(R.ACC[acc],16)}, {V(R.SA+4*kb,4)}, {V(M,4)}, {V(R.ACC[acc],16)}'
    ylx=f'{MF} {V(R.YL,16)}, {V(R.XA,4)}, {V(R.XB[0],4)}, {V(R.YL,16)}'
    def hi(b): return f'{MF} {V(R.L[b],16)}, {V(R.XA,4)}, {V(R.XB[1],4)}, {V(R.L[b],16)}'
    def ta(u): return f'v_add_u32_dpp {V(R.SA+2*u)}, {V(R.FK)}, {V(R.vK)} quad_perm:[{u},{u},{u},{u}] row_mask:0xf bank_mask:0xf bound_ctrl:1'
    def tr(u,off): return f'ds_read_b64_tr_b16 {V(R.SA+2*u,2)}, {V(R.SA+2*u)} offset:{off+(128*(u>>1)+32*(u&1))}'
    def it(a,b,last):
        n=1-b; o=512*b
        ld=(lambda b,r: '') if last else P.ld
        fe0,fe1,xa,fq=('','','','') if last else (P.fe0,P.fe1,P.xa,P.fq(o+512))
        S=['s_waitcnt vmcnt(0)']
        S+=[sh(b,r) for r in range(16)]+[ta(0),ta(1),hi(b), tr(0,o), tr(1,o), ld(n,0), ld(n,1), ta(2), ta(3), fe0, ylx, tr(2,o), tr(3,o), fe1, ld(n,2), ld(n,3)]
        S+=[ex(b,r) for r in range(0,4)]
        S+=[mad(r) for r in range(0,4)]+[rd(r) for r in range(0,4)]+[ld(n,4),ld(n,5)]
        S+=[ex(b,r) for r in range(4,8)]
        S+=[mad(r) for r in range(4,8)]+[rd(r) for r in range(4,8)]+[ld(n,6),ld(n,7)]
        S+=[ex(b,r) for r in range(8,16)]
        S+=[mad(r) for r in range(8,12)]+[rd(r) for r in range(8,12)]+[ld(n,8),ld(n,9)]
        S+=[pa(i) for i in range(8)]
        S+=[mad(r) for r in range(12,16)]+[rd(r) for r in range(12,16)]+[xa, fq, ld(n,10),ld(n,11)]
        S+=[rc(r) for r in range(0,4)]
        S+=[g2(0,0,R.YL), ld(n,12)]+[rc(r) for r in range(4,7)]
        S+=[g2(0,0,R.YL+4), ld(n,13)]+[rc(r) for r in range(7,10)]
        S+=[g2(0,1,R.YL+8), ld(n,14)]+[rc(r) for r in range(10,13)]
        S+=[g2(0,1,R.YL+12), ld(n,15)]+[rc(r) for r in range(13,16)]
        S+=[pm(b,i) for i in range(8)]
        S+=[cv(0,i) for i in range(4)]+[cv(1,i) for i in range(4)]
        if b==1 and not last:
            S+=[f'v_add_u32 {V(R.vQ)}, 1024, {V(R.vQ)}', f'v_add_u32 {V(R.vK)}, 1024, {V(R.vK)}']
        S+=[g2(1,0,R.T)]+([] if last else [P.vr(b,j,256+128*b) for j in range(4)])+[g2(1,1,R.T+8)]
        if b==1 and not last: S+=[f'v_add_u32 {V(R.vV)}, 256, {V(R.vV)}']
        for x in S: a(x)
    cap={}
    def head(a,k):
        a(f's_cmp_gt_u32 {sCNT}, 3\ns_cbranch_scc1 L_go{k}\ns_setprio 2\ns_cmp_eq_u32 {sCNT}, 3\ns_cbranch_scc1 L_go{k}\ns_setprio 1\ns_cmp_eq_u32 {sCNT}, 1\ns_cbranch_scc1 L_last{k}')
        a.raw(f'L_go{k}:')
    def body(a):
        for b in range(2):
            cap[b]=a.state()
            st=a.state(); head(a,b); a.hists+=[h+[I('s_nop 0'),I('s_nop 0')] for h in st[2]]
            it(a,b,False)
            a(f's_sub_u32 {sCNT}, {sCNT}, 1')
        a('s_branch L_mloop')
    a('s_setprio 3')
    a.loop('L_mloop', body)
    ends=[]
    for b in range(2):
        a.set_state(cap[b]); a(f'L_last{b}:\ns_setprio 0')
        it(a,b,True)
        if b==0: a('s_branch L_mdone')
        ends.append(a.state())
    a.hists+=ends[0][2]
    a('L_mdone:\ns_waitcnt lgkmcnt(0)')
class P:
    @staticmethod
    def vr(b,j,off): return f'ds_read_b128 {V(R.L[b]+4*j,4)}, {V(R.vV)} offset:{off+16*j}'
    @staticmethod
    def ld(b,r): return (f'v_min_u32 {V(R.L[b]+r)}, 39996, {V(R.L[b]+r)}\n' if OPT.get('safe') else '')+f'buffer_load_dword {V(R.L[b]+r)}, {V(R.L[b]+r)}, {SRD}, 0 offen'
    fe0=f'v_add_u32 {V(R.XAD)}, {sOFF}, {V(R.vR)}'
    fe1=f's_mov_b32 exec_hi, 0\nds_read_u16 {V(R.XAD)}, {V(R.XAD)} offset:8\ns_mov_b32 exec_hi, -1\ns_add_u32 {sOFF}, {sOFF}, 512'
    xa=f'ds_read_b128 {V(R.XA,4)}, {V(R.XAD)}'
    @staticmethod
    def fq(off): return f'ds_read_u16_d16_hi {V(R.FK)}, {V(R.vQ)} offset:{off+8}'

def xyz_reduce(a, x, y, z):
    a(f'v_add_f32_dpp {x}, {x}, {x} row_ror:8 row_mask:0xf bank_mask:0xf')
    a(f'v_add_f32_dpp {z}, {z}, {z} row_ror:8 row_mask:0xf bank_mask:0xf')
    a(f'v_add_f32_dpp {x}, {y}, {y} row_ror:8 row_mask:0xf bank_mask:0xc')
    a(f'v_add_f32_dpp {x}, {x}, {x} row_shl:4 row_mask:0xf bank_mask:0x5')
    a(f'v_add_f32_dpp {x}, {z}, {z} row_shr:4 row_mask:0xf bank_mask:0x2')

def k2():
    a=Asm()
    RR=[12+6*i for i in range(4)]
    RK=36; PS=44; PDr=60; TM=76
    E=R.T; BS=R.T+4; LA=R.T+8; LD=R.T+11; EA=R.T+14
    vO=108; vKey=109; vP=110; vC=112; vI=113; vFour=114; vCW=116
    a('''s_cmp_ge_u32 s2, 256
    s_cbranch_scc1 L2_end''')
    stamp(a,0)
    a(f'''s_load_dwordx2 s[14:15], s[0:1], 80
    s_load_dwordx2 s[4:5], s[0:1], 0
    s_load_dwordx4 s[8:11], s[0:1], 40
    s_load_dwordx2 s[12:13], s[0:1], 64
    v_lshrrev_b32 v1, 6, v0
    v_readfirstlane_b32 s3, v1
    v_and_b32 v3, 63, v0
    s_and_b32 s16, s2, 7
    s_lshl_b32 s16, s16, 5
    s_lshr_b32 s19, s2, 3
    s_add_u32 s16, s16, s19
    s_mul_i32 s17, s16, 625
    s_add_u32 s18, s17, 640
    s_add_u32 s17, s17, 15
    s_lshr_b32 s17, s17, 4
    s_lshr_b32 s18, s18, 4
    s_sub_u32 s18, s18, s17
    v_lshrrev_b32 v10, 2, v0
    v_lshlrev_b32 v1, 10, v10
    v_lshlrev_b32 v2, 4, v3
    s_lshl_b32 s56, s16, 2
    s_add_u32 s56, s56, {OFFS}
    s_mul_i32 s57, s3, 5120
    s_add_u32 s58, s57, {LUT}
    s_add_u32 s57, s57, {P8}
    s_mov_b32 m0, s58
    s_mov_b32 s26, {RECS+256*CHS+4096}
    s_mov_b32 s27, 0x20000
    s_waitcnt lgkmcnt(0)
    s_mov_b32 s24, s14
    s_and_b32 s25, s15, 0xffff
    s_cmp_lg_u32 s3, 8
    s_cbranch_scc1 L2_nocw''')
    a.cond_begin()
    a(f'''v_lshlrev_b32 v11, 1, v3
    s_add_u32 s8, s8, {128*128}
    s_addc_u32 s9, s9, 0
    global_load_short_d16_hi {V(vCW)}, v11, s[8:9]
    global_load_short_d16_hi {V(vCW+1)}, v11, s[8:9] offset:128
    global_load_short_d16_hi {V(vCW+2)}, v11, s[10:11]''')
    a.cond_end('L2_nocw')
    a(f'buffer_load_dword {V(vO)}, v1, s[24:27], s56 offen')
    for i in range(4): a(f'buffer_load_dwordx4 v2, s[24:27], s57 offen offset:{1024*i} lds')
    a(f'''s_add_u32 s58, s58, 4096
    s_add_u32 s57, s57, 4096
    s_mov_b32 m0, s58
    buffer_load_dwordx4 v2, s[24:27], s57 offen lds
    s_mov_b32 s20, s14
    s_or_b32 s21, s25, 0x80000000
    s_mov_b32 s22, 1280000
    s_mov_b32 s23, 0x00c00000
    s_lshl_b32 s59, s17, 7
    s_add_u32 s60, s59, {AT}
    s_add_u32 s28, s14, s60
    s_addc_u32 s29, s15, 0
    s_and_b32 s29, s29, 0xffff
    s_sub_u32 s30, 1280000, s59
    s_mov_b32 s31, 0x20000
    s_mov_b32 s32, s14
    s_mov_b32 s33, s25
    s_mov_b32 s34, 1280000
    s_mov_b32 s35, 0x20000
    s_mov_b32 {sLUT}, {LUT}
    s_mov_b32 {sOFF}, 0
    s_cmp_lg_u32 s3, 6
    s_cbranch_scc1 L2_nooh''')
    a.cond_begin()
    a(f'''v_and_b32 v76, 1, v3
    v_lshlrev_b32 v76, 4, v76
    v_mov_b32 v77, 0x3f80
    v_lshlrev_b32 v76, v76, v77
    v_bfe_u32 v77, v3, 1, 2''')
    for i in range(4): a(f'v_cmp_eq_u32 vcc, {i}, v77\nv_cndmask_b32 v{80+i}, 0, v76, vcc')
    a(f'''ds_write_b128 v2, v[80:83] offset:{OH}
    v_mov_b32 v84, 0
    v_mov_b32 v85, 0
    v_lshlrev_b32 v76, 3, v3
    ds_write_b64 v76, v[84:85] offset:{HIST}
    ds_write_b32 v84, v84 offset:{FLAG}''')
    a.cond_end('L2_nooh')
    D_=0x00800080
    a(f'''v_and_b32 v76, 15, v0
    v_lshlrev_b32 v77, 19, v76
    v_or_b32 v77, {hex((KS<<23)|0x8000)}, v77
    s_mov_b32 s60, {hex(fbits(LOG2E/2))}
    s_mov_b32 s61, {hex(D_)}
    s_mov_b32 s62, {hex(fbits(LOG2E))}''')
    for i in range(8): a(f'v_add_u32 v{80+i}, {hex(i<<16)}, v77')
    for i in range(8): a(f'v_mul_f32 v{80+i}, s60, v{80+i}')
    for i in range(4): a(f'v_cvt_pk_bf16_f32 v{BS+i}, v{80+2*i}, v{81+2*i}')
    a(f'''v_lshrrev_b32 v78, 4, v0
    v_lshl_add_u32 v79, v76, 4, {sLUT}''')
    B2=192-XLO-1
    assert XLO<=64 and B2>=128
    a(f'''v_cmp_gt_u32 vcc, {XLO}, v78
    v_cndmask_b32 v80, 32, 0, vcc
    v_cndmask_b32 v81, 33, 0, vcc
    v_add_u32 v80, v80, v78
    v_add_u32 v81, v81, v78
    v_lshl_add_u32 v{LA}, v80, 8, v79
    v_mul_lo_u32 v{LD}, v81, s61
    v_add_u32 v80, 96, v78
    v_add_u32 v81, 97, v78
    v_lshl_add_u32 v{LA+1}, v80, 8, v79
    v_mul_lo_u32 v{LD+1}, v81, s61
    v_cmp_gt_u32 vcc, {B2-128}, v78
    v_mov_b32 v82, {255-B2+128}
    v_mov_b32 v83, 160
    v_cndmask_b32 v80, v82, v83, vcc
    v_mov_b32 v83, 161
    v_cndmask_b32 v81, v82, v83, vcc
    v_add_u32 v80, v80, v78
    v_add_u32 v81, v81, v78
    v_lshl_add_u32 v{LA+2}, v80, 8, v79
    v_mul_lo_u32 v{LD+2}, v81, s61
    v_mov_b32 {V(vFour)}, 4
    v_add_u32 v80, s17, v3
    v_lshl_add_u32 {V(vP)}, v80, 3, {sLUT}
    v_and_b32 v80, 63, v80
    v_lshlrev_b32 {V(vKey)}, 2, v80
    s_mov_b32 s57, {CHS}
    v_and_b32 v80, 3, v0
    v_lshlrev_b32 v80, 4, v80
    v_mad_u32_u24 v81, v10, s57, v80
    s_mov_b32 s57, {RECS}''')
    stamp(a,1)
    a(f'''v_add_u32_sdwa v81, {V(vO)}, v81 dst_sel:DWORD dst_unused:UNUSED_PAD src0_sel:WORD_0 src1_sel:DWORD
    v_lshrrev_b32 {V(vO)}, 16, {V(vO)}
    v_sub_u32 v82, {V(vO)}, v80
    v_cmp_lt_i32 vcc, 128, v82
    s_mov_b64 s[48:49], vcc
    s_mov_b64 s[50:51], 0
    s_mov_b64 s[52:53], 0
    s_mov_b64 s[54:55], 0
    s_mov_b32 s63, 0
    s_cbranch_vccz L2_nr23''')
    a.cond_begin()
    a(f'''buffer_load_dwordx4 {V(RR[2]+2,4)}, v81, s[24:27], s57 offen offset:128
    buffer_load_dwordx4 {V(RR[3]+2,4)}, v81, s[24:27], s57 offen offset:192
    v_cmp_lt_i32 vcc, 136, v82
    s_mov_b64 s[50:51], vcc
    v_cmp_lt_i32 vcc, 192, v82
    s_mov_b64 s[52:53], vcc
    v_cmp_lt_i32 vcc, 200, v82
    s_mov_b64 s[54:55], vcc
    v_cmp_lt_u32 vcc, 256, {V(vO)}
    s_cmp_lg_u64 vcc, 0
    s_cselect_b32 s63, 1, 0''')
    a.cond_end('L2_nr23')
    a(f'''buffer_load_dwordx4 {V(RR[0]+2,4)}, v81, s[24:27], s57 offen
    v_cmp_lt_i32 vcc, 64, v82
    s_mov_b64 s[44:45], vcc
    v_bfrev_b32 v83, 2
    v_cndmask_b32 v83, v83, v81, vcc
    buffer_load_dwordx4 {V(RR[1]+2,4)}, v83, s[24:27], s57 offen offset:64
    s_mul_i32 s58, s3, 384
    s_add_u32 s59, s58, {AL}
    s_mov_b32 m0, s59
    s_mov_b64 exec, 0xffffff
    buffer_load_dwordx4 v2, s[28:31], s58 offen lds
    s_mov_b64 exec, 0xfffff
    s_lshl_b32 s58, s19, 4
    s_add_u32 s58, s58, s3
    s_mul_i32 s58, s58, 2560
    v_lshlrev_b32 v84, 7, v3
    buffer_load_dword v11, v84, s[32:35], s58 offen
    s_mov_b64 exec, -1
    v_cmp_lt_i32 s[40:41], 0, v82
    v_cmp_lt_i32 s[42:43], 8, v82
    v_cmp_lt_i32 vcc, 72, v82
    s_mov_b64 s[46:47], vcc''')
    stamp(a,2)
    a(f'''v_bfe_u32 v80, v0, 4, 5
    v_lshrrev_b32 v81, 9, v0
    v_lshl_add_u32 v80, v81, 8, v80
    v_add_u32 v80, {XLO}, v80
    v_lshl_add_u32 v{EA}, v80, 8, v79
    v_lshl_add_u32 v77, v80, 23, v77''')
    for h in range(2):
        for i in range(4): a(f'v_add_u32 v{80+i}, {hex((4*h+i)<<16)}, v77')
        for i in range(4): a(f'v_mul_f32 v{80+i}, s62, v{80+i}')
        for i in range(4): a(f'v_exp_f32 v{84+i}, -v{80+i}')
        for i in range(4): a(f'v_add_f32 v{84+i}, 1.0, v{84+i}')
        for i in range(4): a(f'v_rcp_f32 v{84+i}, v{84+i}')
        for i in range(4): a(f'v_mul_f32 v{80+i}, v{80+i}, v{84+i}')
        for i in range(2): a(f'v_cvt_pk_bf16_f32 v{E+2*h+i}, v{80+2*i}, v{81+2*i}')
    a('s_cmp_lg_u32 s3, 8\ns_cbranch_scc1 L2_nocr'); a.cond_begin()
    a(f'''v_cmp_gt_u32 vcc, 32, v3
    v_mov_b32 v80, s62
    v_mov_b32 v81, {hex((127-KS)<<23)}
    v_cndmask_b32 v80, v80, v81, vcc
    v_mul_f32 v81, {V(vCW)}, v80
    v_mul_f32 v82, {V(vCW+1)}, v80
    v_cvt_pk_bf16_f32 v82, v82, v81
    v_and_b32 v83, 0xffff0000, v82
    v_fma_f32 v81, {V(vCW)}, v80, -v83
    v_cvt_pk_bf16_f32 v81, v81, 0
    v_lshlrev_b32 v84, 1, v3
    v_lshlrev_b32 v85, 2, v3
    v_mul_f32 v83, {hex(fbits(LN2))}, {V(vCW+2)}
    ds_write_b16_d16_hi v84, v81 offset:{CR}
    ds_write_b16 v84, v82 offset:{CR+128}
    ds_write_b16_d16_hi v84, v82 offset:{CR+256}
    ds_write_b16 v84, v81 offset:{CR+384}
    ds_write_b32 v85, v83 offset:{WX}''')
    a.cond_end('L2_nocr')
    a('s_waitcnt vmcnt(4) lgkmcnt(0)\ns_barrier')
    stamp(a,3)
    a(f'ds_read_b64 {V(vP,2)}, {V(vP)}')
    def pre(i):
        for j in range(2):
            A=RR[i]+2+2*j; s=2*i+j
            a(f'''v_bfe_u32 v{RK+s}, v{A}, 2, 8
            v_lshl_add_u32 v{PS+2*s}, v{A+1}, 1, {sLUT}
            v_bfe_u32 v{PDr+2*s}, v{A}, 1, 9''')
        for j in range(2):
            s=2*i+j
            a(f'''s_mov_b64 exec, s[{40+2*s}:{41+2*s}]
            ds_add_rtn_u32 v{RK+s}, v{RK+s}, {V(vFour)} offset:{HIST}
            ds_read_b64 {V(PS+2*s,2)}, v{PS+2*s}''')
        a('s_mov_b64 exec, -1')
    pre(0); pre(1)
    a('s_cmp_eq_u64 s[48:49], 0\ns_cbranch_scc1 L2_np23'); a.cond_begin()
    pre(2); pre(3)
    a(f'v_mov_b32 v80, s63\nv_mov_b32 v81, 0\ns_mov_b64 exec, 1\nds_or_b32 v81, v80 offset:{FLAG}\ns_mov_b64 exec, -1')
    a.cond_end('L2_np23')
    a('s_waitcnt vmcnt(1) lgkmcnt(0)\ns_barrier')
    stamp(a,4)
    a(f'''ds_read_b32 {V(vC)}, {V(vKey)} offset:{HIST}
    v_lshlrev_b32 {V(vKey)}, 1, {V(vKey)}
    s_mov_b32 s60, 0x0000bf80
    s_mov_b32 s61, 0xbf800000
    v_mov_b32 {V(vI)}, {V(vC)}''')
    scan64(a,V(vI))
    a(f'''v_sub_u32 {V(vC)}, {V(vI)}, {V(vC)}
    v_readlane_b32 s56, {V(vI)}, 63
    v_lshl_or_b32 {V(vP+1)}, {V(vC)}, 16, {V(vP+1)}
    ds_write_b64 {V(vKey)}, {V(vP,2)} offset:{PD}''')
    for s in range(4): a(f'ds_read_b64 {V(PDr+2*s,2)}, v{PDr+2*s} offset:{PD}')
    a(f'''s_cmp_gt_u32 s56, {4*(CAP-32)}
    s_cbranch_scc1 L2_slow0
    s_add_u32 s57, s56, 124
    s_lshr_b32 s57, s57, 7
    s_lshr_b32 s58, s57, 4
    s_and_b32 s57, s57, 15
    s_mul_i32 s59, s58, s3
    s_min_u32 s63, s3, s57
    s_add_u32 s59, s59, s63
    s_cmp_lt_u32 s3, s57
    s_addc_u32 {sCNT}, s58, 0
    s_lshl_b32 s64, s59, 7
    s_lshl_b32 s65, {sCNT}, 7
    s_add_u32 s65, s65, s64
    s_min_u32 s65, s65, s56
    s_sub_u32 s65, s65, 4
    v_cmp_ge_u32 vcc, s64, {V(vI)}
    s_bcnt1_i32_b64 s66, vcc
    v_cmp_ge_u32 vcc, s65, {V(vI)}
    s_bcnt1_i32_b64 s67, vcc
    s_sub_u32 s67, s67, s66''')
    stslow=a.state()
    def post(sl):
        t=lambda k,n: TM+4*k+n
        for k,s in enumerate(sl): a(f'v_add_u32_sdwa v{RK+s}, v{PDr+2*s+1}, v{RK+s} dst_sel:DWORD dst_unused:UNUSED_PAD src0_sel:WORD_1 src1_sel:DWORD')
        for k,s in enumerate(sl): a(f'v_lshlrev_b32 v{t(k,0)}, 16, v{PDr+2*s}\nv_and_b32 v{t(k,1)}, 0xffff0000, v{PDr+2*s}\nv_lshlrev_b32 v{t(k,2)}, 16, v{PDr+2*s+1}')
        A=lambda s: RR[s>>1]+2+2*(s&1)
        for k,s in enumerate(sl): a(f's_mov_b64 exec, s[{40+2*s}:{41+2*s}]\nds_write_b32 v{RK+s}, v{A(s)+1} offset:{VB}')
        a('s_mov_b64 exec, -1')
        for k,s in enumerate(sl): a(f'v_dot2_f32_bf16 v{t(k,0)}, v{PS+2*s}, s60, v{t(k,0)}')
        for k,s in enumerate(sl): a(f'v_dot2_f32_bf16 v{t(k,1)}, v{PS+2*s}, s61, v{t(k,1)}')
        for k,s in enumerate(sl): a(f'v_dot2_f32_bf16 v{t(k,2)}, v{PS+2*s+1}, s60, v{t(k,2)}')
        for k,s in enumerate(sl): a(f'v_cvt_pk_bf16_f32 v{A(s)-2}, 1.0, v{t(k,0)}')
        for k,s in enumerate(sl): a(f'v_mul_f32 v{t(k,0)}, v{t(k,0)}, v{t(k,0)}')
        for k,s in enumerate(sl): a(f'v_cvt_pk_bf16_f32 v{A(s)-1}, v{t(k,1)}, v{t(k,2)}')
        for k,s in enumerate(sl): a(f'v_dot2_f32_bf16 v{t(k,0)}, v{A(s)-1}, v{A(s)-1}, v{t(k,0)}')
        for k,s in enumerate(sl): a(f'v_lshlrev_b32 v{RK+s}, 2, v{RK+s}')
        for k,s in enumerate(sl): a(f'v_cvt_pk_bf16_f32 v{A(s)+1}, v{t(k,0)}, v{t(k,0)}')
        for k,s in enumerate(sl): a(f's_mov_b64 exec, s[{40+2*s}:{41+2*s}]\nds_write_b128 v{RK+s}, {V(A(s)-2,4)} offset:{REC}')
        a('s_mov_b64 exec, -1')
    post([0,2]); post([1,3])
    a('s_cmp_eq_u64 s[48:49], 0\ns_cbranch_scc1 L2_nq23'); a.cond_begin()
    for s in range(4,8): a(f'ds_read_b64 {V(PDr+2*s,2)}, v{PDr+2*s} offset:{PD}')
    post([4,6]); post([5,7])
    a.cond_end('L2_nq23')
    a('s_cmp_lg_u32 s3, 15\ns_cbranch_scc1 L2_nopad'); a.cond_begin()
    a(f'''v_mov_b32 v80, 0
    v_mov_b32 v81, 0
    v_mov_b32 v82, 0
    v_mov_b32 v83, 0
    v_lshl_add_u32 v84, v3, 2, s56
    v_lshlrev_b32 v85, 2, v84
    s_mov_b32 exec_hi, 0
    ds_write_b32 v84, v80 offset:{VB}
    ds_write_b128 v85, v[80:83] offset:{REC}
    s_mov_b32 exec_hi, -1''')
    a.cond_end('L2_nopad')
    a(f's_cmp_eq_u32 {sCNT}, 0\ns_cbranch_scc1 L2_nowin'); a.cond_begin()
    a(f'''s_add_u32 s63, s17, s66
    s_cmp_gt_u32 s67, 7
    s_cselect_b32 s58, 1, 0
    s_lshl_b32 s57, 1, s3
    v_add_u32 v80, s66, v3
    v_lshlrev_b32 v80, 2, v80
    v_mov_b32 v81, s57
    v_mov_b32 v82, s58
    v_mov_b32 v83, 0
    v_cmp_ge_u32 vcc, s67, v3
    s_mov_b64 exec, vcc
    ds_or_b32 v80, v81 offset:{MASK}
    s_mov_b64 exec, 1
    ds_or_b32 v83, v82 offset:{FLAG}
    s_mov_b64 exec, -1
    v_lshrrev_b32 v76, 5, v3
    v_bfe_u32 v77, v3, 2, 2
    v_and_b32 v78, 3, v3
    v_bfe_u32 v79, v3, 4, 1
    v_lshlrev_b32 v80, 3, v78
    v_lshl_add_u32 v80, v79, 5, v80
    v_subrev_u32 v81, s63, v77
    v_add_u32 v82, 4, v81
    v_and_b32 v81, 7, v81
    v_and_b32 v82, 7, v82
    s_lshl_b32 s58, s66, 7
    s_add_u32 s58, s58, {AL}
    v_lshl_add_u32 v81, v81, 7, s58
    v_lshl_add_u32 v82, v82, 7, s58
    v_mov_b32 v83, {CR}
    v_lshl_add_u32 v84, v77, 7, v83
    v_cmp_gt_u32 vcc, 32, v3
    v_cndmask_b32 v81, v83, v81, vcc
    v_cndmask_b32 v82, v84, v82, vcc
    v_add_u32 v81, v81, v80
    v_add_u32 v82, v82, v80
    ds_read_b64_tr_b16 {V(R.XB[0],2)}, v81
    ds_read_b64_tr_b16 {V(R.XB[0]+2,2)}, v82
    ds_read_b64_tr_b16 {V(R.XB[1],2)}, v81 offset:64
    ds_read_b64_tr_b16 {V(R.XB[1]+2,2)}, v82 offset:64
    s_add_u32 s58, s64, {VB}
    v_lshl_add_u32 {V(R.vV)}, v76, 6, s58
    s_lshl_b32 s58, s64, 2
    s_add_u32 s58, s58, {REC}
    v_and_b32 v80, 1, v77
    v_bfe_u32 v81, v3, 3, 2
    v_lshl_add_u32 v82, v81, 2, v78
    v_lshl_add_u32 v82, v80, 4, v82
    v_lshl_add_u32 {V(R.vR)}, v82, 4, s58
    v_lshrrev_b32 v81, 1, v77
    v_lshl_add_u32 v81, v80, 2, v81
    v_lshl_add_u32 v81, v76, 4, v81
    v_lshl_add_u32 v81, v81, 4, s58
    v_lshrrev_b32 v82, 1, v78
    v_and_b32 v83, 1, v78
    v_lshl_add_u32 v82, v82, 2, v83
    v_lshl_add_u32 {V(R.vQ)}, v82, 5, v81
    v_lshl_add_u32 v82, v79, 2, v78
    v_subrev_u32 v82, s63, v82
    v_and_b32 v82, 7, v82
    v_add_u32 v82, s63, v82
    v_and_b32 v82, 63, v82
    v_lshlrev_b32 v82, 20, v82
    v_sub_u32 {V(R.vK)}, v81, v82''')
    a.cond_end('L2_nowin')
    a(f'v_mov_b32 v10, 0\ns_waitcnt lgkmcnt(0)\ns_barrier')
    stamp(a,5)
    a(f'ds_read_b32 v10, v10 offset:{FLAG}')
    for b in range(2):
        for j in range(4): a(P.vr(b,j,128*b))
    a(P.fe0); a(P.fe1); a(P.fq(0))
    a('v_cmp_ne_u32 vcc, 0, v10\ns_cbranch_vccnz L2_slow')
    a(f's_cmp_eq_u32 {sCNT}, 0\ns_cbranch_scc1 L2_nog'); a.cond_begin()
    for r in range(16): a(P.ld(0,r))
    a(P.xa)
    a.cond_end('L2_nog')
    a(f'ds_write_b128 v{EA}, {V(E,4)}')
    for p in range(3):
        for i in range(4): a(f'v_add_u32 v{76+4*p+i}, v{BS+i}, v{LD+p}')
        a(f'ds_write_b128 v{LA+p}, {V(76+4*p,4)}')
    for r in range(32): a(f'v_mov_b32 v{R.ACC[0]+r}, 0')
    a('s_waitcnt lgkmcnt(0)\ns_barrier')
    stamp(a,6)
    a(f's_cmp_eq_u32 {sCNT}, 0\ns_cbranch_scc1 L2_epi')
    main_loop(a)
    stamp(a,7)
    a(f'''v_and_b32 v76, 31, v3
    v_lshlrev_b32 v76, 2, v76
    v_add_u32 v77, {WX}, v76
    ds_read2_b32 v[78:79], v77 offset0:0 offset1:32''')
    a(f'''v_lshrrev_b32 v80, 5, v3
    v_subrev_u32 v80, s63, v80
    s_add_u32 s57, s66, s3
    s_mul_i32 s58, s57, {MSTR}
    s_add_u32 s58, s58, {MA}
    s_lshl_b32 s57, s57, 7
    s_add_u32 s57, s57, {XZ}
    v_add_u32 v81, s58, v76
    v_add_u32 v82, s57, v76
    s_movk_i32 s58, {MSTR}''')
    for j in range(4):
        A0=R.ACC[0]+4*j; A1=R.ACC[1]+4*j
        a(f'''v_add_u32 v83, {2*j}, v80
        v_and_b32 v83, 7, v83
        v_cmp_ge_u32 vcc, s67, v83
        s_cbranch_vccz L2_nf{j}''')
        a.cond_begin()
        a(f'v_mad_u32_u24 v84, v83, s58, v81\nv_lshl_add_u32 v85, v83, 7, v82')
        for q in range(1,4): a(f'v_mul_f32 v{A0+q}, v{A0+q}, v78')
        for q in range(1,4): a(f'v_fmac_f32 v{A0+q}, v{A1+q}, v79')
        xyz_reduce(a, V(A0+1), V(A0+2), V(A0+3))
        a(f'''s_mov_b64 exec, vcc
        ds_write2_b32 v84, v{A0}, v{A1} offset0:0 offset1:32
        ds_write_b32 v85, v{A0+1}
        s_mov_b64 exec, -1''')
        a.cond_end(f'L2_nf{j}')
    WFr=44; HF=60; HR=68; S=12; U=28
    a(f'''L2_epi:
    s_nop 7
    s_waitcnt vmcnt(0)
    s_cmp_ge_u32 s3, 12
    s_cbranch_scc1 L2_posw''')
    st=a.state()
    a(f'''s_and_b32 s57, s3, 3
    s_lshr_b32 s58, s3, 2
    s_lshl_b32 s59, s57, 12
    s_add_u32 s59, s59, {WF}''')
    for kb in range(4): a(f'buffer_load_dwordx4 {V(WFr+4*kb,4)}, v2, s[24:27], s59 offen offset:{1024*kb}')
    a(f'''s_lshl_b32 s59, s17, 7
    s_add_u32 s28, s4, s59
    s_addc_u32 s29, s5, 0
    s_and_b32 s29, s29, 0xffff
    s_lshl_b32 s30, s18, 7
    s_add_u32 s32, s12, s59
    s_addc_u32 s33, s13, 0
    s_and_b32 s33, s33, 0xffff
    s_mov_b32 s34, s30
    s_lshl_b32 s58, s58, 4
    v_and_b32 v76, 15, v3
    v_add_u32 v76, s58, v76
    v_lshrrev_b32 v77, 4, v3
    v_lshlrev_b32 v78, 7, v76
    v_lshl_add_u32 v79, v77, 4, v78
    v_lshl_add_u32 v78, v77, 3, v78
    s_lshl_b32 s57, s57, 5
    v_add_u32 v78, s57, v78
    buffer_load_dwordx4 {V(HF,4)}, v79, s[28:31], 0 offen
    buffer_load_dwordx4 {V(HF+4,4)}, v79, s[28:31], 0 offen offset:64
    buffer_load_dwordx2 {V(HR,2)}, v78, s[28:31], 0 offen
    v_lshlrev_b32 v80, 2, v76
    s_mov_b32 s58, {MA}
    v_lshl_add_u32 v77, v77, 5, s58
    s_movk_i32 s58, {MSTR}
    s_waitcnt lgkmcnt(0)
    s_barrier''')
    stamp(a,8)
    def psum(getmask, node, base, stride, reads, n, tag):
        a(f'''{getmask}
        v_ffbl_b32 v81, v80
        v_bcnt_u32_b32 v80, v80, 0
        v_add_u32 v81, v81, {node}
        v_mad_u32_u24 v81, v81, {stride}, {base}
        v_cmp_lt_u32 vcc, 0, v80
        v_bfrev_b32 v84, 2
        v_cndmask_b32 v82, v84, v81, vcc''')
        for k,o in enumerate(reads): a(f'ds_read_b128 {V(S+4*k,4)}, v82 offset:{o}')
        a(f's_mov_b32 s59, 1')
        a(f's_nop 1\nL2_ps{tag}:')
        a(f'''v_add_u32 v81, {stride}, v81
        v_cmp_lt_u32 vcc, s59, v80
        v_cndmask_b32 v82, v84, v81, vcc''')
        for k,o in enumerate(reads): a(f'ds_read_b128 {V(U+4*k,4)}, v82 offset:{o}')
        a('s_add_u32 s59, s59, 1\nv_cmp_lt_u32 vcc, s59, v80')
        for k in range(n//2): a(f'v_pk_add_f32 {V(S+2*k,2)}, {V(S+2*k,2)}, {V(U+2*k,2)}')
        a(f's_cbranch_vccnz L2_ps{tag}')
    psum(f'ds_read_b32 v80, v80 offset:{MASK}', 'v76', 'v77', 's58', [0,16,128,144], 16, 'h')
    a(f'{MF16} v[84:87], {V(WFr,4)}, {V(HF,4)}, 0')
    for k in range(8): a(f'v_cvt_pk_bf16_f32 v{S+k}, v{S+2*k}, v{S+2*k+1}')
    a(f'''{MF16} v[84:87], {V(WFr+4,4)}, {V(HF+4,4)}, v[84:87]
    {MF16} v[88:91], {V(WFr+8,4)}, {V(S,4)}, 0
    {MF16} v[88:91], {V(WFr+12,4)}, {V(S+4,4)}, v[88:91]
    v_lshlrev_b32 v92, 16, v{HR}
    v_and_b32 v93, 0xffff0000, v{HR}
    v_lshlrev_b32 v94, 16, v{HR+1}
    v_and_b32 v95, 0xffff0000, v{HR+1}
    s_mov_b32 s59, {hex(fbits(LN2))}''')
    for i in range(4): a(f'v_fma_f32 v{84+i}, v{84+i}, s62, v{88+i}')
    for i in range(4): a(f'v_exp_f32 v{88+i}, -v{84+i}')
    for i in range(4): a(f'v_mul_f32 v{84+i}, s59, v{84+i}')
    for i in range(4): a(f'v_add_f32 v{88+i}, 1.0, v{88+i}')
    for i in range(4): a(f'v_rcp_f32 v{88+i}, v{88+i}')
    for i in range(4): a(f'v_fmac_f32 v{92+i}, v{84+i}, v{88+i}')
    a(f'''v_cvt_pk_bf16_f32 v92, v92, v93
    v_cvt_pk_bf16_f32 v93, v94, v95
    buffer_store_dwordx2 v[92:93], v78, s[32:35], 0 offen''')
    if OPT['stamp']:
        stamp(a,9); a('s_waitcnt vmcnt(0)'); stamp(a,10); stamp_out(a,11,1,OPT.get('wave',0),tag='2')
    a('s_endpgm')
    a.set_state(st)
    a(f'''L2_posw:
    s_sub_u32 s58, s3, 12
    s_lshl_b32 s58, s58, 4
    v_lshrrev_b32 v76, 2, v3
    v_add_u32 v76, s58, v76
    v_and_b32 v78, 3, v3
    v_add_u32 v79, s17, v76
    v_and_b32 v85, 63, v79
    v_lshlrev_b32 v85, 3, v85
    v_lshl_add_u32 v85, v78, 1, v85
    ds_read_u16_d16_hi v86, v85 offset:{PD}
    v_mul_u32_u24 v79, 6, v79
    v_lshl_add_u32 v79, v78, 1, v79
    v_bfrev_b32 v77, v78
    v_lshrrev_b32 v77, 26, v77
    v_add_u32 v77, {XZ}, v77
    v_lshlrev_b32 v80, 2, v76
    s_add_u32 s32, s12, 1280000
    s_addc_u32 s33, s13, 0
    s_and_b32 s33, s33, 0xffff
    s_mov_b32 s34, 60000
    s_movk_i32 s58, 128
    s_waitcnt lgkmcnt(0)
    s_barrier
    s_cmp_eq_u32 s3, 15
    s_cbranch_scc1 L2_end''')
    psum(f'ds_read_b32 v80, v80 offset:{MASK}', 'v76', 'v77', 's58', [0,64], 8, 'p')
    a(f'''v_pk_add_f32 {V(S,2)}, {V(S,2)}, {V(S+2,2)}
    v_pk_add_f32 {V(S+4,2)}, {V(S+4,2)}, {V(S+6,2)}
    v_pk_add_f32 {V(S,2)}, {V(S,2)}, {V(S+4,2)}
    v_add_f32 v{S}, v{S}, v{S+1}
    v_add_f32 v{S}, v{S}, v86
    v_cvt_pk_bf16_f32 v{S}, v{S}, v{S}
    v_cmp_gt_u32 vcc, s18, v76
    v_cmp_gt_u32 s[40:41], 3, v78
    s_and_b64 vcc, vcc, s[40:41]
    v_cndmask_b32 v79, v84, v79, vcc
    buffer_store_short v{S}, v79, s[32:35], 0 offen
    s_endpgm''')
    a.set_state(stslow)
    a(f'''L2_slow0:
    s_waitcnt lgkmcnt(0)
    s_barrier
    L2_slow:
    s_waitcnt vmcnt(0) lgkmcnt(0)
    s_barrier
    s_load_dwordx2 s[8:9], s[0:1], 40
    s_mov_b32 s40, s3
    v_lshlrev_b32 v12, 1, v3
    v_cmp_gt_u32 s[42:43], 32, v3
    v_mov_b32 v13, 1.0
    v_mov_b32 v14, {hex(fbits(LOG2E*2.0**KS))}
    v_cndmask_b32 v13, v13, v14, s[42:43]
    v_and_b32 v14, 31, v3
    v_lshlrev_b32 v14, 2, v14
    v_lshlrev_b32 v15, 2, v3
    v_mov_b32 v16, 0
    v_mov_b32 v17, 0
    s_waitcnt lgkmcnt(0)
    s_add_u32 s8, s8, {128*128}
    s_addc_u32 s9, s9, 0
    global_load_short_d16_hi v16, v12, s[8:9]
    global_load_short_d16_hi v17, v12, s[8:9] offset:128
    ds_read_b32 v18, v15 offset:{WX}
    v_mul_f32 v16, s62, v16
    v_mul_f32 v17, s62, v17
    s_lshl_b32 s56, s16, 2
    s_add_u32 s56, s56, {OFFS}
    s_waitcnt vmcnt(0) lgkmcnt(0)
    L2_sn:
    s_cmp_ge_u32 s40, s18
    s_cbranch_scc1 L2_epi
    s_add_u32 s41, s17, s40
    s_and_b32 s44, s41, 63
    s_lshl_b32 s45, s44, 3
    s_lshl_b32 s44, s44, 4
    v_mov_b32 v19, s45
    ds_read_b64 v[20:21], v19 offset:{PD}
    s_lshl_b32 s45, s40, 7
    v_add_u32 v19, s45, v12
    v_mov_b32 v22, 0
    ds_read_u16_d16_hi v22, v19 offset:{AL}
    v_lshlrev_b32 v23, 16, v20
    v_and_b32 v24, 0xffff0000, v20
    v_lshlrev_b32 v25, 16, v21
    v_mov_b32 v26, 0
    v_mov_b32 v27, 0
    v_mov_b32 v28, 0
    v_mov_b32 v29, 0
    s_mov_b32 s46, 0
    s_waitcnt lgkmcnt(0)
    L2_sc:
    s_lshl_b32 s47, s46, 10
    v_mov_b32 v19, s47
    buffer_load_dword v30, v19, s[24:27], s56 offen
    v_readfirstlane_b32 s48, v30
    s_mul_i32 s49, s46, {CHS}
    s_add_u32 s49, s49, {RECS}
    s_and_b32 s47, s48, 0xffff
    s_add_u32 s49, s49, s47
    s_lshr_b32 s48, s48, 16
    s_mov_b32 s50, 0
    L2_sb:
    s_cmp_ge_u32 s50, s48
    s_cbranch_scc1 L2_sbe
    v_lshl_add_u32 v19, v3, 3, s50
    buffer_load_dwordx2 v[30:31], v19, s[24:27], s49 offen
    v_cmp_gt_u32 s[52:53], s48, v19
    v_and_b32 v32, 0xffff, v30
    v_cmp_eq_u32 vcc, s44, v32
    s_and_b64 s[52:53], s[52:53], vcc
    L2_se:
    s_cmp_eq_u64 s[52:53], 0
    s_cbranch_scc1 L2_see
    s_ff1_i32_b64 s51, s[52:53]
    s_bitset0_b64 s[52:53], s51
    v_readlane_b32 s54, v30, s51
    v_readlane_b32 s55, v31, s51
    s_and_b32 s54, s54, 0xffff0000
    s_lshl_b32 s57, s55, 1
    s_add_u32 s57, s57, {P8}
    s_lshl_b32 s55, s55, 5
    v_mov_b32 v33, s57
    v_add_u32 v36, s55, v14
    buffer_load_dwordx2 v[34:35], v33, s[24:27], 0 offen
    buffer_load_dword v36, v36, s[24:27], 0 offen
    v_dot2_f32_bf16 v37, v34, s60, v23
    v_dot2_f32_bf16 v38, v34, s61, v24
    v_dot2_f32_bf16 v39, v35, s60, v25
    v_cvt_pk_bf16_f32 v40, 1.0, v37
    v_mul_f32 v37, v37, v37
    v_cvt_pk_bf16_f32 v41, v38, v39
    v_dot2_f32_bf16 v37, v41, v41, v37
    v_cvt_pk_bf16_f32 v37, 0, v37
    v_lshlrev_b32 v42, 16, v36
    v_cndmask_b32 v36, v36, v42, s[42:43]
    v_add_f32 v36, v36, v22
    v_mul_f32 v36, v36, v13
    v_fmac_f32 v36, v37, v16
    v_fmac_f32 v36, s54, v17
    v_exp_f32 v42, -v36
    v_add_f32 v42, 1.0, v42
    v_rcp_f32 v42, v42
    v_mul_f32 v36, v36, v42
    v_and_b32 v40, 0xffff0000, v40
    v_lshlrev_b32 v42, 16, v41
    v_and_b32 v41, 0xffff0000, v41
    v_add_f32 v26, v26, v36
    v_fmac_f32 v27, v36, v40
    v_fmac_f32 v28, v36, v42
    v_fmac_f32 v29, v36, v41
    s_branch L2_se
    L2_see:
    s_add_u32 s50, s50, 512
    s_branch L2_sb
    L2_sbe:
    s_add_u32 s46, s46, 1
    s_cmp_lt_u32 s46, 256
    s_cbranch_scc1 L2_sc
    s_nop 4
    v_mul_f32 v27, v27, v18
    v_mul_f32 v28, v28, v18
    v_mul_f32 v29, v29, v18''')
    xyz_reduce(a,'v27','v28','v29')
    a(f'''v_mov_b32 v28, v27
    v_permlane32_swap_b32 v27, v28
    v_add_f32 v27, v27, v28
    s_mul_i32 s45, s40, {MSTR}
    s_add_u32 s45, s45, {MA}
    v_add_u32 v19, s45, v15
    ds_write_b32 v19, v26
    s_lshl_b32 s45, s40, 7
    v_add_u32 v19, s45, v14
    ds_write_b32 v19, v27 offset:{XZ}
    s_lshl_b32 s45, s40, 2
    v_mov_b32 v19, s45
    v_mov_b32 v20, 1
    ds_write_b32 v19, v20 offset:{MASK}
    s_add_u32 s40, s40, 16
    s_waitcnt lgkmcnt(0)
    s_branch L2_sn
    L2_end:
    s_endpgm''')
    return a

HEAD=open('standalone__cheap_equivariant_egnn__graph.s.ref').read().split('; Override launch')[0]
def kd(name, vg):
    return f'''.amdhsa_kernel {name}
  .amdhsa_next_free_vgpr {vg}
  .amdhsa_next_free_sgpr 96
  .amdhsa_accum_offset {vg}
  .amdhsa_group_segment_fixed_size 0
  .amdhsa_kernarg_size 88
  .amdhsa_user_sgpr_count 2
  .amdhsa_user_sgpr_kernarg_segment_ptr 1
  .amdhsa_system_sgpr_workgroup_id_x 1
  .amdhsa_float_denorm_mode_32 3
.end_amdhsa_kernel
'''
def build():
    N1='egnn_bin_kernel'; N2='standalone__cheap_equivariant_egnn__graph_kernel'
    a1=k1(); a2=k2()
    s=HEAD
    s+=f'; @launch kernel={N1} grid=(256,1,1) block=(1024,1,1) lds=90112\n'
    s+=f'; @launch kernel={N2} grid=(256,1,1) block=(1024,1,1) lds=163840\n'
    ks=[(N1,a1),(N2,a2)]
    if 'ka' in OPT:
        s+='; @launch kernel=diag_kernel grid=(1,1,1) block=(64,1,1) lds=0\n'; ks.append(('diag_kernel',k3()))
    s+='.amdgcn_target "amdgcn-amd-amdhsa--gfx950"\n.text\n'
    for n,a in ks:
        s+=f'.globl {n}\n.p2align 8\n.type {n},@function\n{n}:\n'+a.text()
    s+='.section .rodata,"a"\n.p2align 6\n'+kd(N1,96)+'.p2align 6\n'+kd(N2,128)
    if 'ka' in OPT: s+='.p2align 6\n'+kd('diag_kernel',32)
    return s
if __name__=='__main__':
    out=sys.argv[1]
    for x in sys.argv[2:]:
        k,v=x.split('='); OPT[k]=int(v)
    open(out,'w').write(build())
```

```python
import sys, struct
from asmgen import *
def V(b,n=1): return f'v{b}' if n==1 else f'v[{b}:{b+n-1}]'
def fbits(x): return struct.unpack('<I',struct.pack('<f',x))[0]
MF='v_mfma_f32_32x32x16_bf16'; MF16='v_mfma_f32_16x16x32_bf16'
LOG2E=1.4426950408889634; LN2=0.6931471805599453
KS=68
BT=0x000000; AT=0x140000; P8=0x280000; WF=0x298000; OFFS=0x2A0000; RECS=0x300000; CHS=20480
OPT=dict(stamp=0)

def scan64(a, v):
    for sh in (1,2,4,8): a(f'v_add_u32_dpp {v}, {v}, {v} row_shr:{sh} row_mask:0xf bank_mask:0xf')
    a(f'v_add_u32_dpp {v}, {v}, {v} row_bcast:15 row_mask:0xa bank_mask:0xf')
    a(f'v_add_u32_dpp {v}, {v}, {v} row_bcast:31 row_mask:0xc bank_mask:0xf')

def stamp(a, k, base=70):
    if OPT['stamp']:
        a(f's_memrealtime s[{base+2*k}:{base+2*k+1}]')
STB=0x1000000
def stamp_out(a, n, kidx, wave, base=70, tag=''):
    if OPT['stamp']:
        a(f's_load_dwordx2 s[68:69], s[0:1], 80\ns_waitcnt lgkmcnt(0)')
        a(f's_cmp_eq_u32 s3, {wave}\ns_cbranch_scc0 L_nost{tag}')
        a(f's_lshl_b32 s3, s2, 6\ns_add_u32 s3, s3, {STB+kidx*65536}\ns_mov_b64 exec, -1\nv_mov_b32 v1, s3')
        for k in range(n):
            a(f'v_mov_b32 v2, s{base+2*k}\nglobal_store_dword v1, v2, s[68:69] offset:{4*k}')
        a(f's_waitcnt vmcnt(0)\nL_nost{tag}:')
def k3():
    ka,ia,kb,ib,mult=OPT['ka'],OPT['ia'],OPT['kb'],OPT['ib'],OPT.get('mult',20)
    a=Asm()
    a(f'''s_cmp_ge_u32 s2, 1
    s_cbranch_scc1 L3_end
    s_load_dwordx2 s[4:5], s[0:1], 80
    s_memrealtime s[8:9]
    v_lshlrev_b32 v1, 6, v0
    v_add_u32 v2, {STB+ka*65536+4*ia}, v1
    v_add_u32 v3, {STB+kb*65536+4*ib}, v1
    s_waitcnt lgkmcnt(0)''')
    for i in range(4):
        a(f'global_load_dword v{10+i}, v2, s[4:5]\nglobal_load_dword v{20+i}, v3, s[4:5]\nv_add_u32 v2, 4096, v2\nv_add_u32 v3, 4096, v3')
    for i in range(4): a(f'v_sub_u32 v{10+i}, s8, v{10+i}\nv_sub_u32 v{20+i}, s8, v{20+i}')
    opa='max' if not OPT.get('amax') else 'min'; opb='min' if not OPT.get('bmin') else 'max'
    for i in range(1,4): a(f'v_{opa}_u32 v10, v10, v{10+i}\nv_{opb}_u32 v20, v20, v{20+i}')
    a('v_readlane_b32 s10, v10, 0\nv_readlane_b32 s11, v20, 0')
    for l in range(1,64):
        a(f'v_readlane_b32 s12, v10, {l}\nv_readlane_b32 s13, v20, {l}\ns_{opa}_u32 s10, s10, s12\ns_{opb}_u32 s11, s11, s13')
    a(f'''s_sub_u32 s10, s10, s11
    s_max_i32 s10, s10, 0
    s_min_u32 s10, s10, 10000
    s_mul_i32 s10, s10, {mult}
    L3_spin:
    s_memrealtime s[12:13]
    s_waitcnt lgkmcnt(0)
    s_sub_u32 s12, s12, s8
    s_cmp_lt_u32 s12, s10
    s_cbranch_scc1 L3_spin
    L3_end:
    s_endpgm''')
    return a

def k1():
    a=Asm()
    HIST=0; OFF=1024; SORT=2048; WL=22528; HL=38912; WHL=47104
    a('''s_cmp_ge_u32 s2, 256
    s_cbranch_scc1 L1_end''')
    stamp(a,0)
    a('''s_load_dwordx16 s[4:19], s[0:1], 0
    s_load_dwordx2 s[20:21], s[0:1], 80
    v_lshrrev_b32 v1, 6, v0
    v_readfirstlane_b32 s3, v1
    v_and_b32 v3, 63, v0
    s_cmp_ge_u32 s3, 10
    s_cbranch_scc1 L1_help''')
    st=a.state()
    a(f'''v_lshlrev_b32 v1, 4, v0
    v_lshlrev_b32 v2, 3, v0
    s_mul_i32 s25, s2, 10000
    s_mul_i32 s26, s2, 5000
    v_cmp_gt_u32 vcc, 625, v0
    s_mov_b64 s[30:31], vcc
    s_mov_b64 exec, vcc
    s_waitcnt lgkmcnt(0)
    s_add_u32 s12, s12, s25
    s_addc_u32 s13, s13, 0
    s_add_u32 s10, s10, s25
    s_addc_u32 s11, s11, 0
    s_add_u32 s8, s8, s26
    s_addc_u32 s9, s9, 0
    global_load_dwordx4 v[4:7], v1, s[12:13]
    global_load_dwordx4 v[8:11], v1, s[10:11]
    global_load_dwordx2 v[12:13], v2, s[8:9]
    s_mov_b32 s27, 214749
    s_mov_b32 s28, 0x3f0
    v_mov_b32 v22, 8
    s_mul_i32 s25, s2, {CHS}
    s_add_u32 s25, s25, {RECS}
    s_add_u32 s32, s20, s25
    s_addc_u32 s33, s21, 0
    s_add_u32 s34, s32, 10000
    s_addc_u32 s35, s33, 0
    s_lshl_b32 s25, s2, 10
    s_add_u32 s25, s25, {OFFS}
    s_add_u32 s36, s20, s25
    s_addc_u32 s37, s21, 0
    s_barrier''')
    stamp(a,1)
    for i in range(4): a(f'v_mul_u32_u24 v{14+i}, s27, v{4+i}')
    for i in range(4): a(f'v_lshrrev_b32 v{14+i}, 21, v{14+i}')
    for i in range(4): a(f'v_and_b32 v{14+i}, 0x3fc, v{14+i}')
    for i in range(4): a(f'ds_add_rtn_u32 v{18+i}, v{14+i}, v22 offset:{HIST}')
    for i in range(4): a(f'v_lshlrev_b32 v{4+i}, 4, v{4+i}')
    for i in range(4): a(f'v_lshlrev_b32 v{25+2*i}, 2, v{8+i}')
    for i in range(4):
        e=12+(i>>1)
        a(f'v_and_b32 v{24+2*i}, 0xffff0000, v{e}' if i&1 else f'v_lshlrev_b32 v{24+2*i}, 16, v{e}')
    for i in range(4): a(f'v_and_or_b32 v{24+2*i}, v{4+i}, s28, v{24+2*i}')
    a(f'''s_mov_b64 exec, -1
    v_lshlrev_b32 v23, 4, v3
    s_waitcnt lgkmcnt(0)
    s_barrier''')
    stamp(a,2)
    a(f'''ds_read_b128 v[4:7], v23 offset:{HIST}
    v_add3_u32 v12, v4, v5, v6
    v_add_u32 v12, v12, v7
    v_mov_b32 v13, v12''')
    scan64(a,'v13')
    a(f'''v_sub_u32 v8, v13, v12
    v_add_u32 v9, v8, v4
    v_add_u32 v10, v9, v5
    v_add_u32 v11, v10, v6
    ds_write_b128 v23, v[8:11] offset:{OFF}
    s_mov_b64 exec, s[30:31]''')
    for i in range(4): a(f'ds_read_b32 v{14+i}, v{14+i} offset:{OFF}')
    a('s_cmp_lg_u32 s3, 0\ns_cbranch_scc1 L1_notab'); a.cond_begin()
    for i in range(4): a(f'v_lshl_or_b32 v{32+i}, v{4+i}, 16, v{8+i}')
    a('global_store_dwordx4 v23, v[32:35], s[36:37]')
    a.cond_end('L1_notab')
    for i in range(4):
        a(f'v_add_u32 v{14+i}, v{14+i}, v{18+i}')
        a(f'ds_write_b64 v{14+i}, v[{24+2*i}:{25+2*i}] offset:{SORT}')
    a(f'''s_waitcnt lgkmcnt(0)
    s_barrier''')
    stamp(a,3)
    a(f'''ds_read_b128 v[4:7], v1 offset:{SORT}
    ds_read_b128 v[8:11], v1 offset:{SORT+10000}
    global_store_dwordx4 v1, v[4:7], s[32:33]
    global_store_dwordx4 v1, v[8:11], s[34:35]''')
    if OPT['stamp']:
        stamp(a,4); a('s_waitcnt vmcnt(0)'); stamp(a,5); stamp_out(a,6,0,0,tag='1')
    a('s_endpgm')
    a.set_state(st)
    a(f'''L1_help:
    s_mul_i32 s23, s2, 625
    s_add_u32 s24, s23, 640
    s_add_u32 s23, s23, 15
    s_lshr_b32 s23, s23, 4
    s_lshr_b32 s24, s24, 4
    s_sub_u32 s24, s24, s23
    v_lshlrev_b32 v1, 4, v3
    s_cmp_eq_u32 s3, 14
    s_cbranch_scc1 L1_w14
    s_cmp_eq_u32 s3, 15
    s_cbranch_scc1 L1_w15''')
    st=a.state()
    a(f'''s_sub_u32 s25, s3, 10
    s_lshl_b32 s26, s25, 12
    s_add_u32 s27, s26, {WL}
    s_mov_b32 m0, s27
    s_waitcnt lgkmcnt(0)
    s_add_u32 s14, s14, s26
    s_addc_u32 s15, s15, 0''')
    for i in range(4): a(f'global_load_lds_dwordx4 v1, s[14:15] offset:{1024*i}')
    a(f'''s_and_b32 s28, s25, 1
    s_lshr_b32 s29, s25, 1
    v_lshrrev_b32 v4, 5, v3
    v_bfe_u32 v5, v3, 2, 2
    v_lshl_add_u32 v5, v4, 3, v5
    v_lshlrev_b32 v5, 7, v5
    v_and_b32 v6, 3, v3
    v_lshl_add_u32 v5, v6, 3, v5
    v_and_b32 v6, 16, v3
    v_lshl_add_u32 v5, v6, 1, v5
    s_lshl_b32 s26, s29, 13
    v_add_u32 v5, s26, v5
    v_and_b32 v6, 31, v3
    v_and_b32 v7, 7, v3
    v_xor_b32 v7, v7, v4
    v_lshlrev_b32 v7, 4, v7
    v_lshl_add_u32 v7, v6, 7, v7
    s_lshl_b32 s26, s28, 12
    v_add_u32 v8, s26, v7
    v_xor_b32 v9, 32, v8
    v_xor_b32 v10, 64, v8
    v_xor_b32 v11, 96, v8
    s_lshl_b32 s26, s28, 5
    s_add_u32 s30, s23, s26
    s_sub_u32 s31, s24, s26
    s_lshl_b32 s30, s30, 7
    s_cmp_eq_u32 s29, 0
    s_cselect_b32 s26, {AT}, {BT}
    s_add_u32 s30, s30, s26
    s_add_u32 s40, s20, s30
    s_addc_u32 s41, s21, 0
    s_and_b32 s41, s41, 0xffff
    s_lshl_b32 s42, s31, 7
    s_mov_b32 s43, 0x20000
    s_mov_b32 s44, {hex((127-KS)<<23)}
    s_mov_b32 s45, {hex(fbits(LOG2E))}
    s_mov_b32 s46, 0x7fff0000
    s_mov_b32 s47, 0x80000000
    s_waitcnt vmcnt(0)
    s_barrier''')
    H=12; W=28; D=60
    for kb in range(4): a(f'ds_read_b128 {V(H+4*kb,4)}, v{8+kb} offset:{HL}')
    for kb in range(4):
        for t in range(2):
            for u in range(2):
                a(f'ds_read_b64_tr_b16 {V(W+8*kb+4*t+2*u,2)}, v5 offset:{WL+kb*2048+u*512+t*64}')
    for kb in range(4):
        for t in range(2):
            a(f'{MF} {V(D+16*t,16)}, {V(H+4*kb,4)}, {V(W+8*kb+4*t,4)}, {V(D+16*t,16) if kb else 0}')
    a('''s_barrier
    s_cmp_eq_u32 s29, 0
    s_cbranch_scc1 L1_apack''')
    st2=a.state()
    a('v_lshlrev_b32 v2, 2, v6\nv_lshl_add_u32 v2, v4, 9, v2')
    for j in range(4):
        rs=range(4*j,4*j+4)
        for r in rs: a(f'v_mul_f32 v{D+r}, s44, v{D+r}')
        for r in rs: a(f'v_mul_f32 v{D+16+r}, s45, v{D+16+r}')
        for r in rs: a(f'v_cvt_pk_bf16_f32 v{D+r}, v{D+r}, 0')
        for r in rs: a(f'v_and_b32 v{H+r}, 0x7fffffff, v{D+16+r}')
        for r in rs: a(f'v_add_u32 v{H+r}, 0x8000, v{H+r}')
        for r in rs: a(f'v_sub_u32 v{H+r}, v{H+r}, v{D+r} clamp')
        for r in rs: a(f'v_and_or_b32 v{D+r}, v{D+16+r}, s47, v{D+r}')
        for r in rs: a(f'v_and_or_b32 v{D+r}, v{H+r}, s46, v{D+r}')
        for r in rs: a(f'buffer_store_dword v{D+r}, v2, s[40:43], 0 offen offset:{(8*j+(r&3))*128}')
        if j==0: a('s_cmp_eq_u32 s28, 1\ns_cbranch_scc1 L1_gend')
    a('L1_gend:\ns_barrier\ns_endpgm')
    a.set_state(st2)
    a('L1_apack:\nv_lshlrev_b32 v2, 1, v6\nv_lshl_add_u32 v2, v4, 9, v2')
    for j in range(4):
        rs=range(4*j,4*j+4)
        for r in rs: a(f'v_mul_f32 v{D+r}, s44, v{D+r}')
        for r in rs: a(f'v_mul_f32 v{D+16+r}, s45, v{D+16+r}')
        for r in rs: a(f'v_cvt_pk_bf16_f32 v{D+r}, v{D+r}, v{D+16+r}')
        for r in rs:
            a(f'buffer_store_short v{D+r}, v2, s[40:43], 0 offen offset:{(8*j+(r&3))*128}')
            a(f'buffer_store_short_d16_hi v{D+r}, v2, s[40:43], 0 offen offset:{(8*j+(r&3))*128+64}')
        if j==0: a('s_cmp_eq_u32 s28, 1\ns_cbranch_scc1 L1_gend')
    a('s_barrier\ns_endpgm')
    a.set_state(st)
    a(f'''L1_w14:
    v_mov_b32 v8, 0
    v_mov_b32 v9, 0
    v_mov_b32 v10, 0
    v_mov_b32 v11, 0
    ds_write_b128 v1, v[8:11] offset:{HIST}
    v_lshrrev_b32 v4, 3, v3
    v_and_b32 v5, 7, v3
    v_xor_b32 v5, v5, v4
    v_lshlrev_b32 v5, 4, v5
    v_lshl_add_u32 v5, v4, 7, v5
    v_add_u32 v6, s23, v3
    v_mul_u32_u24 v7, 6, v6
    v_lshlrev_b32 v6, 3, v3
    s_lshl_b32 s25, s23, 7
    s_mov_b32 m0, {HL}
    s_waitcnt lgkmcnt(0)
    s_add_u32 s40, s4, s25
    s_addc_u32 s41, s5, 0
    s_and_b32 s41, s41, 0xffff
    s_sub_u32 s42, 1280000, s25
    s_mov_b32 s43, 0x20000
    s_mov_b32 s44, s6
    s_and_b32 s45, s7, 0xffff
    s_mov_b32 s46, 60000
    s_mov_b32 s47, 0x20000''')
    for i in range(4): a(f'buffer_load_dwordx4 v5, s[40:43], 0 offen offset:{1024*i} lds')
    a(f'''s_mov_b32 m0, {HL+4096}
    s_movk_i32 s25, 0x1000
    buffer_load_dwordx4 v5, s[40:43], s25 offen lds
    buffer_load_ushort v8, v7, s[44:47], 0 offen
    buffer_load_ushort v10, v7, s[44:47], 0 offen offset:2
    buffer_load_ushort v9, v7, s[44:47], 0 offen offset:4
    s_lshl_b32 s25, s23, 3
    s_add_u32 s25, s25, {P8}
    s_add_u32 s48, s20, s25
    s_addc_u32 s49, s21, 0
    s_and_b32 s49, s49, 0xffff
    s_lshl_b32 s50, s24, 3
    s_mov_b32 s51, 0x20000
    s_waitcnt vmcnt(3)
    s_barrier
    v_lshl_or_b32 v8, v10, 16, v8
    buffer_store_dwordx2 v[8:9], v6, s[48:51], 0 offen
    s_barrier
    s_barrier
    s_endpgm''')
    a.set_state(st)
    a(f'''L1_w15:
    s_cmp_ge_u32 s2, 2
    s_cbranch_scc1 L1_end
    s_lshl_b32 s25, s2, 13
    s_mov_b32 m0, {WHL}
    s_waitcnt lgkmcnt(0)
    s_add_u32 s18, s18, s25
    s_addc_u32 s19, s19, 0''')
    for i in range(4): a(f'global_load_lds_dwordx4 v1, s[18:19] offset:{1024*i}')
    a(f's_add_u32 s18, s18, 4096\ns_addc_u32 s19, s19, 0\ns_mov_b32 m0, {WHL+4096}')
    for i in range(4): a(f'global_load_lds_dwordx4 v1, s[18:19] offset:{1024*i}')
    a(f'''v_lshrrev_b32 v4, 4, v3
    v_bfe_u32 v5, v3, 2, 2
    v_lshl_add_u32 v5, v4, 3, v5
    v_lshlrev_b32 v5, 7, v5
    v_and_b32 v6, 3, v3
    v_lshl_add_u32 v5, v6, 3, v5
    s_lshl_b32 s25, s2, 11
    s_add_u32 s25, s25, {WF}
    s_add_u32 s26, s20, s25
    s_addc_u32 s27, s21, 0
    s_barrier
    s_waitcnt vmcnt(0)''')
    for nt in range(4):
        for kb in range(2):
            for u in range(2):
                a(f'ds_read_b64_tr_b16 {V(8+8*nt+4*kb+2*u,2)}, v5 offset:{WHL+kb*4096+u*512+nt*32}')
    a('s_barrier')
    for nt in range(4):
        for kb in range(2): a(f'global_store_dwordx4 v1, {V(8+8*nt+4*kb,4)}, s[26:27] offset:{kb*1024}')
        a('v_add_u32 v1, 4096, v1')
    a('s_barrier\nL1_end:\ns_endpgm')
    return a

OH=0; HIST=1024; MASK=1280; FLAG=1536; PD=1600; CR=2112; WX=2624; AL=3072; XZ=9216
CAP=3232; VB=16384; REC=VB+CAP*4; NEGROWS=134-KS; LUT=163840-65536-NEGROWS*256
POSTOP=255-KS
XLO=NEGROWS-32
MA=LUT+(192-XLO-1+32)*256; MSTR=272
assert REC+CAP*16<=LUT and MA+56*MSTR<=LUT+255*256 and 192-XLO-1+32>=POSTOP and 163840-LUT>=81920
class R:
    FK=4; XAD=5; vV=6; vR=7; vQ=8; vK=9
    ACC=[12,28]; L=[44,60]; YL=76; T=92; SA=108; XA=116; XB=[120,124]
sLUT='s36'; sOFF='s37'; sCNT='s38'; SRD='s[20:23]'

def main_loop(a):
    def mad(r): return f'v_mad_u32_u16 {V(R.YL+r)}, {V(R.YL+r)}, 2, {sLUT} op_sel:[1,0,0,0]'
    def rd(r): return f'ds_read_u16{"_d16_hi" if r&4 else ""} {V(R.YL+r)}, {V(R.YL+r)}'
    def sh(b,r): return f'v_lshlrev_b32 {V(R.YL+r)}, 16, {V(R.L[b]+r)}'
    def ex(b,r): return f'v_exp_f32 {V(R.T+r)}, -{V(R.L[b]+r)}'
    def rc(r): return f'v_rcp_f32 {V(R.T+r)}, {V(R.T+r)}'
    def pa(i): return f'v_pk_add_f32 {V(R.T+2*i,2)}, {V(R.T+2*i,2)}, 1.0 op_sel_hi:[1,0]'
    def pm(b,i): return f'v_pk_mul_f32 {V(R.T+2*i,2)}, {V(R.T+2*i,2)}, {V(R.L[b]+2*i,2)}'
    def cv(kb,i): return f'v_cvt_pk_bf16_f32 {V(R.T+8*kb+i)}, {V(R.T+8*kb+i)}, {V(R.T+8*kb+4+i)}'
    def g2(acc,kb,M): return f'{MF} {V(R.ACC[acc],16)}, {V(R.SA+4*kb,4)}, {V(M,4)}, {V(R.ACC[acc],16)}'
    ylx=f'{MF} {V(R.YL,16)}, {V(R.XA,4)}, {V(R.XB[0],4)}, {V(R.YL,16)}'
    def hi(b): return f'{MF} {V(R.L[b],16)}, {V(R.XA,4)}, {V(R.XB[1],4)}, {V(R.L[b],16)}'
    def ta(u): return f'v_add_u32_dpp {V(R.SA+2*u)}, {V(R.FK)}, {V(R.vK)} quad_perm:[{u},{u},{u},{u}] row_mask:0xf bank_mask:0xf bound_ctrl:1'
    def tr(u,off): return f'ds_read_b64_tr_b16 {V(R.SA+2*u,2)}, {V(R.SA+2*u)} offset:{off+(128*(u>>1)+32*(u&1))}'
    def it(a,b,last):
        n=1-b; o=512*b
        ld=(lambda b,r: '') if last else P.ld
        fe0,fe1,xa,fq=('','','','') if last else (P.fe0,P.fe1,P.xa,P.fq(o+512))
        S=['s_waitcnt vmcnt(0)']
        S+=[sh(b,r) for r in range(16)]+[ta(0),ta(1),hi(b), tr(0,o), tr(1,o), ld(n,0), ld(n,1), ta(2), ta(3), fe0, ylx, tr(2,o), tr(3,o), fe1, ld(n,2), ld(n,3)]
        S+=[ex(b,r) for r in range(0,4)]
        S+=[mad(r) for r in range(0,4)]+[rd(r) for r in range(0,4)]+[ld(n,4),ld(n,5)]
        S+=[ex(b,r) for r in range(4,8)]
        S+=[mad(r) for r in range(4,8)]+[rd(r) for r in range(4,8)]+[ld(n,6),ld(n,7)]
        S+=[ex(b,r) for r in range(8,16)]
        S+=[mad(r) for r in range(8,12)]+[rd(r) for r in range(8,12)]+[ld(n,8),ld(n,9)]
        S+=[pa(i) for i in range(8)]
        S+=[mad(r) for r in range(12,16)]+[rd(r) for r in range(12,16)]+[xa, fq, ld(n,10),ld(n,11)]
        S+=[rc(r) for r in range(0,4)]
        S+=[g2(0,0,R.YL), ld(n,12)]+[rc(r) for r in range(4,7)]
        S+=[g2(0,0,R.YL+4), ld(n,13)]+[rc(r) for r in range(7,10)]
        S+=[g2(0,1,R.YL+8), ld(n,14)]+[rc(r) for r in range(10,13)]
        S+=[g2(0,1,R.YL+12), ld(n,15)]+[rc(r) for r in range(13,16)]
        S+=[pm(b,i) for i in range(8)]
        S+=[cv(0,i) for i in range(4)]+[cv(1,i) for i in range(4)]
        if b==1 and not last:
            S+=[f'v_add_u32 {V(R.vQ)}, 1024, {V(R.vQ)}', f'v_add_u32 {V(R.vK)}, 1024, {V(R.vK)}']
        S+=[g2(1,0,R.T)]+([] if last else [P.vr(b,j,256+128*b) for j in range(4)])+[g2(1,1,R.T+8)]
        if b==1 and not last: S+=[f'v_add_u32 {V(R.vV)}, 256, {V(R.vV)}']
        for x in S: a(x)
    cap={}
    def head(a,k):
        a(f's_cmp_gt_u32 {sCNT}, 3\ns_cbranch_scc1 L_go{k}\ns_setprio 2\ns_cmp_eq_u32 {sCNT}, 3\ns_cbranch_scc1 L_go{k}\ns_setprio 1\ns_cmp_eq_u32 {sCNT}, 1\ns_cbranch_scc1 L_last{k}')
        a.raw(f'L_go{k}:')
    def body(a):
        for b in range(2):
            cap[b]=a.state()
            st=a.state(); head(a,b); a.hists+=[h+[I('s_nop 0'),I('s_nop 0')] for h in st[2]]
            it(a,b,False)
            a(f's_sub_u32 {sCNT}, {sCNT}, 1')
        a('s_branch L_mloop')
    a('s_setprio 3')
    a.loop('L_mloop', body)
    ends=[]
    for b in range(2):
        a.set_state(cap[b]); a(f'L_last{b}:\ns_setprio 0')
        it(a,b,True)
        if b==0: a('s_branch L_mdone')
        ends.append(a.state())
    a.hists+=ends[0][2]
    a('L_mdone:\ns_waitcnt lgkmcnt(0)')
class P:
    @staticmethod
    def vr(b,j,off): return f'ds_read_b128 {V(R.L[b]+4*j,4)}, {V(R.vV)} offset:{off+16*j}'
    @staticmethod
    def ld(b,r): return (f'v_min_u32 {V(R.L[b]+r)}, 39996, {V(R.L[b]+r)}\n' if OPT.get('safe') else '')+f'buffer_load_dword {V(R.L[b]+r)}, {V(R.L[b]+r)}, {SRD}, 0 offen'+(' sc1' if OPT.get('gsc',1) else '')
    fe0=f'v_add_u32 {V(R.XAD)}, {sOFF}, {V(R.vR)}'
    fe1=f's_mov_b32 exec_hi, 0\nds_read_u16 {V(R.XAD)}, {V(R.XAD)} offset:8\ns_mov_b32 exec_hi, -1\ns_add_u32 {sOFF}, {sOFF}, 512'
    xa=f'ds_read_b128 {V(R.XA,4)}, {V(R.XAD)}'
    @staticmethod
    def fq(off): return f'ds_read_u16_d16_hi {V(R.FK)}, {V(R.vQ)} offset:{off+8}'

def xyz_reduce(a, x, y, z):
    a(f'v_add_f32_dpp {x}, {x}, {x} row_ror:8 row_mask:0xf bank_mask:0xf')
    a(f'v_add_f32_dpp {z}, {z}, {z} row_ror:8 row_mask:0xf bank_mask:0xf')
    a(f'v_add_f32_dpp {x}, {y}, {y} row_ror:8 row_mask:0xf bank_mask:0xc')
    a(f'v_add_f32_dpp {x}, {x}, {x} row_shl:4 row_mask:0xf bank_mask:0x5')
    a(f'v_add_f32_dpp {x}, {z}, {z} row_shr:4 row_mask:0xf bank_mask:0x2')

def k2():
    a=Asm()
    RR=[12+6*i for i in range(4)]
    RK=36; PS=44; PDr=60; TM=76
    E=R.T; BS=R.T+4; LA=R.T+8; LD=R.T+11; EA=R.T+14
    vO=108; vKey=109; vP=110; vC=112; vI=113; vFour=114; vCW=116
    a('''s_cmp_ge_u32 s2, 256
    s_cbranch_scc1 L2_end''')
    stamp(a,0)
    a(f'''s_load_dwordx2 s[14:15], s[0:1], 80
    s_load_dwordx2 s[4:5], s[0:1], 0
    s_load_dwordx4 s[8:11], s[0:1], 40
    s_load_dwordx2 s[12:13], s[0:1], 64
    v_lshrrev_b32 v1, 6, v0
    v_readfirstlane_b32 s3, v1
    v_and_b32 v3, 63, v0
    s_and_b32 s16, s2, 7
    s_lshl_b32 s16, s16, 5
    s_lshr_b32 s19, s2, 3
    s_add_u32 s16, s16, s19
    s_mul_i32 s17, s16, 625
    s_add_u32 s18, s17, 640
    s_add_u32 s17, s17, 15
    s_lshr_b32 s17, s17, 4
    s_lshr_b32 s18, s18, 4
    s_sub_u32 s18, s18, s17
    v_lshrrev_b32 v10, 2, v0
    v_lshlrev_b32 v1, 10, v10
    v_lshlrev_b32 v2, 4, v3
    s_lshl_b32 s56, s16, 2
    s_add_u32 s56, s56, {OFFS}
    s_mul_i32 s57, s3, 5120
    s_add_u32 s58, s57, {LUT}
    s_add_u32 s57, s57, {P8}
    s_mov_b32 m0, s58
    s_mov_b32 s26, {RECS+256*CHS+4096}
    s_mov_b32 s27, 0x20000
    s_waitcnt lgkmcnt(0)
    s_mov_b32 s24, s14
    s_and_b32 s25, s15, 0xffff
    s_cmp_lg_u32 s3, 8
    s_cbranch_scc1 L2_nocw''')
    a.cond_begin()
    a(f'''v_lshlrev_b32 v11, 1, v3
    s_add_u32 s8, s8, {128*128}
    s_addc_u32 s9, s9, 0
    global_load_short_d16_hi {V(vCW)}, v11, s[8:9]
    global_load_short_d16_hi {V(vCW+1)}, v11, s[8:9] offset:128
    global_load_short_d16_hi {V(vCW+2)}, v11, s[10:11]''')
    a.cond_end('L2_nocw')
    a(f'buffer_load_dword {V(vO)}, v1, s[24:27], s56 offen')
    for i in range(4): a(f'buffer_load_dwordx4 v2, s[24:27], s57 offen offset:{1024*i} lds')
    a(f'''s_add_u32 s58, s58, 4096
    s_add_u32 s57, s57, 4096
    s_mov_b32 m0, s58
    buffer_load_dwordx4 v2, s[24:27], s57 offen lds
    s_mov_b32 s20, s14
    s_or_b32 s21, s25, 0x80000000
    s_mov_b32 s22, 1280000
    s_mov_b32 s23, 0x00c00000
    s_lshl_b32 s59, s17, 7
    s_add_u32 s60, s59, {AT}
    s_add_u32 s28, s14, s60
    s_addc_u32 s29, s15, 0
    s_and_b32 s29, s29, 0xffff
    s_sub_u32 s30, 1280000, s59
    s_mov_b32 s31, 0x20000
    s_mov_b32 s32, s14
    s_mov_b32 s33, s25
    s_mov_b32 s34, 1280000
    s_mov_b32 s35, 0x20000
    s_mov_b32 {sLUT}, {LUT}
    s_mov_b32 {sOFF}, 0
    s_cmp_lg_u32 s3, 6
    s_cbranch_scc1 L2_nooh''')
    a.cond_begin()
    a(f'''v_and_b32 v76, 1, v3
    v_lshlrev_b32 v76, 4, v76
    v_mov_b32 v77, 0x3f80
    v_lshlrev_b32 v76, v76, v77
    v_bfe_u32 v77, v3, 1, 2''')
    for i in range(4): a(f'v_cmp_eq_u32 vcc, {i}, v77\nv_cndmask_b32 v{80+i}, 0, v76, vcc')
    a(f'''ds_write_b128 v2, v[80:83] offset:{OH}
    v_mov_b32 v84, 0
    v_mov_b32 v85, 0
    v_lshlrev_b32 v76, 3, v3
    ds_write_b64 v76, v[84:85] offset:{HIST}
    ds_write_b32 v84, v84 offset:{FLAG}''')
    a.cond_end('L2_nooh')
    D_=0x00800080
    a(f'''v_and_b32 v76, 15, v0
    v_lshlrev_b32 v77, 19, v76
    v_or_b32 v77, {hex((KS<<23)|0x8000)}, v77
    s_mov_b32 s60, {hex(fbits(LOG2E/2))}
    s_mov_b32 s61, {hex(D_)}
    s_mov_b32 s62, {hex(fbits(LOG2E))}''')
    for i in range(8): a(f'v_add_u32 v{80+i}, {hex(i<<16)}, v77')
    for i in range(8): a(f'v_mul_f32 v{80+i}, s60, v{80+i}')
    for i in range(4): a(f'v_cvt_pk_bf16_f32 v{BS+i}, v{80+2*i}, v{81+2*i}')
    a(f'''v_lshrrev_b32 v78, 4, v0
    v_lshl_add_u32 v79, v76, 4, {sLUT}''')
    B2=192-XLO-1
    assert XLO<=64 and B2>=128
    a(f'''v_cmp_gt_u32 vcc, {XLO}, v78
    v_cndmask_b32 v80, 32, 0, vcc
    v_cndmask_b32 v81, 33, 0, vcc
    v_add_u32 v80, v80, v78
    v_add_u32 v81, v81, v78
    v_lshl_add_u32 v{LA}, v80, 8, v79
    v_mul_lo_u32 v{LD}, v81, s61
    v_add_u32 v80, 96, v78
    v_add_u32 v81, 97, v78
    v_lshl_add_u32 v{LA+1}, v80, 8, v79
    v_mul_lo_u32 v{LD+1}, v81, s61
    v_cmp_gt_u32 vcc, {B2-128}, v78
    v_mov_b32 v82, {255-B2+128}
    v_mov_b32 v83, 160
    v_cndmask_b32 v80, v82, v83, vcc
    v_mov_b32 v83, 161
    v_cndmask_b32 v81, v82, v83, vcc
    v_add_u32 v80, v80, v78
    v_add_u32 v81, v81, v78
    v_lshl_add_u32 v{LA+2}, v80, 8, v79
    v_mul_lo_u32 v{LD+2}, v81, s61
    v_mov_b32 {V(vFour)}, 4
    v_add_u32 v80, s17, v3
    v_lshl_add_u32 {V(vP)}, v80, 3, {sLUT}
    v_and_b32 v80, 63, v80
    v_lshlrev_b32 {V(vKey)}, 2, v80
    s_mov_b32 s57, {CHS}
    v_and_b32 v80, 3, v0
    v_lshlrev_b32 v80, 4, v80
    v_mad_u32_u24 v81, v10, s57, v80
    s_mov_b32 s57, {RECS}''')
    stamp(a,1)
    a(f'''v_add_u32_sdwa v81, {V(vO)}, v81 dst_sel:DWORD dst_unused:UNUSED_PAD src0_sel:WORD_0 src1_sel:DWORD
    v_lshrrev_b32 {V(vO)}, 16, {V(vO)}
    v_sub_u32 v82, {V(vO)}, v80
    v_cmp_lt_i32 vcc, 128, v82
    s_mov_b64 s[48:49], vcc
    s_mov_b64 s[50:51], 0
    s_mov_b64 s[52:53], 0
    s_mov_b64 s[54:55], 0
    s_mov_b32 s63, 0
    s_cbranch_vccz L2_nr23''')
    a.cond_begin()
    a(f'''buffer_load_dwordx4 {V(RR[2]+2,4)}, v81, s[24:27], s57 offen offset:128
    buffer_load_dwordx4 {V(RR[3]+2,4)}, v81, s[24:27], s57 offen offset:192
    v_cmp_lt_i32 vcc, 136, v82
    s_mov_b64 s[50:51], vcc
    v_cmp_lt_i32 vcc, 192, v82
    s_mov_b64 s[52:53], vcc
    v_cmp_lt_i32 vcc, 200, v82
    s_mov_b64 s[54:55], vcc
    v_cmp_lt_u32 vcc, 256, {V(vO)}
    s_cmp_lg_u64 vcc, 0
    s_cselect_b32 s63, 1, 0''')
    a.cond_end('L2_nr23')
    a(f'''buffer_load_dwordx4 {V(RR[0]+2,4)}, v81, s[24:27], s57 offen
    v_cmp_lt_i32 vcc, 64, v82
    s_mov_b64 s[44:45], vcc
    v_bfrev_b32 v83, 2
    v_cndmask_b32 v83, v83, v81, vcc
    buffer_load_dwordx4 {V(RR[1]+2,4)}, v83, s[24:27], s57 offen offset:64
    s_mul_i32 s58, s3, 384
    s_add_u32 s59, s58, {AL}
    s_mov_b32 m0, s59
    s_mov_b64 exec, 0xffffff
    buffer_load_dwordx4 v2, s[28:31], s58 offen lds
    s_mov_b64 exec, 0xfffff
    s_lshl_b32 s58, s19, 4
    s_add_u32 s58, s58, s3
    s_mul_i32 s58, s58, 2560
    v_lshlrev_b32 v84, 7, v3
    buffer_load_dword v11, v84, s[32:35], s58 offen
    s_mov_b64 exec, -1
    v_cmp_lt_i32 s[40:41], 0, v82
    v_cmp_lt_i32 s[42:43], 8, v82
    v_cmp_lt_i32 vcc, 72, v82
    s_mov_b64 s[46:47], vcc''')
    stamp(a,2)
    a(f'''v_bfe_u32 v80, v0, 4, 5
    v_lshrrev_b32 v81, 9, v0
    v_lshl_add_u32 v80, v81, 8, v80
    v_add_u32 v80, {XLO}, v80
    v_lshl_add_u32 v{EA}, v80, 8, v79
    v_lshl_add_u32 v77, v80, 23, v77''')
    for h in range(2):
        for i in range(4): a(f'v_add_u32 v{80+i}, {hex((4*h+i)<<16)}, v77')
        for i in range(4): a(f'v_mul_f32 v{80+i}, s62, v{80+i}')
        for i in range(4): a(f'v_exp_f32 v{84+i}, -v{80+i}')
        for i in range(4): a(f'v_add_f32 v{84+i}, 1.0, v{84+i}')
        for i in range(4): a(f'v_rcp_f32 v{84+i}, v{84+i}')
        for i in range(4): a(f'v_mul_f32 v{80+i}, v{80+i}, v{84+i}')
        for i in range(2): a(f'v_cvt_pk_bf16_f32 v{E+2*h+i}, v{80+2*i}, v{81+2*i}')
    a('s_cmp_lg_u32 s3, 8\ns_cbranch_scc1 L2_nocr'); a.cond_begin()
    a(f'''v_cmp_gt_u32 vcc, 32, v3
    v_mov_b32 v80, s62
    v_mov_b32 v81, {hex((127-KS)<<23)}
    v_cndmask_b32 v80, v80, v81, vcc
    v_mul_f32 v81, {V(vCW)}, v80
    v_mul_f32 v82, {V(vCW+1)}, v80
    v_cvt_pk_bf16_f32 v82, v82, v81
    v_and_b32 v83, 0xffff0000, v82
    v_fma_f32 v81, {V(vCW)}, v80, -v83
    v_cvt_pk_bf16_f32 v81, v81, 0
    v_lshlrev_b32 v84, 1, v3
    v_lshlrev_b32 v85, 2, v3
    v_mul_f32 v83, {hex(fbits(LN2))}, {V(vCW+2)}
    ds_write_b16_d16_hi v84, v81 offset:{CR}
    ds_write_b16 v84, v82 offset:{CR+128}
    ds_write_b16_d16_hi v84, v82 offset:{CR+256}
    ds_write_b16 v84, v81 offset:{CR+384}
    ds_write_b32 v85, v83 offset:{WX}''')
    a.cond_end('L2_nocr')
    a('s_waitcnt vmcnt(4) lgkmcnt(0)\ns_barrier')
    stamp(a,3)
    a(f'ds_read_b64 {V(vP,2)}, {V(vP)}')
    def pre(i):
        for j in range(2):
            A=RR[i]+2+2*j; s=2*i+j
            a(f'''v_bfe_u32 v{RK+s}, v{A}, 2, 8
            v_lshl_add_u32 v{PS+2*s}, v{A+1}, 1, {sLUT}
            v_bfe_u32 v{PDr+2*s}, v{A}, 1, 9''')
        for j in range(2):
            s=2*i+j
            a(f'''s_mov_b64 exec, s[{40+2*s}:{41+2*s}]
            ds_add_rtn_u32 v{RK+s}, v{RK+s}, {V(vFour)} offset:{HIST}
            ds_read_b64 {V(PS+2*s,2)}, v{PS+2*s}''')
        a('s_mov_b64 exec, -1')
    pre(0); pre(1)
    a('s_cmp_eq_u64 s[48:49], 0\ns_cbranch_scc1 L2_np23'); a.cond_begin()
    pre(2); pre(3)
    a(f'v_mov_b32 v80, s63\nv_mov_b32 v81, 0\ns_mov_b64 exec, 1\nds_or_b32 v81, v80 offset:{FLAG}\ns_mov_b64 exec, -1')
    a.cond_end('L2_np23')
    a('s_waitcnt vmcnt(1) lgkmcnt(0)\ns_barrier')
    stamp(a,4)
    a(f'''ds_read_b32 {V(vC)}, {V(vKey)} offset:{HIST}
    v_lshlrev_b32 {V(vKey)}, 1, {V(vKey)}
    s_mov_b32 s60, 0x0000bf80
    s_mov_b32 s61, 0xbf800000
    v_mov_b32 {V(vI)}, {V(vC)}''')
    scan64(a,V(vI))
    a(f'''v_sub_u32 {V(vC)}, {V(vI)}, {V(vC)}
    v_readlane_b32 s56, {V(vI)}, 63
    v_lshl_or_b32 {V(vP+1)}, {V(vC)}, 16, {V(vP+1)}
    ds_write_b64 {V(vKey)}, {V(vP,2)} offset:{PD}''')
    for s in range(4): a(f'ds_read_b64 {V(PDr+2*s,2)}, v{PDr+2*s} offset:{PD}')
    a(f'''s_cmp_gt_u32 s56, {4*(CAP-32)}
    s_cbranch_scc1 L2_slow0
    s_add_u32 s57, s56, 124
    s_lshr_b32 s57, s57, 7
    s_lshr_b32 s58, s57, 4
    s_and_b32 s57, s57, 15
    s_mul_i32 s59, s58, s3
    s_min_u32 s63, s3, s57
    s_add_u32 s59, s59, s63
    s_cmp_lt_u32 s3, s57
    s_addc_u32 {sCNT}, s58, 0
    s_lshl_b32 s64, s59, 7
    s_lshl_b32 s65, {sCNT}, 7
    s_add_u32 s65, s65, s64
    s_min_u32 s65, s65, s56
    s_sub_u32 s65, s65, 4
    v_cmp_ge_u32 vcc, s64, {V(vI)}
    s_bcnt1_i32_b64 s66, vcc
    v_cmp_ge_u32 vcc, s65, {V(vI)}
    s_bcnt1_i32_b64 s67, vcc
    s_sub_u32 s67, s67, s66''')
    stslow=a.state()
    def post(sl):
        t=lambda k,n: TM+4*k+n
        for k,s in enumerate(sl): a(f'v_add_u32_sdwa v{RK+s}, v{PDr+2*s+1}, v{RK+s} dst_sel:DWORD dst_unused:UNUSED_PAD src0_sel:WORD_1 src1_sel:DWORD')
        for k,s in enumerate(sl): a(f'v_lshlrev_b32 v{t(k,0)}, 16, v{PDr+2*s}\nv_and_b32 v{t(k,1)}, 0xffff0000, v{PDr+2*s}\nv_lshlrev_b32 v{t(k,2)}, 16, v{PDr+2*s+1}')
        A=lambda s: RR[s>>1]+2+2*(s&1)
        for k,s in enumerate(sl): a(f's_mov_b64 exec, s[{40+2*s}:{41+2*s}]\nds_write_b32 v{RK+s}, v{A(s)+1} offset:{VB}')
        a('s_mov_b64 exec, -1')
        for k,s in enumerate(sl): a(f'v_dot2_f32_bf16 v{t(k,0)}, v{PS+2*s}, s60, v{t(k,0)}')
        for k,s in enumerate(sl): a(f'v_dot2_f32_bf16 v{t(k,1)}, v{PS+2*s}, s61, v{t(k,1)}')
        for k,s in enumerate(sl): a(f'v_dot2_f32_bf16 v{t(k,2)}, v{PS+2*s+1}, s60, v{t(k,2)}')
        for k,s in enumerate(sl): a(f'v_cvt_pk_bf16_f32 v{A(s)-2}, 1.0, v{t(k,0)}')
        for k,s in enumerate(sl): a(f'v_mul_f32 v{t(k,0)}, v{t(k,0)}, v{t(k,0)}')
        for k,s in enumerate(sl): a(f'v_cvt_pk_bf16_f32 v{A(s)-1}, v{t(k,1)}, v{t(k,2)}')
        for k,s in enumerate(sl): a(f'v_dot2_f32_bf16 v{t(k,0)}, v{A(s)-1}, v{A(s)-1}, v{t(k,0)}')
        for k,s in enumerate(sl): a(f'v_lshlrev_b32 v{RK+s}, 2, v{RK+s}')
        for k,s in enumerate(sl): a(f'v_cvt_pk_bf16_f32 v{A(s)+1}, v{t(k,0)}, v{t(k,0)}')
        for k,s in enumerate(sl): a(f's_mov_b64 exec, s[{40+2*s}:{41+2*s}]\nds_write_b128 v{RK+s}, {V(A(s)-2,4)} offset:{REC}')
        a('s_mov_b64 exec, -1')
    post([0,2]); post([1,3])
    a('s_cmp_eq_u64 s[48:49], 0\ns_cbranch_scc1 L2_nq23'); a.cond_begin()
    for s in range(4,8): a(f'ds_read_b64 {V(PDr+2*s,2)}, v{PDr+2*s} offset:{PD}')
    post([4,6]); post([5,7])
    a.cond_end('L2_nq23')
    a('s_cmp_lg_u32 s3, 15\ns_cbranch_scc1 L2_nopad'); a.cond_begin()
    a(f'''v_mov_b32 v80, 0
    v_mov_b32 v81, 0
    v_mov_b32 v82, 0
    v_mov_b32 v83, 0
    v_lshl_add_u32 v84, v3, 2, s56
    v_lshlrev_b32 v85, 2, v84
    s_mov_b32 exec_hi, 0
    ds_write_b32 v84, v80 offset:{VB}
    ds_write_b128 v85, v[80:83] offset:{REC}
    s_mov_b32 exec_hi, -1''')
    a.cond_end('L2_nopad')
    a(f's_cmp_eq_u32 {sCNT}, 0\ns_cbranch_scc1 L2_nowin'); a.cond_begin()
    a(f'''s_add_u32 s63, s17, s66
    s_cmp_gt_u32 s67, 7
    s_cselect_b32 s58, 1, 0
    s_lshl_b32 s57, 1, s3
    v_add_u32 v80, s66, v3
    v_lshlrev_b32 v80, 2, v80
    v_mov_b32 v81, s57
    v_mov_b32 v82, s58
    v_mov_b32 v83, 0
    v_cmp_ge_u32 vcc, s67, v3
    s_mov_b64 exec, vcc
    ds_or_b32 v80, v81 offset:{MASK}
    s_mov_b64 exec, 1
    ds_or_b32 v83, v82 offset:{FLAG}
    s_mov_b64 exec, -1
    v_lshrrev_b32 v76, 5, v3
    v_bfe_u32 v77, v3, 2, 2
    v_and_b32 v78, 3, v3
    v_bfe_u32 v79, v3, 4, 1
    v_lshlrev_b32 v80, 3, v78
    v_lshl_add_u32 v80, v79, 5, v80
    v_subrev_u32 v81, s63, v77
    v_add_u32 v82, 4, v81
    v_and_b32 v81, 7, v81
    v_and_b32 v82, 7, v82
    s_lshl_b32 s58, s66, 7
    s_add_u32 s58, s58, {AL}
    v_lshl_add_u32 v81, v81, 7, s58
    v_lshl_add_u32 v82, v82, 7, s58
    v_mov_b32 v83, {CR}
    v_lshl_add_u32 v84, v77, 7, v83
    v_cmp_gt_u32 vcc, 32, v3
    v_cndmask_b32 v81, v83, v81, vcc
    v_cndmask_b32 v82, v84, v82, vcc
    v_add_u32 v81, v81, v80
    v_add_u32 v82, v82, v80
    ds_read_b64_tr_b16 {V(R.XB[0],2)}, v81
    ds_read_b64_tr_b16 {V(R.XB[0]+2,2)}, v82
    ds_read_b64_tr_b16 {V(R.XB[1],2)}, v81 offset:64
    ds_read_b64_tr_b16 {V(R.XB[1]+2,2)}, v82 offset:64
    s_add_u32 s58, s64, {VB}
    v_lshl_add_u32 {V(R.vV)}, v76, 6, s58
    s_lshl_b32 s58, s64, 2
    s_add_u32 s58, s58, {REC}
    v_and_b32 v80, 1, v77
    v_bfe_u32 v81, v3, 3, 2
    v_lshl_add_u32 v82, v81, 2, v78
    v_lshl_add_u32 v82, v80, 4, v82
    v_lshl_add_u32 {V(R.vR)}, v82, 4, s58
    v_lshrrev_b32 v81, 1, v77
    v_lshl_add_u32 v81, v80, 2, v81
    v_lshl_add_u32 v81, v76, 4, v81
    v_lshl_add_u32 v81, v81, 4, s58
    v_lshrrev_b32 v82, 1, v78
    v_and_b32 v83, 1, v78
    v_lshl_add_u32 v82, v82, 2, v83
    v_lshl_add_u32 {V(R.vQ)}, v82, 5, v81
    v_lshl_add_u32 v82, v79, 2, v78
    v_subrev_u32 v82, s63, v82
    v_and_b32 v82, 7, v82
    v_add_u32 v82, s63, v82
    v_and_b32 v82, 63, v82
    v_lshlrev_b32 v82, 20, v82
    v_sub_u32 {V(R.vK)}, v81, v82''')
    a.cond_end('L2_nowin')
    a(f'v_mov_b32 v10, 0\ns_waitcnt lgkmcnt(0)\ns_barrier')
    stamp(a,5)
    a(f'ds_read_b32 v10, v10 offset:{FLAG}')
    for b in range(2):
        for j in range(4): a(P.vr(b,j,128*b))
    a(P.fe0); a(P.fe1); a(P.fq(0))
    a('v_cmp_ne_u32 vcc, 0, v10\ns_cbranch_vccnz L2_slow')
    a(f's_cmp_eq_u32 {sCNT}, 0\ns_cbranch_scc1 L2_nog'); a.cond_begin()
    for r in range(16): a(P.ld(0,r))
    a(P.xa)
    a.cond_end('L2_nog')
    a(f'ds_write_b128 v{EA}, {V(E,4)}')
    for p in range(3):
        for i in range(4): a(f'v_add_u32 v{76+4*p+i}, v{BS+i}, v{LD+p}')
        a(f'ds_write_b128 v{LA+p}, {V(76+4*p,4)}')
    for r in range(32): a(f'v_mov_b32 v{R.ACC[0]+r}, 0')
    a('s_waitcnt lgkmcnt(0)\ns_barrier')
    stamp(a,6)
    if OPT['stamp']: a('s_memtime s[92:93]')
    a(f's_cmp_eq_u32 {sCNT}, 0\ns_cbranch_scc1 L2_epi')
    main_loop(a)
    stamp(a,7)
    a(f'''v_and_b32 v76, 31, v3
    v_lshlrev_b32 v76, 2, v76
    v_add_u32 v77, {WX}, v76
    ds_read2_b32 v[78:79], v77 offset0:0 offset1:32''')
    a(f'''v_lshrrev_b32 v80, 5, v3
    v_subrev_u32 v80, s63, v80
    s_add_u32 s57, s66, s3
    s_mul_i32 s58, s57, {MSTR}
    s_add_u32 s58, s58, {MA}
    s_lshl_b32 s57, s57, 7
    s_add_u32 s57, s57, {XZ}
    v_add_u32 v81, s58, v76
    v_add_u32 v82, s57, v76
    s_movk_i32 s58, {MSTR}''')
    for j in range(4):
        A0=R.ACC[0]+4*j; A1=R.ACC[1]+4*j
        a(f'''v_add_u32 v83, {2*j}, v80
        v_and_b32 v83, 7, v83
        v_cmp_ge_u32 vcc, s67, v83
        s_cbranch_vccz L2_nf{j}''')
        a.cond_begin()
        a(f'v_mad_u32_u24 v84, v83, s58, v81\nv_lshl_add_u32 v85, v83, 7, v82')
        for q in range(1,4): a(f'v_mul_f32 v{A0+q}, v{A0+q}, v78')
        for q in range(1,4): a(f'v_fmac_f32 v{A0+q}, v{A1+q}, v79')
        xyz_reduce(a, V(A0+1), V(A0+2), V(A0+3))
        a(f'''s_mov_b64 exec, vcc
        ds_write2_b32 v84, v{A0}, v{A1} offset0:0 offset1:32
        ds_write_b32 v85, v{A0+1}
        s_mov_b64 exec, -1''')
        a.cond_end(f'L2_nf{j}')
    WFr=44; HF=60; HR=68; S=12; U=28
    a(f'''L2_epi:
    s_nop 7
    s_waitcnt vmcnt(0)
    s_cmp_ge_u32 s3, 12
    s_cbranch_scc1 L2_posw''')
    st=a.state()
    a(f'''s_and_b32 s57, s3, 3
    s_lshr_b32 s58, s3, 2
    s_lshl_b32 s59, s57, 12
    s_add_u32 s59, s59, {WF}''')
    for kb in range(4): a(f'buffer_load_dwordx4 {V(WFr+4*kb,4)}, v2, s[24:27], s59 offen offset:{1024*kb}')
    a(f'''s_lshl_b32 s59, s17, 7
    s_add_u32 s28, s4, s59
    s_addc_u32 s29, s5, 0
    s_and_b32 s29, s29, 0xffff
    s_lshl_b32 s30, s18, 7
    s_add_u32 s32, s12, s59
    s_addc_u32 s33, s13, 0
    s_and_b32 s33, s33, 0xffff
    s_mov_b32 s34, s30
    s_lshl_b32 s58, s58, 4
    v_and_b32 v76, 15, v3
    v_add_u32 v76, s58, v76
    v_lshrrev_b32 v77, 4, v3
    v_lshlrev_b32 v78, 7, v76
    v_lshl_add_u32 v79, v77, 4, v78
    v_lshl_add_u32 v78, v77, 3, v78
    s_lshl_b32 s57, s57, 5
    v_add_u32 v78, s57, v78
    buffer_load_dwordx4 {V(HF,4)}, v79, s[28:31], 0 offen
    buffer_load_dwordx4 {V(HF+4,4)}, v79, s[28:31], 0 offen offset:64
    buffer_load_dwordx2 {V(HR,2)}, v78, s[28:31], 0 offen
    v_lshlrev_b32 v80, 2, v76
    s_mov_b32 s58, {MA}
    v_lshl_add_u32 v77, v77, 5, s58
    s_movk_i32 s58, {MSTR}
    s_waitcnt lgkmcnt(0)
    s_barrier''')
    stamp(a,8)
    if OPT['stamp']: a('s_memtime s[94:95]')
    def psum(getmask, node, base, stride, reads, n, tag):
        a(f'''{getmask}
        v_ffbl_b32 v81, v80
        v_bcnt_u32_b32 v80, v80, 0
        v_add_u32 v81, v81, {node}
        v_mad_u32_u24 v81, v81, {stride}, {base}
        v_cmp_lt_u32 vcc, 0, v80
        v_bfrev_b32 v84, 2
        v_cndmask_b32 v82, v84, v81, vcc''')
        for k,o in enumerate(reads): a(f'ds_read_b128 {V(S+4*k,4)}, v82 offset:{o}')
        a(f's_mov_b32 s59, 1')
        a(f's_nop 1\nL2_ps{tag}:')
        a(f'''v_add_u32 v81, {stride}, v81
        v_cmp_lt_u32 vcc, s59, v80
        v_cndmask_b32 v82, v84, v81, vcc''')
        for k,o in enumerate(reads): a(f'ds_read_b128 {V(U+4*k,4)}, v82 offset:{o}')
        a('s_add_u32 s59, s59, 1\nv_cmp_lt_u32 vcc, s59, v80')
        for k in range(n//2): a(f'v_pk_add_f32 {V(S+2*k,2)}, {V(S+2*k,2)}, {V(U+2*k,2)}')
        a(f's_cbranch_vccnz L2_ps{tag}')
    psum(f'ds_read_b32 v80, v80 offset:{MASK}', 'v76', 'v77', 's58', [0,16,128,144], 16, 'h')
    a(f'{MF16} v[84:87], {V(WFr,4)}, {V(HF,4)}, 0')
    for k in range(8): a(f'v_cvt_pk_bf16_f32 v{S+k}, v{S+2*k}, v{S+2*k+1}')
    a(f'''{MF16} v[84:87], {V(WFr+4,4)}, {V(HF+4,4)}, v[84:87]
    {MF16} v[88:91], {V(WFr+8,4)}, {V(S,4)}, 0
    {MF16} v[88:91], {V(WFr+12,4)}, {V(S+4,4)}, v[88:91]
    v_lshlrev_b32 v92, 16, v{HR}
    v_and_b32 v93, 0xffff0000, v{HR}
    v_lshlrev_b32 v94, 16, v{HR+1}
    v_and_b32 v95, 0xffff0000, v{HR+1}
    s_mov_b32 s59, {hex(fbits(LN2))}''')
    for i in range(4): a(f'v_fma_f32 v{84+i}, v{84+i}, s62, v{88+i}')
    for i in range(4): a(f'v_exp_f32 v{88+i}, -v{84+i}')
    for i in range(4): a(f'v_mul_f32 v{84+i}, s59, v{84+i}')
    for i in range(4): a(f'v_add_f32 v{88+i}, 1.0, v{88+i}')
    for i in range(4): a(f'v_rcp_f32 v{88+i}, v{88+i}')
    for i in range(4): a(f'v_fmac_f32 v{92+i}, v{84+i}, v{88+i}')
    a(f'''v_cvt_pk_bf16_f32 v92, v92, v93
    v_cvt_pk_bf16_f32 v93, v94, v95
    buffer_store_dwordx2 v[92:93], v78, s[32:35], 0 offen''')
    if OPT['stamp']:
        stamp(a,9); a('s_waitcnt vmcnt(0)'); stamp(a,10); stamp_out(a,13,1,OPT.get('wave',0),tag='2')
    a('s_endpgm')
    a.set_state(st)
    a(f'''L2_posw:
    s_sub_u32 s58, s3, 12
    s_lshl_b32 s58, s58, 4
    v_lshrrev_b32 v76, 2, v3
    v_add_u32 v76, s58, v76
    v_and_b32 v78, 3, v3
    v_add_u32 v79, s17, v76
    v_and_b32 v85, 63, v79
    v_lshlrev_b32 v85, 3, v85
    v_lshl_add_u32 v85, v78, 1, v85
    ds_read_u16_d16_hi v86, v85 offset:{PD}
    v_mul_u32_u24 v79, 6, v79
    v_lshl_add_u32 v79, v78, 1, v79
    v_bfrev_b32 v77, v78
    v_lshrrev_b32 v77, 26, v77
    v_add_u32 v77, {XZ}, v77
    v_lshlrev_b32 v80, 2, v76
    s_add_u32 s32, s12, 1280000
    s_addc_u32 s33, s13, 0
    s_and_b32 s33, s33, 0xffff
    s_mov_b32 s34, 60000
    s_movk_i32 s58, 128
    s_waitcnt lgkmcnt(0)
    s_barrier
    s_cmp_eq_u32 s3, 15
    s_cbranch_scc1 L2_end''')
    psum(f'ds_read_b32 v80, v80 offset:{MASK}', 'v76', 'v77', 's58', [0,64], 8, 'p')
    a(f'''v_pk_add_f32 {V(S,2)}, {V(S,2)}, {V(S+2,2)}
    v_pk_add_f32 {V(S+4,2)}, {V(S+4,2)}, {V(S+6,2)}
    v_pk_add_f32 {V(S,2)}, {V(S,2)}, {V(S+4,2)}
    v_add_f32 v{S}, v{S}, v{S+1}
    v_add_f32 v{S}, v{S}, v86
    v_cvt_pk_bf16_f32 v{S}, v{S}, v{S}
    v_cmp_gt_u32 vcc, s18, v76
    v_cmp_gt_u32 s[40:41], 3, v78
    s_and_b64 vcc, vcc, s[40:41]
    v_cndmask_b32 v79, v84, v79, vcc
    buffer_store_short v{S}, v79, s[32:35], 0 offen
    s_endpgm''')
    a.set_state(stslow)
    a(f'''L2_slow0:
    s_waitcnt lgkmcnt(0)
    s_barrier
    L2_slow:
    s_waitcnt vmcnt(0) lgkmcnt(0)
    s_barrier
    s_load_dwordx2 s[8:9], s[0:1], 40
    s_mov_b32 s40, s3
    v_lshlrev_b32 v12, 1, v3
    v_cmp_gt_u32 s[42:43], 32, v3
    v_mov_b32 v13, 1.0
    v_mov_b32 v14, {hex(fbits(LOG2E*2.0**KS))}
    v_cndmask_b32 v13, v13, v14, s[42:43]
    v_and_b32 v14, 31, v3
    v_lshlrev_b32 v14, 2, v14
    v_lshlrev_b32 v15, 2, v3
    v_mov_b32 v16, 0
    v_mov_b32 v17, 0
    s_waitcnt lgkmcnt(0)
    s_add_u32 s8, s8, {128*128}
    s_addc_u32 s9, s9, 0
    global_load_short_d16_hi v16, v12, s[8:9]
    global_load_short_d16_hi v17, v12, s[8:9] offset:128
    ds_read_b32 v18, v15 offset:{WX}
    v_mul_f32 v16, s62, v16
    v_mul_f32 v17, s62, v17
    s_lshl_b32 s56, s16, 2
    s_add_u32 s56, s56, {OFFS}
    s_waitcnt vmcnt(0) lgkmcnt(0)
    L2_sn:
    s_cmp_ge_u32 s40, s18
    s_cbranch_scc1 L2_epi
    s_add_u32 s41, s17, s40
    s_and_b32 s44, s41, 63
    s_lshl_b32 s45, s44, 3
    s_lshl_b32 s44, s44, 4
    v_mov_b32 v19, s45
    ds_read_b64 v[20:21], v19 offset:{PD}
    s_lshl_b32 s45, s40, 7
    v_add_u32 v19, s45, v12
    v_mov_b32 v22, 0
    ds_read_u16_d16_hi v22, v19 offset:{AL}
    v_lshlrev_b32 v23, 16, v20
    v_and_b32 v24, 0xffff0000, v20
    v_lshlrev_b32 v25, 16, v21
    v_mov_b32 v26, 0
    v_mov_b32 v27, 0
    v_mov_b32 v28, 0
    v_mov_b32 v29, 0
    s_mov_b32 s46, 0
    s_waitcnt lgkmcnt(0)
    L2_sc:
    s_lshl_b32 s47, s46, 10
    v_mov_b32 v19, s47
    buffer_load_dword v30, v19, s[24:27], s56 offen
    v_readfirstlane_b32 s48, v30
    s_mul_i32 s49, s46, {CHS}
    s_add_u32 s49, s49, {RECS}
    s_and_b32 s47, s48, 0xffff
    s_add_u32 s49, s49, s47
    s_lshr_b32 s48, s48, 16
    s_mov_b32 s50, 0
    L2_sb:
    s_cmp_ge_u32 s50, s48
    s_cbranch_scc1 L2_sbe
    v_lshl_add_u32 v19, v3, 3, s50
    buffer_load_dwordx2 v[30:31], v19, s[24:27], s49 offen
    v_cmp_gt_u32 s[52:53], s48, v19
    v_and_b32 v32, 0xffff, v30
    v_cmp_eq_u32 vcc, s44, v32
    s_and_b64 s[52:53], s[52:53], vcc
    L2_se:
    s_cmp_eq_u64 s[52:53], 0
    s_cbranch_scc1 L2_see
    s_ff1_i32_b64 s51, s[52:53]
    s_bitset0_b64 s[52:53], s51
    v_readlane_b32 s54, v30, s51
    v_readlane_b32 s55, v31, s51
    s_and_b32 s54, s54, 0xffff0000
    s_lshl_b32 s57, s55, 1
    s_add_u32 s57, s57, {P8}
    s_lshl_b32 s55, s55, 5
    v_mov_b32 v33, s57
    v_add_u32 v36, s55, v14
    buffer_load_dwordx2 v[34:35], v33, s[24:27], 0 offen
    buffer_load_dword v36, v36, s[24:27], 0 offen
    v_dot2_f32_bf16 v37, v34, s60, v23
    v_dot2_f32_bf16 v38, v34, s61, v24
    v_dot2_f32_bf16 v39, v35, s60, v25
    v_cvt_pk_bf16_f32 v40, 1.0, v37
    v_mul_f32 v37, v37, v37
    v_cvt_pk_bf16_f32 v41, v38, v39
    v_dot2_f32_bf16 v37, v41, v41, v37
    v_cvt_pk_bf16_f32 v37, 0, v37
    v_lshlrev_b32 v42, 16, v36
    v_cndmask_b32 v36, v36, v42, s[42:43]
    v_add_f32 v36, v36, v22
    v_mul_f32 v36, v36, v13
    v_fmac_f32 v36, v37, v16
    v_fmac_f32 v36, s54, v17
    v_exp_f32 v42, -v36
    v_add_f32 v42, 1.0, v42
    v_rcp_f32 v42, v42
    v_mul_f32 v36, v36, v42
    v_and_b32 v40, 0xffff0000, v40
    v_lshlrev_b32 v42, 16, v41
    v_and_b32 v41, 0xffff0000, v41
    v_add_f32 v26, v26, v36
    v_fmac_f32 v27, v36, v40
    v_fmac_f32 v28, v36, v42
    v_fmac_f32 v29, v36, v41
    s_branch L2_se
    L2_see:
    s_add_u32 s50, s50, 512
    s_branch L2_sb
    L2_sbe:
    s_add_u32 s46, s46, 1
    s_cmp_lt_u32 s46, 256
    s_cbranch_scc1 L2_sc
    s_nop 4
    v_mul_f32 v27, v27, v18
    v_mul_f32 v28, v28, v18
    v_mul_f32 v29, v29, v18''')
    xyz_reduce(a,'v27','v28','v29')
    a(f'''v_mov_b32 v28, v27
    v_permlane32_swap_b32 v27, v28
    v_add_f32 v27, v27, v28
    s_mul_i32 s45, s40, {MSTR}
    s_add_u32 s45, s45, {MA}
    v_add_u32 v19, s45, v15
    ds_write_b32 v19, v26
    s_lshl_b32 s45, s40, 7
    v_add_u32 v19, s45, v14
    ds_write_b32 v19, v27 offset:{XZ}
    s_lshl_b32 s45, s40, 2
    v_mov_b32 v19, s45
    v_mov_b32 v20, 1
    ds_write_b32 v19, v20 offset:{MASK}
    s_add_u32 s40, s40, 16
    s_waitcnt lgkmcnt(0)
    s_branch L2_sn
    L2_end:
    s_endpgm''')
    return a

HEAD=open('standalone__cheap_equivariant_egnn__graph.s.ref').read().split('; Override launch')[0]
def kd(name, vg):
    return f'''.amdhsa_kernel {name}
  .amdhsa_next_free_vgpr {vg}
  .amdhsa_next_free_sgpr 96
  .amdhsa_accum_offset {vg}
  .amdhsa_group_segment_fixed_size 0
  .amdhsa_kernarg_size 88
  .amdhsa_user_sgpr_count 2
  .amdhsa_user_sgpr_kernarg_segment_ptr 1
  .amdhsa_system_sgpr_workgroup_id_x 1
  .amdhsa_float_denorm_mode_32 3
.end_amdhsa_kernel
'''
def build():
    N1='egnn_bin_kernel'; N2='standalone__cheap_equivariant_egnn__graph_kernel'
    a1=k1(); a2=k2()
    s=HEAD
    s+=f'; @launch kernel={N1} grid=(256,1,1) block=(1024,1,1) lds=90112\n'
    s+=f'; @launch kernel={N2} grid=(256,1,1) block=(1024,1,1) lds=163840\n'
    ks=[(N1,a1),(N2,a2)]
    if 'ka' in OPT:
        s+='; @launch kernel=diag_kernel grid=(1,1,1) block=(64,1,1) lds=0\n'; ks.append(('diag_kernel',k3()))
    s+='.amdgcn_target "amdgcn-amd-amdhsa--gfx950"\n.text\n'
    for n,a in ks:
        s+=f'.globl {n}\n.p2align 8\n.type {n},@function\n{n}:\n'+a.text()
    s+='.section .rodata,"a"\n.p2align 6\n'+kd(N1,96)+'.p2align 6\n'+kd(N2,128)
    if 'ka' in OPT: s+='.p2align 6\n'+kd('diag_kernel',32)
    return s
if __name__=='__main__':
    out=sys.argv[1]
    for x in sys.argv[2:]:
        k,v=x.split('='); OPT[k]=int(v)
    open(out,'w').write(build())
```

```python
import sys, struct
from asmgen import *
import gen
from gen import V, fbits, MF, MF16, LOG2E, LN2, KS, scan64, OPT, R, P, main_loop, xyz_reduce, sLUT, sOFF, sCNT, SRD, kd, HEAD, STB
BT=0x000000; WF=0x140000; EP=0x17F000; GR=0x180000; RECS=0x200000; CHS=20480; WSEND=RECS+256*CHS+4096
OH=0; HIST=1024; BASE=1280; MASK=1536; FLAG=1792; CR=1856; WX=2368; AL=2688; POS=8832; XZ=8832
CAP=3264; VB=16000; REC=VB+CAP*4; NEGROWS=134-KS; LUT=163840-65536-NEGROWS*256
XLO=NEGROWS-32; MA=LUT+(192-XLO-1+32)*256; MSTR=272
H1=9216; OFF1=10240; SORT=11264; WL=31744; HL=48128; WHL=56320
assert REC+CAP*16<=LUT and MA+56*MSTR<=LUT+255*256 and POS+80000<=LUT+32*256 and XLO>=32
SC=' sc1'
nst=[0]
names=[]
def stamp(a, name):
    if OPT['stamp']:
        k=len(names); names.append(name)
        a(f's_memrealtime s[68:69]\ns_waitcnt lgkmcnt(0)\ns_mov_b32 s{72+k}, s68')
def stamp_out(a):
    if OPT['stamp']:
        a(f's_cmp_eq_u32 s3, {OPT.get("wave",0)}\ns_cbranch_scc0 L_nost')
        a(f's_lshl_b32 s3, s2, 7\ns_add_u32 s3, s3, {STB}\ns_mov_b64 exec, -1\nv_mov_b32 v1, s3')
        for k in range(len(names)):
            a(f'v_mov_b32 v2, s{72+k}\nglobal_store_dword v1, v2, s[14:15] offset:{4*k}')
        a(f's_waitcnt vmcnt(0)\nL_nost:')

def kern():
    a=Asm()
    PR=92
    LL=120; LLA=124
    a('''s_cmp_ge_u32 s2, 256
    s_cbranch_scc1 L_end''')
    stamp(a,'start')
    a(f'''s_load_dwordx16 s[40:55], s[0:1], 0
    s_load_dwordx2 s[14:15], s[0:1], 80
    s_load_dwordx2 s[12:13], s[0:1], 64
    v_lshrrev_b32 v1, 6, v0
    v_readfirstlane_b32 s3, v1
    v_and_b32 v3, 63, v0
    v_lshlrev_b32 v2, 4, v3
    s_and_b32 s16, s2, 7
    s_lshl_b32 s16, s16, 5
    s_lshr_b32 s19, s2, 3
    s_add_u32 s16, s16, s19
    s_mul_i32 s17, s16, 625
    s_add_u32 s18, s17, 640
    s_add_u32 s17, s17, 15
    s_lshr_b32 s17, s17, 4
    s_lshr_b32 s18, s18, 4
    s_sub_u32 s18, s18, s17
    s_cmp_ge_u32 s3, 10
    s_cbranch_scc1 L_h0''')
    st0=a.state()
    a(f'''v_lshlrev_b32 v1, 4, v0
    v_lshlrev_b32 v14, 3, v0
    s_mul_i32 s56, s2, 10000
    s_mul_i32 s57, s2, 5000
    v_cmp_gt_u32 vcc, 625, v0
    s_mov_b64 s[64:65], vcc
    s_mov_b64 exec, vcc
    s_waitcnt lgkmcnt(0)
    s_add_u32 s48, s48, s56
    s_addc_u32 s49, s49, 0
    s_add_u32 s46, s46, s56
    s_addc_u32 s47, s47, 0
    s_add_u32 s44, s44, s57
    s_addc_u32 s45, s45, 0
    global_load_dwordx4 v[4:7], v1, s[48:49]
    global_load_dwordx4 v[8:11], v1, s[46:47]
    global_load_dwordx2 v[12:13], v14, s[44:45]
    s_mov_b64 exec, -1
    s_branch L_c0''')
    stE=a.state()
    a.set_state(st0)
    a(f'''L_h0:
    s_cmp_ge_u32 s3, 14
    s_cbranch_scc1 L_h1
    s_sub_u32 s56, s3, 10
    s_lshl_b32 s57, s56, 12
    s_add_u32 s58, s57, {WL}
    s_mov_b32 m0, s58
    s_waitcnt lgkmcnt(0)
    s_add_u32 s60, s50, s57
    s_addc_u32 s61, s51, 0''')
    for i in range(4): a(f'global_load_lds_dwordx4 v2, s[60:61] offset:{1024*i}')
    a('s_branch L_c0')
    a.set_state(st0)
    a(f'''L_h1:
    s_cmp_eq_u32 s3, 15
    s_cbranch_scc1 L_h2
    v_lshrrev_b32 v4, 3, v3
    v_and_b32 v5, 7, v3
    v_xor_b32 v5, v5, v4
    v_lshlrev_b32 v5, 4, v5
    v_lshl_add_u32 v5, v4, 7, v5
    s_lshl_b32 s56, s17, 7
    s_mov_b32 m0, {HL}
    s_waitcnt lgkmcnt(0)
    s_add_u32 s28, s40, s56
    s_addc_u32 s29, s41, 0
    s_and_b32 s29, s29, 0xffff
    s_sub_u32 s30, 1280000, s56
    s_mov_b32 s31, 0x20000''')
    for i in range(4): a(f'buffer_load_dwordx4 v5, s[28:31], 0 offen offset:{1024*i} lds')
    a(f'''s_mov_b32 m0, {HL+4096}
    s_movk_i32 s56, 0x1000
    buffer_load_dwordx4 v5, s[28:31], s56 offen lds
    v_mov_b32 v8, 0
    v_mov_b32 v9, 0
    v_mov_b32 v10, 0
    v_mov_b32 v11, 0
    ds_write_b128 v2, v[8:11] offset:{H1}
    ds_write_b128 v2, v[8:11] offset:{AL+5120}
    v_cmp_gt_u32 vcc, {(CR+128-HIST)//16}, v3
    s_mov_b64 exec, vcc
    ds_write_b128 v2, v[8:11] offset:{HIST}
    s_mov_b64 exec, -1
    v_and_b32 v6, 1, v3
    v_lshlrev_b32 v6, 4, v6
    v_mov_b32 v7, 0x3f80
    v_lshlrev_b32 v6, v6, v7
    v_bfe_u32 v7, v3, 1, 2''')
    for i in range(4): a(f'v_cmp_eq_u32 vcc, {i}, v7\nv_cndmask_b32 v{12+i}, 0, v6, vcc')
    a(f'ds_write_b128 v2, v[12:15] offset:{OH}\ns_branch L_c0')
    a.set_state(st0)
    a(f'''L_h2:
    v_lshlrev_b32 v11, 1, v3
    v_mov_b32 v4, 0
    v_mov_b32 v5, 0
    v_mov_b32 v6, 0
    s_waitcnt lgkmcnt(0)
    s_add_u32 s60, s50, {128*128}
    s_addc_u32 s61, s51, 0
    global_load_short_d16_hi v4, v11, s[60:61]
    global_load_short_d16_hi v5, v11, s[60:61] offset:128
    global_load_short_d16_hi v6, v11, s[52:53]
    s_cmp_ge_u32 s2, 2
    s_cbranch_scc1 L_c0
    s_lshl_b32 s56, s2, 13
    s_mov_b32 m0, {WHL}
    s_add_u32 s60, s54, s56
    s_addc_u32 s61, s55, 0''')
    for i in range(4): a(f'global_load_lds_dwordx4 v2, s[60:61] offset:{1024*i}')
    a(f's_add_u32 s60, s60, 4096\ns_addc_u32 s61, s61, 0\ns_mov_b32 m0, {WHL+4096}')
    for i in range(4): a(f'global_load_lds_dwordx4 v2, s[60:61] offset:{1024*i}')
    a.set_state(stE)
    D_=0x00800080; B2=192-XLO-1
    a(f'''L_c0:
    s_mov_b32 s39, {EP}
    s_load_dword s39, s[14:15], s39
    s_mov_b32 s24, s14
    s_and_b32 s25, s15, 0xffff
    s_mov_b32 s26, {WSEND}
    s_mov_b32 s27, 0x20000
    s_mov_b32 s20, s14
    s_or_b32 s21, s25, 0x80000000
    s_mov_b32 s22, 1280000
    s_mov_b32 s23, 0x00c00000
    s_mov_b32 s4, s40
    s_mov_b32 s5, s41
    s_mov_b32 s8, s42
    s_and_b32 s9, s43, 0xffff
    s_mov_b32 s10, 60000
    s_mov_b32 s11, 0x20000
    s_mov_b32 s6, s50
    s_mov_b32 s7, s51
    s_mov_b32 {sLUT}, {LUT}
    s_mov_b32 {sOFF}, 0
    s_mov_b32 s60, {hex(fbits(LOG2E/2))}
    s_mov_b32 s61, {hex(D_)}
    s_mov_b32 s62, {hex(fbits(LOG2E))}
    v_lshlrev_b32 v76, 18, v0
    v_add_u32 v76, {hex(((KS+XLO)<<23)|0x8000)}, v76
    v_lshlrev_b32 v77, 3, v0
    v_add_u32 v77, {LUT+XLO*256}, v77
    v_add_u32 v78, 0x10000, v77''')
    for i in range(4): a(f'v_add_u32 v{80+i}, {hex(i<<16)}, v76')
    for i in range(4): a(f'v_mul_f32 v{80+i}, s62, v{80+i}')
    for i in range(4): a(f'v_exp_f32 v{84+i}, -v{80+i}')
    for i in range(4): a(f'v_add_f32 v{88+i}, 1.0, v{84+i}')
    for i in range(4): a(f'v_rcp_f32 v{88+i}, v{88+i}')
    for i in range(4): a(f'v_mul_f32 v{80+i}, v{80+i}, v{88+i}')
    for i in range(4): a(f'v_mul_f32 v{84+i}, -v{80+i}, v{84+i}')
    a(f'''v_cvt_pk_bf16_f32 v80, v80, v81
    v_cvt_pk_bf16_f32 v81, v82, v83
    v_cvt_pk_bf16_f32 v84, v84, v85
    v_cvt_pk_bf16_f32 v85, v86, v87
    ds_write_b64 v77, v[80:81]
    ds_write_b64 v78, v[84:85]
    v_and_b32 v76, 15, v0
    v_lshlrev_b32 v77, 19, v76
    v_or_b32 v77, {hex((KS<<23)|0x8000)}, v77''')
    for i in range(8): a(f'v_add_u32 v{80+i}, {hex(i<<16)}, v77')
    for i in range(8): a(f'v_mul_f32 v{80+i}, s60, v{80+i}')
    for i in range(4): a(f'v_cvt_pk_bf16_f32 v{LL+i}, v{80+2*i}, v{81+2*i}')
    a(f'''v_lshrrev_b32 v78, 4, v0
    v_lshl_add_u32 v79, v0, 4, {sLUT}
    v_mul_lo_u32 v80, v78, s61''')
    for i in range(4): a(f'v_add_u32 v{LL+i}, v{LL+i}, v80')
    for i in range(4): a(f'v_add_u32 v{84+i}, {hex(97*D_)}, v{LL+i}')
    a(f'''ds_write_b128 v79, v[84:87] offset:{96*256}
    v_cmp_gt_u32 vcc, {B2-128}, v78
    v_mov_b32 v80, {hex(((255-B2+128)*D_)&0xffffffff)}
    v_mov_b32 v81, {hex(161*D_)}
    v_cndmask_b32 v80, v80, v81, vcc
    v_mov_b32 v81, {(255-B2+128-160)*256}
    v_cndmask_b32 v81, v81, 0, vcc
    v_add_u32 v81, v81, v79''')
    for i in range(4): a(f'v_add_u32 v{88+i}, v80, v{LL+i}')
    a(f'''ds_write_b128 v81, v[88:91] offset:{160*256}
    v_cmp_gt_u32 vcc, {XLO}, v78
    v_mov_b32 v80, {hex(33*D_)}
    v_cndmask_b32 v80, v80, 0, vcc
    v_mov_b32 v81, {32*256}
    v_cndmask_b32 v81, v81, 0, vcc
    v_add_u32 v{LLA}, v81, v79''')
    for i in range(4): a(f'v_add_u32 v{LL+i}, v80, v{LL+i}')
    a(f'''v_mul_u32_u24 v112, 12, v0
    s_waitcnt lgkmcnt(0)
    s_mul_i32 s39, s39, 0x9e3779b1
    s_add_u32 s39, s39, 0x7f4a7c15''')
    stamp(a,'lutdone')
    def posloads():
        for i in range(5):
            a(f's_mov_b32 s56, {12288*i}\nbuffer_load_dwordx3 {V(PR+4*i,3)}, v112, s[8:11], s56 offen')
    a('s_cmp_ge_u32 s3, 10\ns_cbranch_scc1 L_h3')
    st1=a.state()
    a(f'''s_mov_b32 s58, 214749
    s_mov_b32 s59, 0x3f0
    v_mov_b32 v22, 8
    s_mul_i32 s56, s2, {CHS}
    s_add_u32 s66, s56, {RECS}
    s_add_u32 s67, s66, 10000
    s_barrier''')
    stamp(a,'B0')
    for i in range(4): a(f'v_mul_u32_u24 v{14+i}, s58, v{4+i}')
    for i in range(4): a(f'v_lshrrev_b32 v{14+i}, 21, v{14+i}')
    for i in range(4): a(f'v_and_b32 v{14+i}, 0x3fc, v{14+i}')
    a('s_mov_b64 exec, s[64:65]')
    for i in range(4): a(f'ds_add_rtn_u32 v{18+i}, v{14+i}, v22 offset:{H1}')
    a('s_mov_b64 exec, -1')
    posloads()
    for i in range(4): a(f'v_lshl_or_b32 v{25+2*i}, v{4+i}, 16, v{8+i}')
    for i in range(4): a(f'v_lshlrev_b32 v{4+i}, 4, v{4+i}')
    for i in range(4): a(f'v_lshlrev_b32 v{25+2*i}, 2, v{25+2*i}')
    for i in range(4):
        e=12+(i>>1)
        a(f'v_and_b32 v{24+2*i}, 0xffff0000, v{e}' if i&1 else f'v_lshlrev_b32 v{24+2*i}, 16, v{e}')
    for i in range(4): a(f'v_and_or_b32 v{24+2*i}, v{4+i}, s59, v{24+2*i}')
    a('s_waitcnt lgkmcnt(0)\ns_barrier')
    stamp(a,'B1')
    a(f'''ds_read_b128 v[4:7], v2 offset:{H1}
    v_add3_u32 v12, v4, v5, v6
    v_add_u32 v12, v12, v7
    v_mov_b32 v13, v12''')
    scan64(a,'v13')
    a(f'''v_sub_u32 v8, v13, v12
    v_add_u32 v9, v8, v4
    v_add_u32 v10, v9, v5
    v_add_u32 v11, v10, v6
    ds_write_b128 v2, v[8:11] offset:{OFF1}
    s_mov_b64 exec, s[64:65]''')
    for i in range(4): a(f'ds_read_b32 v{14+i}, v{14+i} offset:{OFF1}')
    for i in range(4):
        a(f'v_add_u32 v{14+i}, v{14+i}, v{18+i}')
        a(f'ds_write_b64 v{14+i}, v[{24+2*i}:{25+2*i}] offset:{SORT}')
    a('s_waitcnt lgkmcnt(0)\ns_barrier')
    stamp(a,'B2')
    a(f'''ds_read_b128 v[12:15], v1 offset:{SORT}
    ds_read_b128 v[16:19], v1 offset:{SORT+10000}
    buffer_store_dwordx4 v[12:15], v1, s[24:27], s66 offen{SC}
    buffer_store_dwordx4 v[16:19], v1, s[24:27], s67 offen{SC}
    s_mov_b64 exec, -1''')
    for i in range(4): a(f'v_lshl_or_b32 v{32+2*i}, v{4+i}, 16, v{8+i}\nv_mov_b32 v{33+2*i}, s39')
    a('s_branch L_c1')
    stE=a.state()
    a.set_state(st1); a.vm=[]
    a(f'''L_h3:
    s_cmp_ge_u32 s3, 14
    s_cbranch_scc1 L_h4
    s_setprio 1
    s_and_b32 s58, s3, 1
    s_bfe_u32 s59, s3, 0x10002
    v_lshrrev_b32 v4, 5, v3
    v_bfe_u32 v5, v3, 2, 2
    v_lshl_add_u32 v5, v4, 3, v5
    v_lshlrev_b32 v5, 7, v5
    v_and_b32 v6, 3, v3
    v_lshl_add_u32 v5, v6, 3, v5
    v_and_b32 v6, 16, v3
    v_lshl_add_u32 v5, v6, 1, v5
    s_lshl_b32 s56, s59, 13
    v_add_u32 v5, s56, v5
    v_and_b32 v6, 31, v3
    v_and_b32 v7, 7, v3
    v_xor_b32 v7, v7, v4
    v_lshlrev_b32 v7, 4, v7
    v_lshl_add_u32 v7, v6, 7, v7
    s_lshl_b32 s56, s58, 12
    v_add_u32 v8, s56, v7
    v_xor_b32 v9, 32, v8
    v_xor_b32 v10, 64, v8
    v_xor_b32 v11, 96, v8
    s_lshl_b32 s57, s58, 5
    s_add_u32 s63, s17, s57
    s_sub_u32 s57, s18, s57
    s_lshl_b32 s63, s63, 7
    s_add_u32 s28, s14, s63
    s_addc_u32 s29, s15, 0
    s_and_b32 s29, s29, 0xffff
    s_lshl_b32 s30, s57, 7
    s_mov_b32 s31, 0x20000
    s_mov_b32 s63, {hex((127-KS)<<23)}
    s_mov_b32 s64, 0x7fff0000
    s_mov_b32 s65, 0x80000000
    s_mov_b32 s66, s56
    s_waitcnt vmcnt(0)
    s_barrier''')
    H=12; W=28; D=60
    for kb in range(4):
        a(f'ds_read_b128 {V(H+4*kb,4)}, v{8+kb} offset:{HL}')
        for t in range(2):
            for u in range(2):
                a(f'ds_read_b64_tr_b16 {V(W+8*kb+4*t+2*u,2)}, v5 offset:{WL+kb*2048+u*512+t*64}')
    posloads()
    for kb in range(4):
        for t in range(2):
            a(f'{MF} {V(D+16*t,16)}, {V(H+4*kb,4)}, {V(W+8*kb+4*t,4)}, {V(D+16*t,16) if kb else 0}')
    a('''s_barrier
    s_cmp_eq_u32 s59, 0
    s_cbranch_scc1 L_apack''')
    st2=a.state()
    a('v_lshlrev_b32 v7, 2, v6\nv_lshl_add_u32 v7, v4, 9, v7')
    for j in range(4):
        rs=range(4*j,4*j+4)
        for r in rs: a(f'v_mul_f32 v{D+r}, s63, v{D+r}')
        for r in rs: a(f'v_mul_f32 v{H+r}, s62, abs(v{D+16+r})')
        for r in rs: a(f'v_cvt_pk_bf16_f32 v{D+r}, v{D+r}, 0')
        for r in rs: a(f'v_add_u32 v{H+r}, 0x8000, v{H+r}')
        for r in rs: a(f'v_sub_u32 v{H+r}, v{H+r}, v{D+r} clamp')
        for r in rs: a(f'v_and_or_b32 v{D+r}, v{D+16+r}, s65, v{D+r}')
        for r in rs: a(f'v_and_or_b32 v{D+r}, v{H+r}, s64, v{D+r}')
        for r in rs: a(f'buffer_store_dword v{D+r}, v7, s[28:31], 0 offen offset:{(8*j+(r&3))*128}{SC}')
        if j==0: a('s_cmp_eq_u32 s58, 1\ns_cbranch_scc1 L_gend')
    a('L_gend:\ns_setprio 0\ns_waitcnt lgkmcnt(0)\ns_barrier\ns_branch L_c1')
    a.set_state(st2)
    a('L_apack:\nv_lshlrev_b32 v7, 1, v6\nv_lshl_add_u32 v7, v4, 9, v7\nv_add_u32 v7, s66, v7')
    for j in range(4):
        rs=range(4*j,4*j+4)
        for r in rs: a(f'v_mul_f32 v{D+r}, s63, v{D+r}')
        for r in rs: a(f'v_mul_f32 v{D+16+r}, s62, v{D+16+r}')
        for r in rs: a(f'v_cvt_pk_bf16_f32 v{D+r}, v{D+r}, v{D+16+r}')
        for r in rs:
            a(f'ds_write_b16 v7, v{D+r} offset:{AL+(8*j+(r&3))*128}')
            a(f'ds_write_b16_d16_hi v7, v{D+r} offset:{AL+(8*j+(r&3))*128+64}')
        if j==0: a('s_cmp_eq_u32 s58, 1\ns_cbranch_scc1 L_gend')
    a('s_branch L_gend')
    a.set_state(st1)
    a(f'''L_h4:
    s_waitcnt vmcnt(0)
    s_barrier''')
    posloads()
    a(f'''s_cmp_eq_u32 s3, 14
    s_cbranch_scc1 L_h5
    v_cmp_gt_u32 vcc, 32, v3
    v_mov_b32 v80, s62
    v_mov_b32 v81, {hex((127-KS)<<23)}
    v_cndmask_b32 v80, v80, v81, vcc
    v_mul_f32 v81, v4, v80
    v_mul_f32 v82, v5, v80
    v_cvt_pk_bf16_f32 v82, v82, v81
    v_and_b32 v83, 0xffff0000, v82
    v_fma_f32 v81, v4, v80, -v83
    v_cvt_pk_bf16_f32 v81, v81, 0
    v_lshlrev_b32 v85, 2, v3
    v_mul_f32 v83, {hex(fbits(LN2))}, v6
    ds_write_b16 v11, v82 offset:{CR+128}
    ds_write_b16_d16_hi v11, v82 offset:{CR+256}
    ds_write_b16 v11, v81 offset:{CR+384}
    ds_write_b32 v85, v83 offset:{WX}
    s_cmp_ge_u32 s2, 2
    s_cbranch_scc1 L_h5
    v_lshrrev_b32 v4, 4, v3
    v_bfe_u32 v5, v3, 2, 2
    v_lshl_add_u32 v5, v4, 3, v5
    v_lshlrev_b32 v5, 7, v5
    v_and_b32 v6, 3, v3
    v_lshl_add_u32 v5, v6, 3, v5
    s_lshl_b32 s56, s2, 11
    s_add_u32 s56, s56, {WF}''')
    for nt in range(4):
        for kb in range(2):
            for u in range(2):
                a(f'ds_read_b64_tr_b16 {V(12+8*nt+4*kb+2*u,2)}, v5 offset:{WHL+kb*4096+u*512+nt*32}')
    for nt in range(4):
        for kb in range(2): a(f'buffer_store_dwordx4 {V(12+8*nt+4*kb,4)}, v2, s[24:27], s56 offen offset:{kb*1024}{SC}')
        a('s_add_u32 s56, s56, 4096')
    a('L_h5:\ns_waitcnt lgkmcnt(0)\ns_barrier\ns_barrier')
    a.set_state(stE)
    a('L_c1:')
    stamp(a,'issued')
    cS=10; cR=11; cM=125; c0=126; c1=127; vG=113; vRA=114; vQ16=115
    a(f'''v_lshrrev_b32 v76, 5, v3
    v_bfe_u32 v{cR}, v3, 2, 2
    v_and_b32 v78, 3, v3
    v_bfe_u32 v79, v3, 4, 1
    v_lshlrev_b32 v80, 3, v78
    v_lshl_add_u32 v80, v79, 5, v80
    v_cmp_gt_u32 vcc, 32, v3
    v_mov_b32 v81, 128
    v_cndmask_b32 v{cM}, 0, v81, vcc
    v_mov_b32 v81, {CR}
    v_lshl_add_u32 v82, v{cR}, 7, v81
    v_mov_b32 v83, {AL}
    v_cndmask_b32 v81, v81, v83, vcc
    v_cndmask_b32 v82, v82, v83, vcc
    v_add_u32 v{c0}, v81, v80
    v_add_u32 v{c1}, v82, v80
    s_mov_b32 s56, {VB}
    v_lshl_add_u32 {V(R.vV)}, v76, 6, s56
    s_mov_b32 s56, {REC}
    v_and_b32 v80, 1, v{cR}
    v_bfe_u32 v81, v3, 3, 2
    v_lshl_add_u32 v82, v81, 2, v78
    v_lshl_add_u32 v82, v80, 4, v82
    v_lshl_add_u32 {V(R.vR)}, v82, 4, s56
    v_lshrrev_b32 v81, 1, v{cR}
    v_lshl_add_u32 v81, v80, 2, v81
    v_lshl_add_u32 v81, v76, 4, v81
    v_lshl_add_u32 {V(R.vK)}, v81, 4, s56
    v_lshrrev_b32 v82, 1, v78
    v_and_b32 v83, 1, v78
    v_lshl_add_u32 v82, v82, 2, v83
    v_lshl_add_u32 {V(R.vQ)}, v82, 5, {V(R.vK)}
    v_lshl_add_u32 v{cS}, v79, 2, v78
    v_bfe_u32 v80, v0, 2, 5
    s_lshr_b32 s56, s3, 1
    v_lshl_add_u32 v81, v80, 3, s56
    v_lshlrev_b32 v{vG}, 11, v81
    v_lshlrev_b32 v{vQ16}, 4, v78
    s_mov_b32 s57, {CHS}
    v_mad_u32_u24 v{vRA}, v81, s57, v{vQ16}
    s_lshl_b32 s56, s56, 5
    v_add_u32 v80, s56, v80
    v_mul_u32_u24 v80, 625, v80
    v_add_u32 v80, 15, v80
    v_lshrrev_b32 v80, 4, v80
    v_lshl_add_u32 v81, v78, 5, s19
    v_add_u32 v80, v80, v81
    v_lshlrev_b32 v80, 7, v80
    v_cmp_gt_u32 vcc, 39, v81
    v_bfrev_b32 v82, 2
    v_cndmask_b32 v116, v82, v80, vcc
    v_add_u32 v80, s17, v3
    v_and_b32 v80, 63, v80
    v_lshlrev_b32 v117, 2, v80
    v_lshlrev_b32 v1, 4, v0
    s_lshl_b32 s56, s2, 11
    s_add_u32 s56, s56, {GR}
    v_lshlrev_b32 v80, 5, v3
    s_waitcnt vmcnt(0)
    s_barrier''')
    stamp(a,'Bd')
    a('s_cmp_lg_u32 s3, 0\ns_cbranch_scc1 L_nogr'); a.cond_begin()
    a(f'''buffer_store_dwordx4 v[32:35], v80, s[24:27], s56 offen{SC}
    buffer_store_dwordx4 v[36:39], v80, s[24:27], s56 offen offset:16{SC}''')
    a.cond_end('L_nogr')
    for i in range(5):
        b=PR+4*i
        a(f'v_lshrrev_b32 v{b+3}, 16, v{b+2}\nv_alignbit_b32 v{b+2}, v{b+2}, v{b+1}, 16\nv_and_b32 v{b+1}, 0xffff, v{b+1}')
        if i==3: a('v_add_u32 v1, 0xc000, v1')
        if i==4: a(f'v_cmp_gt_u32 vcc, {5000-4096}, v0\ns_mov_b64 exec, vcc')
        a(f'ds_write_b128 v1, {V(b,4)} offset:{POS+16384*(i%3)}')
    a('s_mov_b64 exec, -1')
    for r in range(32): a(f'v_mov_b32 v{R.ACC[0]+r}, 0')
    a(f'''s_lshl_b32 s56, s16, 3
    s_add_u32 s56, s56, {GR}
    s_mov_b32 s57, {RECS}
    s_mov_b32 s58, 0x80078007
    s_mov_b32 s59, {1<<19}
    s_mov_b32 s60, 0x0000bf80
    s_mov_b32 s61, 0xbf800000
    s_mov_b32 s63, {POS}
    v_mov_b32 v119, 4
    s_waitcnt lgkmcnt(0)
    s_barrier''')
    stamp(a,'B0p')
    RR=[76+6*i for i in range(4)]; RK=100; PS=44; PDr=60; TM=108
    a(f'''L_poll:
    buffer_load_dwordx2 v[108:109], v{vG}, s[24:27], s56 offen{SC}
    v_xor_b32 v109, s39, v109
    v_and_or_b32 v109, v108, s58, v109
    v_cmp_ne_u32 vcc, 0, v109
    s_cbranch_vccz L_got
    s_sleep {OPT.get('slp',2)}
    s_sub_u32 s59, s59, 1
    s_cmp_lg_u32 s59, 0
    s_cbranch_scc1 L_poll
    v_cndmask_b32 v108, v108, 0, vcc
    L_got:''')
    stamp(a,'polled')
    a(f'''v_add_u32_sdwa v{vRA}, v108, v{vRA} dst_sel:DWORD dst_unused:UNUSED_PAD src0_sel:WORD_0 src1_sel:DWORD
    v_lshrrev_b32 v108, 16, v108
    v_sub_u32 v110, v108, v{vQ16}
    v_cmp_lt_i32 vcc, 128, v110
    s_mov_b64 s[48:49], vcc
    s_mov_b64 s[52:53], 0
    s_cbranch_vccz L_nr23''')
    a.cond_begin()
    a(f'''s_mov_b64 exec, vcc
    buffer_load_dwordx4 {V(RR[2]+2,4)}, v{vRA}, s[24:27], s57 offen offset:128{SC}
    buffer_load_dwordx4 {V(RR[3]+2,4)}, v{vRA}, s[24:27], s57 offen offset:192{SC}
    s_mov_b64 exec, -1
    v_cmp_lt_i32 vcc, 136, v110
    s_mov_b64 s[50:51], vcc
    v_cmp_lt_i32 vcc, 192, v110
    s_mov_b64 s[52:53], vcc
    v_cmp_lt_i32 vcc, 200, v110
    s_mov_b64 s[54:55], vcc
    v_cmp_lt_u32 vcc, 256, v108
    s_mov_b64 exec, vcc
    ds_write_b32 v119, v119 offset:{FLAG-4}
    s_mov_b64 exec, -1''')
    a.cond_end('L_nr23')
    a(f'''buffer_load_dwordx4 {V(RR[0]+2,4)}, v{vRA}, s[24:27], s57 offen{SC}
    v_cmp_lt_i32 vcc, 64, v110
    s_mov_b64 s[44:45], vcc
    v_bfrev_b32 v111, 2
    v_cndmask_b32 v111, v111, v{vRA}, vcc
    buffer_load_dwordx4 {V(RR[1]+2,4)}, v111, s[24:27], s57 offen offset:64{SC}
    buffer_load_dword v1, v116, s[24:27], 0 offen{SC}
    v_cmp_lt_i32 s[40:41], 0, v110
    v_cmp_lt_i32 s[42:43], 8, v110
    v_cmp_lt_i32 vcc, 72, v110
    s_mov_b64 s[46:47], vcc''')
    A=lambda s: RR[s>>1]+2+2*(s&1)
    def pre(i):
        for j in range(2):
            s=2*i+j
            a(f'''v_bfe_u32 v{RK+s}, v{A(s)}, 2, 8
            v_mad_u32_u16 v{PS+2*s}, v{A(s)+1}, 2, s63
            v_mad_u32_u16 v{PDr+2*s}, v{A(s)+1}, 2, s63 op_sel:[1,0,0,0]''')
        for j in range(2):
            s=2*i+j
            a(f'''s_mov_b64 exec, s[{40+2*s}:{41+2*s}]
            ds_read_b64 {V(PS+2*s,2)}, v{PS+2*s}
            ds_read_b64 {V(PDr+2*s,2)}, v{PDr+2*s}
            ds_add_rtn_u32 v{RK+s}, v{RK+s}, v119 offset:{HIST}''')
        a('s_mov_b64 exec, -1')
    def geo(i):
        sl=[2*i,2*i+1]; t=lambda k,n: TM+3*k+n
        for k,s in enumerate(sl): a(f'v_lshlrev_b32 v{t(k,0)}, 16, v{PDr+2*s}\nv_and_b32 v{t(k,1)}, 0xffff0000, v{PDr+2*s}\nv_lshlrev_b32 v{t(k,2)}, 16, v{PDr+2*s+1}')
        for k,s in enumerate(sl): a(f'v_dot2_f32_bf16 v{t(k,0)}, v{PS+2*s}, s60, v{t(k,0)}')
        for k,s in enumerate(sl): a(f'v_dot2_f32_bf16 v{t(k,1)}, v{PS+2*s}, s61, v{t(k,1)}')
        for k,s in enumerate(sl): a(f'v_dot2_f32_bf16 v{t(k,2)}, v{PS+2*s+1}, s60, v{t(k,2)}')
        for k,s in enumerate(sl): a(f'v_cvt_pk_bf16_f32 v{PDr+2*s}, 1.0, v{t(k,0)}')
        for k,s in enumerate(sl): a(f'v_mul_f32 v{t(k,0)}, v{t(k,0)}, v{t(k,0)}')
        for k,s in enumerate(sl): a(f'v_cvt_pk_bf16_f32 v{PDr+2*s+1}, v{t(k,1)}, v{t(k,2)}')
        for k,s in enumerate(sl): a(f'v_dot2_f32_bf16 v{t(k,0)}, v{PDr+2*s+1}, v{PDr+2*s+1}, v{t(k,0)}')
        for k,s in enumerate(sl): a(f'v_bfe_u32 v{PS+2*s}, v{A(s)}, 2, 8')
        for k,s in enumerate(sl): a(f'v_and_b32 v{PS+2*s+1}, 0xffff, v{A(s)+1}')
        for k,s in enumerate(sl): a(f'v_cvt_pk_bf16_f32 v{A(s)+1}, v{t(k,0)}, v{t(k,0)}')
    pre(0); pre(1); geo(0); geo(1)
    a('s_cmp_eq_u64 s[48:49], 0\ns_cbranch_scc1 L_np2'); a.cond_begin()
    pre(2); geo(2)
    a('s_cmp_eq_u64 s[52:53], 0\ns_cbranch_scc1 L_np2')
    pre(3); geo(3)
    a.cond_end('L_np2')
    a('s_waitcnt lgkmcnt(0)\ns_barrier')
    stamp(a,'B1p')
    vC=108; vI=109
    a(f'''ds_read_b32 v{vC}, v117 offset:{HIST}
    ds_write_b128 v{LLA}, {V(LL,4)}
    v_mov_b32 v{vI}, v{vC}''')
    scan64(a,V(vI))
    a(f'''v_sub_u32 v{vC}, v{vI}, v{vC}
    v_readlane_b32 s56, v{vI}, 63
    ds_write_b32 v117, v{vC} offset:{BASE}''')
    def rb(sl):
        for s in sl: a(f's_mov_b64 exec, s[{40+2*s}:{41+2*s}]\nds_read_b32 v{PS+2*s}, v{PS+2*s} offset:{BASE}')
        a('s_mov_b64 exec, -1')
    def wv(sl):
        for s in sl: a(f'v_add_u32 v{RK+s}, v{RK+s}, v{PS+2*s}')
        for s in sl: a(f's_mov_b64 exec, s[{40+2*s}:{41+2*s}]\nds_write_b32 v{RK+s}, v{PS+2*s+1} offset:{VB}')
        a('s_mov_b64 exec, -1')
    rb(range(4))
    a(f'''s_cmp_gt_u32 s56, {4*(CAP-32)}
    s_cbranch_scc1 L_slow0
    s_add_u32 s57, s56, 124
    s_lshr_b32 s57, s57, 7
    s_lshr_b32 s58, s57, 4
    s_and_b32 s57, s57, 15
    s_mul_i32 s59, s58, s3
    s_min_u32 s63, s3, s57
    s_add_u32 s59, s59, s63
    s_cmp_lt_u32 s3, s57
    s_addc_u32 {sCNT}, s58, 0
    s_lshl_b32 s64, s59, 7
    v_add_u32 {V(R.vV)}, s64, {V(R.vV)}''')
    stslow=a.state()
    wv(range(4))
    a('s_cmp_eq_u64 s[48:49], 0\ns_cbranch_scc1 L_nv2'); a.cond_begin()
    rb([4,5]); wv([4,5])
    a('s_cmp_eq_u64 s[52:53], 0\ns_cbranch_scc1 L_nv2')
    rb([6,7]); wv([6,7])
    a.cond_end('L_nv2')
    a('s_cmp_lg_u32 s3, 15\ns_cbranch_scc1 L_nopad'); a.cond_begin()
    a(f'''v_lshl_add_u32 v110, v3, 2, s56
    v_lshlrev_b32 v111, 2, v110
    s_mov_b32 exec_hi, 0
    ds_write_b32 v110, v12 offset:{VB}
    ds_write_b128 v111, v[12:15] offset:{REC}
    s_mov_b32 exec_hi, -1
    s_cmp_lg_u32 s2, 0
    s_cbranch_scc1 L_nopad
    v_mov_b32 v110, {EP}
    v_mov_b32 v111, s39
    s_mov_b64 exec, 1
    buffer_store_dword v111, v110, s[24:27], 0 offen
    s_mov_b64 exec, -1''')
    a.cond_end('L_nopad')
    a('s_waitcnt lgkmcnt(0)\ns_barrier')
    stamp(a,'B2a')
    a(f's_cmp_eq_u32 {sCNT}, 0\ns_cbranch_scc1 L_nog'); a.cond_begin()
    for j in range(4): a(P.vr(0,j,0))
    for r in range(16): a(P.ld(0,r))
    a.cond_end('L_nog')
    def wr(sl):
        for s in sl: a(f'v_lshlrev_b32 v{RK+s}, 2, v{RK+s}')
        for s in sl:
            a(f's_mov_b64 exec, s[{40+2*s}:{41+2*s}]\nds_write2_b64 v{RK+s}, {V(PDr+2*s,2)}, {V(A(s),2)} offset0:0 offset1:1' if 0 else
              f'v_mov_b32 v{A(s)-2}, v{PDr+2*s}\nv_mov_b32 v{A(s)-1}, v{PDr+2*s+1}\ns_mov_b64 exec, s[{40+2*s}:{41+2*s}]\nds_write_b128 v{RK+s}, {V(A(s)-2,4)} offset:{REC}\ns_mov_b64 exec, -1')
    wr([0,2,1,3])
    a('s_cmp_eq_u64 s[48:49], 0\ns_cbranch_scc1 L_nw2'); a.cond_begin()
    wr([4,5])
    a('s_cmp_eq_u64 s[52:53], 0\ns_cbranch_scc1 L_nw2')
    wr([6,7])
    a.cond_end('L_nw2')
    a(f's_cmp_eq_u32 {sCNT}, 0\ns_cbranch_scc1 L_nowin'); a.cond_begin()
    a(f'''s_lshl_b32 s65, {sCNT}, 7
    s_add_u32 s65, s65, s64
    s_min_u32 s65, s65, s56
    s_sub_u32 s65, s65, 4
    v_cmp_ge_u32 vcc, s64, v{vI}
    s_bcnt1_i32_b64 s66, vcc
    v_cmp_ge_u32 vcc, s65, v{vI}
    s_bcnt1_i32_b64 s67, vcc
    s_sub_u32 s67, s67, s66
    s_add_u32 s63, s17, s66
    s_lshl_b32 s57, 1, s3
    s_lshl_b32 s58, s64, 2
    v_subrev_u32 v110, s63, v{cR}
    v_and_b32 v110, 7, v110
    v_xor_b32 v111, 4, v110
    v_add_u32 v110, s66, v110
    v_add_u32 v111, s66, v111
    v_mad_u32_u24 v110, v110, v{cM}, v{c0}
    v_mad_u32_u24 v111, v111, v{cM}, v{c1}
    v_add_u32 v112, s66, v3
    v_lshlrev_b32 v112, 2, v112
    v_mov_b32 v113, s57
    v_cmp_ge_u32 vcc, s67, v3
    ds_read_b64_tr_b16 {V(R.XB[0],2)}, v110
    ds_read_b64_tr_b16 {V(R.XB[0]+2,2)}, v111
    ds_read_b64_tr_b16 {V(R.XB[1],2)}, v110 offset:64
    ds_read_b64_tr_b16 {V(R.XB[1]+2,2)}, v111 offset:64
    s_mov_b64 exec, vcc
    ds_or_b32 v112, v113 offset:{MASK}
    s_cmp_gt_u32 s67, 7
    s_cselect_b64 exec, 1, 0
    ds_write_b32 v119, v119 offset:{FLAG-4}
    s_mov_b64 exec, -1''')
    for j in range(4): a(P.vr(1,j,128))
    a(f'''v_add_u32 {V(R.vR)}, s58, {V(R.vR)}
    v_add_u32 {V(R.vQ)}, s58, {V(R.vQ)}
    v_add_u32 {V(R.vK)}, s58, {V(R.vK)}
    v_subrev_u32 v110, s63, v{cS}
    v_and_b32 v110, 7, v110
    v_add_u32 v110, s63, v110
    v_and_b32 v110, 63, v110
    v_lshlrev_b32 v110, 20, v110
    v_sub_u32 {V(R.vK)}, {V(R.vK)}, v110''')
    a.cond_end('L_nowin')
    a(P.fe0)
    a('s_waitcnt lgkmcnt(0)\ns_barrier')
    stamp(a,'B2b')
    a(f'ds_read_b32 v10, v119 offset:{FLAG-4}')
    a(P.fe1); a(P.fq(0))
    a('v_cmp_ne_u32 vcc, 0, v10\ns_cbranch_vccnz L_slow')
    a(f's_cmp_eq_u32 {sCNT}, 0\ns_cbranch_scc1 L_epi')
    a(P.xa)
    a('s_waitcnt lgkmcnt(0)')
    main_loop(a)
    stamp(a,'loopend')
    a(f'''v_and_b32 v76, 31, v3
    v_lshlrev_b32 v76, 2, v76
    v_add_u32 v77, {WX}, v76
    ds_read2_b32 v[78:79], v77 offset0:0 offset1:32
    v_lshrrev_b32 v80, 5, v3
    v_subrev_u32 v80, s63, v80
    s_add_u32 s57, s66, s3
    s_mul_i32 s58, s57, {MSTR}
    s_add_u32 s58, s58, {MA}
    s_lshl_b32 s57, s57, 7
    s_add_u32 s57, s57, {XZ}
    v_add_u32 v81, s58, v76
    v_add_u32 v82, s57, v76
    s_movk_i32 s58, {MSTR}''')
    for j in range(4):
        A0=R.ACC[0]+4*j; A1=R.ACC[1]+4*j
        a(f'''v_add_u32 v83, {2*j}, v80
        v_and_b32 v83, 7, v83
        v_cmp_ge_u32 vcc, s67, v83
        s_cbranch_vccz L_nf{j}''')
        a.cond_begin()
        a(f'v_mad_u32_u24 v84, v83, s58, v81\nv_lshl_add_u32 v85, v83, 7, v82')
        for q in range(1,4): a(f'v_mul_f32 v{A0+q}, v{A0+q}, v78')
        for q in range(1,4): a(f'v_fmac_f32 v{A0+q}, v{A1+q}, v79')
        xyz_reduce(a, V(A0+1), V(A0+2), V(A0+3))
        a(f'''s_mov_b64 exec, vcc
        ds_write2_b32 v84, v{A0}, v{A1} offset0:0 offset1:32
        ds_write_b32 v85, v{A0+1}
        s_mov_b64 exec, -1''')
        a.cond_end(f'L_nf{j}')
    WFr=44; HF=60; HR=68; S=12; U=28
    a(f'''L_epi:
    s_nop 7
    s_waitcnt vmcnt(0) lgkmcnt(0)
    s_cmp_ge_u32 s3, 12
    s_cbranch_scc1 L_posw''')
    st=a.state()
    a(f'''s_and_b32 s57, s3, 3
    s_lshr_b32 s58, s3, 2
    s_lshl_b32 s59, s57, 12
    s_add_u32 s59, s59, {WF}''')
    for kb in range(4): a(f'buffer_load_dwordx4 {V(WFr+4*kb,4)}, v2, s[24:27], s59 offen offset:{1024*kb}{SC}')
    a(f'''s_lshl_b32 s59, s17, 7
    s_add_u32 s28, s4, s59
    s_addc_u32 s29, s5, 0
    s_and_b32 s29, s29, 0xffff
    s_lshl_b32 s30, s18, 7
    s_mov_b32 s31, 0x20000
    s_add_u32 s32, s12, s59
    s_addc_u32 s33, s13, 0
    s_and_b32 s33, s33, 0xffff
    s_mov_b32 s34, s30
    s_mov_b32 s35, 0x20000
    s_lshl_b32 s58, s58, 4
    v_and_b32 v76, 15, v3
    v_add_u32 v76, s58, v76
    v_lshrrev_b32 v77, 4, v3
    v_lshlrev_b32 v78, 7, v76
    v_lshl_add_u32 v79, v77, 4, v78
    v_lshl_add_u32 v78, v77, 3, v78
    s_lshl_b32 s57, s57, 5
    v_add_u32 v78, s57, v78
    buffer_load_dwordx4 {V(HF,4)}, v79, s[28:31], 0 offen
    buffer_load_dwordx4 {V(HF+4,4)}, v79, s[28:31], 0 offen offset:64
    buffer_load_dwordx2 {V(HR,2)}, v78, s[28:31], 0 offen
    v_lshlrev_b32 v80, 2, v76
    s_mov_b32 s58, {MA}
    v_lshl_add_u32 v77, v77, 5, s58
    s_movk_i32 s58, {MSTR}
    s_waitcnt lgkmcnt(0)
    s_barrier''')
    stamp(a,'B4')
    def psum(node, base, stride, reads, n, tag):
        a(f'''ds_read_b32 v80, v80 offset:{MASK}
        v_ffbl_b32 v81, v80
        v_bcnt_u32_b32 v80, v80, 0
        v_add_u32 v81, v81, {node}
        v_mad_u32_u24 v81, v81, {stride}, {base}
        v_cmp_lt_u32 vcc, 0, v80
        v_bfrev_b32 v84, 2
        v_cndmask_b32 v82, v84, v81, vcc''')
        for k,o in enumerate(reads): a(f'ds_read_b128 {V(S+4*k,4)}, v82 offset:{o}')
        a(f's_mov_b32 s59, 1')
        a(f's_nop 1\nL_ps{tag}:')
        a(f'''v_add_u32 v81, {stride}, v81
        v_cmp_lt_u32 vcc, s59, v80
        v_cndmask_b32 v82, v84, v81, vcc''')
        for k,o in enumerate(reads): a(f'ds_read_b128 {V(U+4*k,4)}, v82 offset:{o}')
        a('s_add_u32 s59, s59, 1\nv_cmp_lt_u32 vcc, s59, v80')
        for k in range(n//2): a(f'v_pk_add_f32 {V(S+2*k,2)}, {V(S+2*k,2)}, {V(U+2*k,2)}')
        a(f's_cbranch_vccnz L_ps{tag}')
    psum('v76', 'v77', 's58', [0,16,128,144], 16, 'h')
    a(f'{MF16} v[84:87], {V(WFr,4)}, {V(HF,4)}, 0')
    for k in range(8): a(f'v_cvt_pk_bf16_f32 v{S+k}, v{S+2*k}, v{S+2*k+1}')
    a(f'''{MF16} v[84:87], {V(WFr+4,4)}, {V(HF+4,4)}, v[84:87]
    {MF16} v[88:91], {V(WFr+8,4)}, {V(S,4)}, 0
    {MF16} v[88:91], {V(WFr+12,4)}, {V(S+4,4)}, v[88:91]
    v_lshlrev_b32 v92, 16, v{HR}
    v_and_b32 v93, 0xffff0000, v{HR}
    v_lshlrev_b32 v94, 16, v{HR+1}
    v_and_b32 v95, 0xffff0000, v{HR+1}
    s_mov_b32 s59, {hex(fbits(LN2))}''')
    for i in range(4): a(f'v_fma_f32 v{84+i}, v{84+i}, s62, v{88+i}')
    for i in range(4): a(f'v_exp_f32 v{88+i}, -v{84+i}')
    for i in range(4): a(f'v_mul_f32 v{84+i}, s59, v{84+i}')
    for i in range(4): a(f'v_add_f32 v{88+i}, 1.0, v{88+i}')
    for i in range(4): a(f'v_rcp_f32 v{88+i}, v{88+i}')
    for i in range(4): a(f'v_fmac_f32 v{92+i}, v{84+i}, v{88+i}')
    a(f'''v_cvt_pk_bf16_f32 v92, v92, v93
    v_cvt_pk_bf16_f32 v93, v94, v95
    buffer_store_dwordx2 v[92:93], v78, s[32:35], 0 offen''')
    if OPT['stamp']:
        stamp(a,'issued'); a('s_waitcnt vmcnt(0)'); stamp(a,'drained'); stamp_out(a)
    a('s_endpgm')
    a.set_state(st)
    a(f'''L_posw:
    s_sub_u32 s58, s3, 12
    s_lshl_b32 s58, s58, 4
    v_lshrrev_b32 v76, 2, v3
    v_add_u32 v76, s58, v76
    v_and_b32 v78, 3, v3
    v_add_u32 v79, s17, v76
    v_mul_u32_u24 v79, 6, v79
    v_lshl_add_u32 v79, v78, 1, v79
    v_cmp_gt_u32 vcc, s18, v76
    v_cmp_gt_u32 s[40:41], 3, v78
    s_and_b64 vcc, vcc, s[40:41]
    v_bfrev_b32 v84, 2
    v_cndmask_b32 v79, v84, v79, vcc
    buffer_load_ushort v86, v79, s[8:11], 0 offen
    v_bfrev_b32 v77, v78
    v_lshrrev_b32 v77, 26, v77
    v_add_u32 v77, {XZ}, v77
    v_lshlrev_b32 v80, 2, v76
    s_add_u32 s32, s12, 1280000
    s_addc_u32 s33, s13, 0
    s_and_b32 s33, s33, 0xffff
    s_mov_b32 s34, 60000
    s_mov_b32 s35, 0x20000
    s_movk_i32 s58, 128
    s_waitcnt lgkmcnt(0)
    s_barrier
    s_cmp_eq_u32 s3, 15
    s_cbranch_scc1 L_end''')
    psum('v76', 'v77', 's58', [0,64], 8, 'p')
    a(f'''v_pk_add_f32 {V(S,2)}, {V(S,2)}, {V(S+2,2)}
    v_pk_add_f32 {V(S+4,2)}, {V(S+4,2)}, {V(S+6,2)}
    v_pk_add_f32 {V(S,2)}, {V(S,2)}, {V(S+4,2)}
    v_lshlrev_b32 v86, 16, v86
    v_add_f32 v{S}, v{S}, v{S+1}
    v_add_f32 v{S}, v{S}, v86
    v_cvt_pk_bf16_f32 v{S}, v{S}, v{S}
    buffer_store_short v{S}, v79, s[32:35], 0 offen
    s_endpgm''')
    a.set_state(stslow)
    a(f'''L_slow0:
    s_cmp_lg_u32 s3, 15
    s_cbranch_scc1 L_slow1
    s_cmp_lg_u32 s2, 0
    s_cbranch_scc1 L_slow1
    v_mov_b32 v110, {EP}
    v_mov_b32 v111, s39
    s_mov_b64 exec, 1
    buffer_store_dword v111, v110, s[24:27], 0 offen
    s_mov_b64 exec, -1
    L_slow1:
    L_slow:
    s_waitcnt vmcnt(0) lgkmcnt(0)
    s_mov_b32 s40, s3
    v_lshlrev_b32 v12, 1, v3
    v_cmp_gt_u32 s[42:43], 32, v3
    v_mov_b32 v13, 1.0
    v_mov_b32 v14, {hex(fbits(LOG2E*2.0**KS))}
    v_cndmask_b32 v13, v13, v14, s[42:43]
    v_and_b32 v14, 31, v3
    v_lshlrev_b32 v14, 2, v14
    v_lshlrev_b32 v15, 2, v3
    s_add_u32 s6, s6, {128*128}
    s_addc_u32 s7, s7, 0
    global_load_ushort v16, v12, s[6:7]
    global_load_ushort v17, v12, s[6:7] offset:128
    ds_read_b32 v18, v15 offset:{WX}
    v_lshlrev_b32 v16, 16, v16
    v_lshlrev_b32 v17, 16, v17
    v_mul_f32 v16, s62, v16
    v_mul_f32 v17, s62, v17
    s_lshl_b32 s56, s16, 3
    s_add_u32 s56, s56, {GR}
    s_waitcnt vmcnt(0) lgkmcnt(0)
    L_sn:
    s_cmp_ge_u32 s40, s18
    s_cbranch_scc1 L_epi
    s_add_u32 s41, s17, s40
    s_and_b32 s44, s41, 63
    s_lshl_b32 s44, s44, 4
    s_mul_i32 s45, s41, 6
    v_mov_b32 v19, s45
    buffer_load_ushort v23, v19, s[8:11], 0 offen
    buffer_load_ushort v24, v19, s[8:11], 0 offen offset:2
    buffer_load_ushort v25, v19, s[8:11], 0 offen offset:4
    s_lshl_b32 s45, s40, 7
    v_add_u32 v20, s45, v12
    ds_read_u16 v22, v20 offset:{AL}
    v_lshlrev_b32 v23, 16, v23
    v_lshlrev_b32 v24, 16, v24
    v_lshlrev_b32 v25, 16, v25
    v_lshlrev_b32 v22, 16, v22
    v_mov_b32 v26, 0
    v_mov_b32 v27, 0
    v_mov_b32 v28, 0
    v_mov_b32 v29, 0
    s_mov_b32 s46, 0
    L_sc:
    s_lshl_b32 s47, s46, 11
    v_mov_b32 v19, s47
    buffer_load_dwordx2 v[30:31], v19, s[24:27], s56 offen{SC}
    v_readfirstlane_b32 s48, v30
    v_readfirstlane_b32 s47, v31
    s_cmp_eq_u32 s47, s39
    s_cselect_b32 s48, s48, 0
    s_mul_i32 s49, s46, {CHS}
    s_add_u32 s49, s49, {RECS}
    s_and_b32 s47, s48, 0xffff
    s_add_u32 s49, s49, s47
    s_lshr_b32 s48, s48, 16
    s_mov_b32 s50, 0
    L_sb:
    s_cmp_ge_u32 s50, s48
    s_cbranch_scc1 L_sbe
    v_lshl_add_u32 v19, v3, 3, s50
    buffer_load_dwordx2 v[30:31], v19, s[24:27], s49 offen{SC}
    v_cmp_gt_u32 s[52:53], s48, v19
    v_and_b32 v32, 0xffff, v30
    v_cmp_eq_u32 vcc, s44, v32
    s_and_b64 s[52:53], s[52:53], vcc
    L_se:
    s_cmp_eq_u64 s[52:53], 0
    s_cbranch_scc1 L_see
    s_ff1_i32_b64 s51, s[52:53]
    s_bitset0_b64 s[52:53], s51
    v_readlane_b32 s54, v30, s51
    v_readlane_b32 s55, v31, s51
    s_and_b32 s54, s54, 0xffff0000
    s_and_b32 s55, s55, 0xffff
    s_lshr_b32 s57, s55, 1
    s_add_u32 s57, s57, s55
    s_lshl_b32 s55, s55, 5
    v_mov_b32 v33, s57
    v_add_u32 v36, s55, v14
    buffer_load_ushort v37, v33, s[8:11], 0 offen
    buffer_load_ushort v38, v33, s[8:11], 0 offen offset:2
    buffer_load_ushort v39, v33, s[8:11], 0 offen offset:4
    buffer_load_dword v36, v36, s[24:27], 0 offen{SC}
    v_lshlrev_b32 v37, 16, v37
    v_lshlrev_b32 v38, 16, v38
    v_lshlrev_b32 v39, 16, v39
    v_sub_f32 v37, v23, v37
    v_sub_f32 v38, v24, v38
    v_sub_f32 v39, v25, v39
    v_cvt_pk_bf16_f32 v40, 1.0, v37
    v_mul_f32 v37, v37, v37
    v_cvt_pk_bf16_f32 v41, v38, v39
    v_dot2_f32_bf16 v37, v41, v41, v37
    v_cvt_pk_bf16_f32 v37, 0, v37
    v_lshlrev_b32 v42, 16, v36
    v_cndmask_b32 v36, v36, v42, s[42:43]
    v_add_f32 v36, v36, v22
    v_mul_f32 v36, v36, v13
    v_fmac_f32 v36, v37, v16
    v_fmac_f32 v36, s54, v17
    v_exp_f32 v42, -v36
    v_add_f32 v42, 1.0, v42
    v_rcp_f32 v42, v42
    v_mul_f32 v36, v36, v42
    v_and_b32 v40, 0xffff0000, v40
    v_lshlrev_b32 v42, 16, v41
    v_and_b32 v41, 0xffff0000, v41
    v_add_f32 v26, v26, v36
    v_fmac_f32 v27, v36, v40
    v_fmac_f32 v28, v36, v42
    v_fmac_f32 v29, v36, v41
    s_branch L_se
    L_see:
    s_add_u32 s50, s50, 512
    s_branch L_sb
    L_sbe:
    s_add_u32 s46, s46, 1
    s_cmp_lt_u32 s46, 256
    s_cbranch_scc1 L_sc
    s_nop 4
    v_mul_f32 v27, v27, v18
    v_mul_f32 v28, v28, v18
    v_mul_f32 v29, v29, v18''')
    xyz_reduce(a,'v27','v28','v29')
    a(f'''v_mov_b32 v28, v27
    v_permlane32_swap_b32 v27, v28
    v_add_f32 v27, v27, v28
    s_mul_i32 s45, s40, {MSTR}
    s_add_u32 s45, s45, {MA}
    v_add_u32 v19, s45, v15
    ds_write_b32 v19, v26
    s_lshl_b32 s45, s40, 7
    v_add_u32 v19, s45, v14
    ds_write_b32 v19, v27 offset:{XZ}
    s_lshl_b32 s45, s40, 2
    v_mov_b32 v19, s45
    v_mov_b32 v20, 1
    ds_write_b32 v19, v20 offset:{MASK}
    s_add_u32 s40, s40, 16
    s_waitcnt lgkmcnt(0)
    s_branch L_sn
    L_end:
    s_endpgm''')
    return a

def build():
    N='standalone__cheap_equivariant_egnn__graph_kernel'
    a=kern()
    s=HEAD+'; @launch grid=(256,1,1) block=(1024,1,1) lds=163840\n'
    s+='.amdgcn_target "amdgcn-amd-amdhsa--gfx950"\n.text\n'
    s+=f'.globl {N}\n.p2align 8\n.type {N},@function\n{N}:\n'+a.text()
    s+='.section .rodata,"a"\n.p2align 6\n'+kd(N,128)
    return s
if __name__=='__main__':
    out=sys.argv[1]
    for x in sys.argv[2:]:
        k,v=x.split('='); OPT[k]=int(v)
    open(out,'w').write(build())
    if names: print(len(names), ','.join(names))
```

```python
import sys, struct
from asmgen import *
import gen
from gen import V, fbits, MF, MF16, LOG2E, LN2, KS, scan64, OPT, R, P, main_loop, xyz_reduce, sLUT, sOFF, sCNT, SRD, kd, HEAD, STB
BT=0x000000; WF=0x140000; EP=0x17F000; GR=0x180000; RECS=0x200000; CHS=20480; WSEND=RECS+256*CHS+4096
OH=0; HIST=1024; BASE=1280; MASK=1536; FLAG=1792; CR=1856; WX=2368; AL=2688; POS=8832; XZ=8832
CAP=3264; VB=16000; REC=VB+CAP*4; NEGROWS=134-KS; LUT=163840-65536-NEGROWS*256
XLO=NEGROWS-32; MA=LUT+(192-XLO-1+32)*256; MSTR=272
H1=9216; OFF1=10240; SORT=11264; WL=31744; HL=48128; WHL=56320
assert REC+CAP*16<=LUT and MA+56*MSTR<=LUT+255*256 and POS+80000<=LUT+32*256 and XLO>=32
SC=' sc1'
nst=[0]
names=[]
def stamp(a, name):
    if OPT['stamp']:
        k=len(names); names.append(name)
        a(f's_memrealtime s[68:69]\ns_waitcnt lgkmcnt(0)\ns_mov_b32 s{72+k}, s68')
def stamp_out(a):
    if OPT['stamp']:
        a(f's_cmp_eq_u32 s3, {OPT.get("wave",0)}\ns_cbranch_scc0 L_nost')
        a(f's_lshl_b32 s3, s2, 7\ns_add_u32 s3, s3, {STB}\ns_mov_b64 exec, -1\nv_mov_b32 v1, s3')
        for k in range(len(names)):
            a(f'v_mov_b32 v2, s{72+k}\nglobal_store_dword v1, v2, s[14:15] offset:{4*k}')
        a(f's_waitcnt vmcnt(0)\nL_nost:')

def kern():
    a=Asm()
    PR=92
    LL=120; LLA=124
    a('''s_cmp_ge_u32 s2, 256
    s_cbranch_scc1 L_end''')
    stamp(a,'start')
    a(f'''s_load_dwordx16 s[40:55], s[0:1], 0
    s_load_dwordx2 s[14:15], s[0:1], 80
    s_load_dwordx2 s[12:13], s[0:1], 64
    v_lshrrev_b32 v1, 6, v0
    v_readfirstlane_b32 s3, v1
    v_and_b32 v3, 63, v0
    v_lshlrev_b32 v2, 4, v3
    s_and_b32 s16, s2, 7
    s_lshl_b32 s16, s16, 5
    s_lshr_b32 s19, s2, 3
    s_add_u32 s16, s16, s19
    s_mul_i32 s17, s16, 625
    s_add_u32 s18, s17, 640
    s_add_u32 s17, s17, 15
    s_lshr_b32 s17, s17, 4
    s_lshr_b32 s18, s18, 4
    s_sub_u32 s18, s18, s17
    s_cmp_ge_u32 s3, 10
    s_cbranch_scc1 L_h0''')
    st0=a.state()
    a(f'''v_lshlrev_b32 v1, 4, v0
    v_lshlrev_b32 v14, 3, v0
    s_mul_i32 s56, s2, 10000
    s_mul_i32 s57, s2, 5000
    v_cmp_gt_u32 vcc, 625, v0
    s_mov_b64 s[64:65], vcc
    s_mov_b64 exec, vcc
    s_waitcnt lgkmcnt(0)
    s_add_u32 s48, s48, s56
    s_addc_u32 s49, s49, 0
    s_add_u32 s46, s46, s56
    s_addc_u32 s47, s47, 0
    s_add_u32 s44, s44, s57
    s_addc_u32 s45, s45, 0
    global_load_dwordx4 v[4:7], v1, s[48:49]
    global_load_dwordx4 v[8:11], v1, s[46:47]
    global_load_dwordx2 v[12:13], v14, s[44:45]
    s_mov_b64 exec, -1
    s_branch L_c0''')
    stE=a.state()
    a.set_state(st0)
    a(f'''L_h0:
    s_cmp_ge_u32 s3, 14
    s_cbranch_scc1 L_h1
    s_sub_u32 s56, s3, 10
    s_lshl_b32 s57, s56, 12
    s_add_u32 s58, s57, {WL}
    s_mov_b32 m0, s58
    s_waitcnt lgkmcnt(0)
    s_add_u32 s60, s50, s57
    s_addc_u32 s61, s51, 0''')
    for i in range(4): a(f'global_load_lds_dwordx4 v2, s[60:61] offset:{1024*i}')
    a('s_branch L_c0')
    a.set_state(st0)
    a(f'''L_h1:
    s_cmp_eq_u32 s3, 15
    s_cbranch_scc1 L_h2
    v_lshrrev_b32 v4, 3, v3
    v_and_b32 v5, 7, v3
    v_xor_b32 v5, v5, v4
    v_lshlrev_b32 v5, 4, v5
    v_lshl_add_u32 v5, v4, 7, v5
    s_lshl_b32 s56, s17, 7
    s_mov_b32 m0, {HL}
    s_waitcnt lgkmcnt(0)
    s_add_u32 s28, s40, s56
    s_addc_u32 s29, s41, 0
    s_and_b32 s29, s29, 0xffff
    s_sub_u32 s30, 1280000, s56
    s_mov_b32 s31, 0x20000''')
    for i in range(4): a(f'buffer_load_dwordx4 v5, s[28:31], 0 offen offset:{1024*i} lds')
    a(f'''s_mov_b32 m0, {HL+4096}
    s_movk_i32 s56, 0x1000
    buffer_load_dwordx4 v5, s[28:31], s56 offen lds
    v_mov_b32 v8, 0
    v_mov_b32 v9, 0
    v_mov_b32 v10, 0
    v_mov_b32 v11, 0
    ds_write_b128 v2, v[8:11] offset:{H1}
    ds_write_b128 v2, v[8:11] offset:{AL+5120}
    v_cmp_gt_u32 vcc, {(CR+128-HIST)//16}, v3
    s_mov_b64 exec, vcc
    ds_write_b128 v2, v[8:11] offset:{HIST}
    s_mov_b64 exec, -1
    v_and_b32 v6, 1, v3
    v_lshlrev_b32 v6, 4, v6
    v_mov_b32 v7, 0x3f80
    v_lshlrev_b32 v6, v6, v7
    v_bfe_u32 v7, v3, 1, 2''')
    for i in range(4): a(f'v_cmp_eq_u32 vcc, {i}, v7\nv_cndmask_b32 v{12+i}, 0, v6, vcc')
    a(f'ds_write_b128 v2, v[12:15] offset:{OH}\ns_branch L_c0')
    a.set_state(st0)
    a(f'''L_h2:
    v_lshlrev_b32 v11, 1, v3
    v_mov_b32 v4, 0
    v_mov_b32 v5, 0
    v_mov_b32 v6, 0
    s_waitcnt lgkmcnt(0)
    s_add_u32 s60, s50, {128*128}
    s_addc_u32 s61, s51, 0
    global_load_short_d16_hi v4, v11, s[60:61]
    global_load_short_d16_hi v5, v11, s[60:61] offset:128
    global_load_short_d16_hi v6, v11, s[52:53]
    s_cmp_ge_u32 s2, 2
    s_cbranch_scc1 L_c0
    s_lshl_b32 s56, s2, 13
    s_mov_b32 m0, {WHL}
    s_add_u32 s60, s54, s56
    s_addc_u32 s61, s55, 0''')
    for i in range(4): a(f'global_load_lds_dwordx4 v2, s[60:61] offset:{1024*i}')
    a(f's_add_u32 s60, s60, 4096\ns_addc_u32 s61, s61, 0\ns_mov_b32 m0, {WHL+4096}')
    for i in range(4): a(f'global_load_lds_dwordx4 v2, s[60:61] offset:{1024*i}')
    a.set_state(stE)
    D_=0x00800080; B2=192-XLO-1
    a(f'''L_c0:
    s_mov_b32 s39, {EP}
    s_load_dword s39, s[14:15], s39
    s_mov_b32 s24, s14
    s_and_b32 s25, s15, 0xffff
    s_mov_b32 s26, {WSEND}
    s_mov_b32 s27, 0x20000
    s_mov_b32 s20, s14
    s_or_b32 s21, s25, 0x80000000
    s_mov_b32 s22, 1280000
    s_mov_b32 s23, 0x00c00000
    s_mov_b32 s4, s40
    s_mov_b32 s5, s41
    s_mov_b32 s8, s42
    s_and_b32 s9, s43, 0xffff
    s_mov_b32 s10, 60000
    s_mov_b32 s11, 0x20000
    s_mov_b32 s6, s50
    s_mov_b32 s7, s51
    s_mov_b32 {sLUT}, {LUT}
    s_mov_b32 {sOFF}, 0
    s_mov_b32 s60, {hex(fbits(LOG2E/2))}
    s_mov_b32 s61, {hex(D_)}
    s_mov_b32 s62, {hex(fbits(LOG2E))}
    v_lshlrev_b32 v76, 18, v0
    v_add_u32 v76, {hex(((KS+XLO)<<23)|0x8000)}, v76
    v_lshlrev_b32 v77, 3, v0
    v_add_u32 v77, {LUT+XLO*256}, v77
    v_add_u32 v78, 0x10000, v77''')
    for i in range(4): a(f'v_add_u32 v{80+i}, {hex(i<<16)}, v76')
    for i in range(4): a(f'v_mul_f32 v{80+i}, s62, v{80+i}')
    for i in range(4): a(f'v_exp_f32 v{84+i}, -v{80+i}')
    for i in range(4): a(f'v_add_f32 v{88+i}, 1.0, v{84+i}')
    for i in range(4): a(f'v_rcp_f32 v{88+i}, v{88+i}')
    for i in range(4): a(f'v_mul_f32 v{80+i}, v{80+i}, v{88+i}')
    for i in range(4): a(f'v_mul_f32 v{84+i}, -v{80+i}, v{84+i}')
    a(f'''v_cvt_pk_bf16_f32 v80, v80, v81
    v_cvt_pk_bf16_f32 v81, v82, v83
    v_cvt_pk_bf16_f32 v84, v84, v85
    v_cvt_pk_bf16_f32 v85, v86, v87
    ds_write_b64 v77, v[80:81]
    ds_write_b64 v78, v[84:85]
    v_and_b32 v76, 15, v0
    v_lshlrev_b32 v77, 19, v76
    v_or_b32 v77, {hex((KS<<23)|0x8000)}, v77''')
    for i in range(8): a(f'v_add_u32 v{80+i}, {hex(i<<16)}, v77')
    for i in range(8): a(f'v_mul_f32 v{80+i}, s60, v{80+i}')
    for i in range(4): a(f'v_cvt_pk_bf16_f32 v{LL+i}, v{80+2*i}, v{81+2*i}')
    a(f'''v_lshrrev_b32 v78, 4, v0
    v_lshl_add_u32 v79, v0, 4, {sLUT}
    v_mul_lo_u32 v80, v78, s61''')
    for i in range(4): a(f'v_add_u32 v{LL+i}, v{LL+i}, v80')
    for i in range(4): a(f'v_add_u32 v{84+i}, {hex(97*D_)}, v{LL+i}')
    a(f'''ds_write_b128 v79, v[84:87] offset:{96*256}
    v_cmp_gt_u32 vcc, {B2-128}, v78
    v_mov_b32 v80, {hex(((255-B2+128)*D_)&0xffffffff)}
    v_mov_b32 v81, {hex(161*D_)}
    v_cndmask_b32 v80, v80, v81, vcc
    v_mov_b32 v81, {(255-B2+128-160)*256}
    v_cndmask_b32 v81, v81, 0, vcc
    v_add_u32 v81, v81, v79''')
    for i in range(4): a(f'v_add_u32 v{88+i}, v80, v{LL+i}')
    a(f'''ds_write_b128 v81, v[88:91] offset:{160*256}
    v_cmp_gt_u32 vcc, {XLO}, v78
    v_mov_b32 v80, {hex(33*D_)}
    v_cndmask_b32 v80, v80, 0, vcc
    v_mov_b32 v81, {32*256}
    v_cndmask_b32 v81, v81, 0, vcc
    v_add_u32 v{LLA}, v81, v79''')
    for i in range(4): a(f'v_add_u32 v{LL+i}, v80, v{LL+i}')
    a(f'''v_mul_u32_u24 v112, 12, v0
    s_waitcnt lgkmcnt(0)
    s_mul_i32 s39, s39, 0x9e3779b1
    s_add_u32 s39, s39, 0x7f4a7c15''')
    stamp(a,'lutdone')
    def posloads():
        for i in range(5):
            a(f's_mov_b32 s56, {12288*i}\nbuffer_load_dwordx3 {V(PR+4*i,3)}, v112, s[8:11], s56 offen')
    a('s_cmp_ge_u32 s3, 10\ns_cbranch_scc1 L_h3')
    st1=a.state()
    a(f'''s_mov_b32 s58, 214749
    s_mov_b32 s59, 0x3f0
    v_mov_b32 v22, 8
    s_mul_i32 s56, s2, {CHS}
    s_add_u32 s66, s56, {RECS}
    s_add_u32 s67, s66, 10000
    s_barrier''')
    stamp(a,'B0')
    for i in range(4): a(f'v_mul_u32_u24 v{14+i}, s58, v{4+i}')
    for i in range(4): a(f'v_lshrrev_b32 v{14+i}, 21, v{14+i}')
    for i in range(4): a(f'v_and_b32 v{14+i}, 0x3fc, v{14+i}')
    a('s_mov_b64 exec, s[64:65]')
    for i in range(4): a(f'ds_add_rtn_u32 v{18+i}, v{14+i}, v22 offset:{H1}')
    a('s_mov_b64 exec, -1')
    posloads()
    for i in range(4): a(f'v_lshl_or_b32 v{25+2*i}, v{4+i}, 16, v{8+i}')
    for i in range(4): a(f'v_lshlrev_b32 v{4+i}, 4, v{4+i}')
    for i in range(4): a(f'v_lshlrev_b32 v{25+2*i}, 2, v{25+2*i}')
    for i in range(4):
        e=12+(i>>1)
        a(f'v_and_b32 v{24+2*i}, 0xffff0000, v{e}' if i&1 else f'v_lshlrev_b32 v{24+2*i}, 16, v{e}')
    for i in range(4): a(f'v_and_or_b32 v{24+2*i}, v{4+i}, s59, v{24+2*i}')
    a('s_waitcnt lgkmcnt(0)\ns_barrier')
    stamp(a,'B1')
    a(f'''ds_read_b128 v[4:7], v2 offset:{H1}
    v_add3_u32 v12, v4, v5, v6
    v_add_u32 v12, v12, v7
    v_mov_b32 v13, v12''')
    scan64(a,'v13')
    a(f'''v_sub_u32 v8, v13, v12
    v_add_u32 v9, v8, v4
    v_add_u32 v10, v9, v5
    v_add_u32 v11, v10, v6
    ds_write_b128 v2, v[8:11] offset:{OFF1}
    s_mov_b64 exec, s[64:65]''')
    for i in range(4): a(f'ds_read_b32 v{14+i}, v{14+i} offset:{OFF1}')
    for i in range(4):
        a(f'v_add_u32 v{14+i}, v{14+i}, v{18+i}')
        a(f'ds_write_b64 v{14+i}, v[{24+2*i}:{25+2*i}] offset:{SORT}')
    a('s_waitcnt lgkmcnt(0)\ns_barrier')
    stamp(a,'B2')
    a(f'''ds_read_b128 v[12:15], v1 offset:{SORT}
    ds_read_b128 v[16:19], v1 offset:{SORT+10000}
    buffer_store_dwordx4 v[12:15], v1, s[24:27], s66 offen{SC}
    buffer_store_dwordx4 v[16:19], v1, s[24:27], s67 offen{SC}
    s_mov_b64 exec, -1''')
    for i in range(4): a(f'v_lshl_or_b32 v{32+2*i}, v{4+i}, 16, v{8+i}\nv_mov_b32 v{33+2*i}, s39')
    a('s_branch L_c1')
    stE=a.state()
    a.set_state(st1); a.vm=[]
    a(f'''L_h3:
    s_cmp_ge_u32 s3, 14
    s_cbranch_scc1 L_h4
    s_setprio 1
    s_and_b32 s58, s3, 1
    s_bfe_u32 s59, s3, 0x10002
    v_lshrrev_b32 v4, 5, v3
    v_bfe_u32 v5, v3, 2, 2
    v_lshl_add_u32 v5, v4, 3, v5
    v_lshlrev_b32 v5, 7, v5
    v_and_b32 v6, 3, v3
    v_lshl_add_u32 v5, v6, 3, v5
    v_and_b32 v6, 16, v3
    v_lshl_add_u32 v5, v6, 1, v5
    s_lshl_b32 s56, s59, 13
    v_add_u32 v5, s56, v5
    v_and_b32 v6, 31, v3
    v_and_b32 v7, 7, v3
    v_xor_b32 v7, v7, v4
    v_lshlrev_b32 v7, 4, v7
    v_lshl_add_u32 v7, v6, 7, v7
    s_lshl_b32 s56, s58, 12
    v_add_u32 v8, s56, v7
    v_xor_b32 v9, 32, v8
    v_xor_b32 v10, 64, v8
    v_xor_b32 v11, 96, v8
    s_lshl_b32 s57, s58, 5
    s_add_u32 s63, s17, s57
    s_sub_u32 s57, s18, s57
    s_lshl_b32 s63, s63, 7
    s_add_u32 s28, s14, s63
    s_addc_u32 s29, s15, 0
    s_and_b32 s29, s29, 0xffff
    s_lshl_b32 s30, s57, 7
    s_mov_b32 s31, 0x20000
    s_mov_b32 s63, {hex((127-KS)<<23)}
    s_mov_b32 s64, 0x7fff0000
    s_mov_b32 s65, 0x80000000
    s_mov_b32 s66, s56
    s_waitcnt vmcnt(0)
    s_barrier''')
    H=12; W=28; D=60
    for kb in range(4):
        a(f'ds_read_b128 {V(H+4*kb,4)}, v{8+kb} offset:{HL}')
        for t in range(2):
            for u in range(2):
                a(f'ds_read_b64_tr_b16 {V(W+8*kb+4*t+2*u,2)}, v5 offset:{WL+kb*2048+u*512+t*64}')
    posloads()
    for kb in range(4):
        for t in range(2):
            a(f'{MF} {V(D+16*t,16)}, {V(H+4*kb,4)}, {V(W+8*kb+4*t,4)}, {V(D+16*t,16) if kb else 0}')
    a('''s_barrier
    s_cmp_eq_u32 s59, 0
    s_cbranch_scc1 L_apack''')
    st2=a.state()
    a('v_lshlrev_b32 v7, 2, v6\nv_lshl_add_u32 v7, v4, 9, v7')
    for j in range(4):
        rs=range(4*j,4*j+4)
        for r in rs: a(f'v_mul_f32 v{D+r}, s63, v{D+r}')
        for r in rs: a(f'v_mul_f32 v{H+r}, s62, abs(v{D+16+r})')
        for r in rs: a(f'v_cvt_pk_bf16_f32 v{D+r}, v{D+r}, 0')
        for r in rs: a(f'v_add_u32 v{H+r}, 0x8000, v{H+r}')
        for r in rs: a(f'v_sub_u32 v{H+r}, v{H+r}, v{D+r} clamp')
        for r in rs: a(f'v_and_or_b32 v{D+r}, v{D+16+r}, s65, v{D+r}')
        for r in rs: a(f'v_and_or_b32 v{D+r}, v{H+r}, s64, v{D+r}')
        for r in rs: a(f'buffer_store_dword v{D+r}, v7, s[28:31], 0 offen offset:{(8*j+(r&3))*128}{SC}')
        if j==0: a('s_cmp_eq_u32 s58, 1\ns_cbranch_scc1 L_gend')
    a('L_gend:\ns_setprio 0\ns_waitcnt lgkmcnt(0)\ns_barrier\ns_branch L_c1')
    a.set_state(st2)
    a('L_apack:\nv_lshlrev_b32 v7, 1, v6\nv_lshl_add_u32 v7, v4, 9, v7\nv_add_u32 v7, s66, v7')
    for j in range(4):
        rs=range(4*j,4*j+4)
        for r in rs: a(f'v_mul_f32 v{D+r}, s63, v{D+r}')
        for r in rs: a(f'v_mul_f32 v{D+16+r}, s62, v{D+16+r}')
        for r in rs: a(f'v_cvt_pk_bf16_f32 v{D+r}, v{D+r}, v{D+16+r}')
        for r in rs:
            a(f'ds_write_b16 v7, v{D+r} offset:{AL+(8*j+(r&3))*128}')
            a(f'ds_write_b16_d16_hi v7, v{D+r} offset:{AL+(8*j+(r&3))*128+64}')
        if j==0: a('s_cmp_eq_u32 s58, 1\ns_cbranch_scc1 L_gend')
    a('s_branch L_gend')
    a.set_state(st1)
    a(f'''L_h4:
    s_waitcnt vmcnt(0)
    s_barrier''')
    posloads()
    a(f'''s_cmp_eq_u32 s3, 14
    s_cbranch_scc1 L_h5
    v_cmp_gt_u32 vcc, 32, v3
    v_mov_b32 v80, s62
    v_mov_b32 v81, {hex((127-KS)<<23)}
    v_cndmask_b32 v80, v80, v81, vcc
    v_mul_f32 v81, v4, v80
    v_mul_f32 v82, v5, v80
    v_cvt_pk_bf16_f32 v82, v82, v81
    v_and_b32 v83, 0xffff0000, v82
    v_fma_f32 v81, v4, v80, -v83
    v_cvt_pk_bf16_f32 v81, v81, 0
    v_lshlrev_b32 v85, 2, v3
    v_mul_f32 v83, {hex(fbits(LN2))}, v6
    ds_write_b16 v11, v82 offset:{CR+128}
    ds_write_b16_d16_hi v11, v82 offset:{CR+256}
    ds_write_b16 v11, v81 offset:{CR+384}
    ds_write_b32 v85, v83 offset:{WX}
    s_cmp_ge_u32 s2, 2
    s_cbranch_scc1 L_h5
    v_lshrrev_b32 v4, 4, v3
    v_bfe_u32 v5, v3, 2, 2
    v_lshl_add_u32 v5, v4, 3, v5
    v_lshlrev_b32 v5, 7, v5
    v_and_b32 v6, 3, v3
    v_lshl_add_u32 v5, v6, 3, v5
    s_lshl_b32 s56, s2, 11
    s_add_u32 s56, s56, {WF}''')
    for nt in range(4):
        for kb in range(2):
            for u in range(2):
                a(f'ds_read_b64_tr_b16 {V(12+8*nt+4*kb+2*u,2)}, v5 offset:{WHL+kb*4096+u*512+nt*32}')
    for nt in range(4):
        for kb in range(2): a(f'buffer_store_dwordx4 {V(12+8*nt+4*kb,4)}, v2, s[24:27], s56 offen offset:{kb*1024}{SC}')
        a('s_add_u32 s56, s56, 4096')
    a('L_h5:\ns_waitcnt lgkmcnt(0)\ns_barrier\ns_barrier')
    a.set_state(stE)
    a('L_c1:')
    stamp(a,'issued')
    cS=10; cR=11; cM=125; c0=126; c1=127; vG=113; vRA=114; vQ16=115
    a(f'''v_lshrrev_b32 v76, 5, v3
    v_bfe_u32 v{cR}, v3, 2, 2
    v_and_b32 v78, 3, v3
    v_bfe_u32 v79, v3, 4, 1
    v_lshlrev_b32 v80, 3, v78
    v_lshl_add_u32 v80, v79, 5, v80
    v_cmp_gt_u32 vcc, 32, v3
    v_mov_b32 v81, 128
    v_cndmask_b32 v{cM}, 0, v81, vcc
    v_mov_b32 v81, {CR}
    v_lshl_add_u32 v82, v{cR}, 7, v81
    v_mov_b32 v83, {AL}
    v_cndmask_b32 v81, v81, v83, vcc
    v_cndmask_b32 v82, v82, v83, vcc
    v_add_u32 v{c0}, v81, v80
    v_add_u32 v{c1}, v82, v80
    s_mov_b32 s56, {VB}
    v_lshl_add_u32 {V(R.vV)}, v76, 6, s56
    s_mov_b32 s56, {REC}
    v_and_b32 v80, 1, v{cR}
    v_bfe_u32 v81, v3, 3, 2
    v_lshl_add_u32 v82, v81, 2, v78
    v_lshl_add_u32 v82, v80, 4, v82
    v_lshl_add_u32 {V(R.vR)}, v82, 4, s56
    v_lshrrev_b32 v81, 1, v{cR}
    v_lshl_add_u32 v81, v80, 2, v81
    v_lshl_add_u32 v81, v76, 4, v81
    v_lshl_add_u32 {V(R.vK)}, v81, 4, s56
    v_lshrrev_b32 v82, 1, v78
    v_and_b32 v83, 1, v78
    v_lshl_add_u32 v82, v82, 2, v83
    v_lshl_add_u32 {V(R.vQ)}, v82, 5, {V(R.vK)}
    v_lshl_add_u32 v{cS}, v79, 2, v78
    v_bfe_u32 v80, v0, 2, 5
    s_lshr_b32 s56, s3, 1
    v_lshl_add_u32 v81, v80, 3, s56
    v_lshlrev_b32 v{vG}, 11, v81
    v_lshlrev_b32 v{vQ16}, 4, v78
    s_mov_b32 s57, {CHS}
    v_mad_u32_u24 v{vRA}, v81, s57, v{vQ16}
    s_lshl_b32 s56, s56, 5
    v_add_u32 v80, s56, v80
    v_mul_u32_u24 v80, 625, v80
    v_add_u32 v80, 15, v80
    v_lshrrev_b32 v80, 4, v80
    v_lshl_add_u32 v81, v78, 5, s19
    v_add_u32 v80, v80, v81
    v_lshlrev_b32 v80, 7, v80
    v_cmp_gt_u32 vcc, 39, v81
    v_bfrev_b32 v82, 2
    v_cndmask_b32 v116, v82, v80, vcc
    v_add_u32 v80, s17, v3
    v_and_b32 v80, 63, v80
    v_lshlrev_b32 v117, 2, v80
    v_lshlrev_b32 v1, 4, v0
    s_lshl_b32 s56, s2, 11
    s_add_u32 s56, s56, {GR}
    v_lshlrev_b32 v80, 5, v3
    s_waitcnt vmcnt(0)
    s_barrier''')
    stamp(a,'Bd')
    a('s_cmp_lg_u32 s3, 0\ns_cbranch_scc1 L_nogr'); a.cond_begin()
    a(f'''buffer_store_dwordx4 v[32:35], v80, s[24:27], s56 offen{SC}
    buffer_store_dwordx4 v[36:39], v80, s[24:27], s56 offen offset:16{SC}''')
    a.cond_end('L_nogr')
    for i in range(5):
        b=PR+4*i
        a(f'v_lshrrev_b32 v{b+3}, 16, v{b+2}\nv_alignbit_b32 v{b+2}, v{b+2}, v{b+1}, 16\nv_and_b32 v{b+1}, 0xffff, v{b+1}')
        if i==3: a('v_add_u32 v1, 0xc000, v1')
        if i==4: a(f'v_cmp_gt_u32 vcc, {5000-4096}, v0\ns_mov_b64 exec, vcc')
        a(f'ds_write_b128 v1, {V(b,4)} offset:{POS+16384*(i%3)}')
    a('s_mov_b64 exec, -1')
    for r in range(32): a(f'v_mov_b32 v{R.ACC[0]+r}, 0')
    a(f'''s_lshl_b32 s56, s16, 3
    s_add_u32 s56, s56, {GR}
    s_mov_b32 s57, {RECS}
    s_mov_b32 s58, 0x80078007
    s_mov_b32 s59, {1<<19}
    s_mov_b32 s60, 0x0000bf80
    s_mov_b32 s61, 0xbf800000
    s_mov_b32 s63, {POS}
    v_mov_b32 v119, 4
    s_waitcnt lgkmcnt(0)
    s_barrier''')
    stamp(a,'B0p')
    RR=[76+6*i for i in range(4)]; RK=100; PS=44; PDr=60; TM=108
    a(f'''L_poll:
    buffer_load_dwordx2 v[108:109], v{vG}, s[24:27], s56 offen{SC}
    v_xor_b32 v109, s39, v109
    v_and_or_b32 v109, v108, s58, v109
    v_cmp_ne_u32 vcc, 0, v109
    s_cbranch_vccz L_got
    s_sleep {OPT.get('slp',2)}
    s_sub_u32 s59, s59, 1
    s_cmp_lg_u32 s59, 0
    s_cbranch_scc1 L_poll
    v_cndmask_b32 v108, v108, 0, vcc
    L_got:''')
    stamp(a,'polled')
    a(f'''v_add_u32_sdwa v{vRA}, v108, v{vRA} dst_sel:DWORD dst_unused:UNUSED_PAD src0_sel:WORD_0 src1_sel:DWORD
    v_lshrrev_b32 v108, 16, v108
    v_sub_u32 v110, v108, v{vQ16}
    v_cmp_lt_i32 vcc, 128, v110
    s_mov_b64 s[48:49], vcc
    s_mov_b64 s[52:53], 0
    s_cbranch_vccz L_nr23''')
    a.cond_begin()
    a(f'''s_mov_b64 exec, vcc
    buffer_load_dwordx4 {V(RR[2]+2,4)}, v{vRA}, s[24:27], s57 offen offset:128{SC}
    buffer_load_dwordx4 {V(RR[3]+2,4)}, v{vRA}, s[24:27], s57 offen offset:192{SC}
    s_mov_b64 exec, -1
    v_cmp_lt_i32 vcc, 136, v110
    s_mov_b64 s[50:51], vcc
    v_cmp_lt_i32 vcc, 192, v110
    s_mov_b64 s[52:53], vcc
    v_cmp_lt_i32 vcc, 200, v110
    s_mov_b64 s[54:55], vcc
    v_cmp_lt_u32 vcc, 256, v108
    s_mov_b64 exec, vcc
    ds_write_b32 v119, v119 offset:{FLAG-4}
    s_mov_b64 exec, -1''')
    a.cond_end('L_nr23')
    a(f'''buffer_load_dwordx4 {V(RR[0]+2,4)}, v{vRA}, s[24:27], s57 offen{SC}
    v_cmp_lt_i32 vcc, 64, v110
    s_mov_b64 s[44:45], vcc
    v_bfrev_b32 v111, 2
    v_cndmask_b32 v111, v111, v{vRA}, vcc
    buffer_load_dwordx4 {V(RR[1]+2,4)}, v111, s[24:27], s57 offen offset:64{SC}
    buffer_load_dword v1, v116, s[24:27], 0 offen{SC}
    v_cmp_lt_i32 s[40:41], 0, v110
    v_cmp_lt_i32 s[42:43], 8, v110
    v_cmp_lt_i32 vcc, 72, v110
    s_mov_b64 s[46:47], vcc''')
    A=lambda s: RR[s>>1]+2+2*(s&1)
    def pre(i):
        for j in range(2):
            s=2*i+j
            a(f'''v_bfe_u32 v{RK+s}, v{A(s)}, 2, 8
            v_mad_u32_u16 v{PS+2*s}, v{A(s)+1}, 2, s63
            v_mad_u32_u16 v{PDr+2*s}, v{A(s)+1}, 2, s63 op_sel:[1,0,0,0]''')
        for j in range(2):
            s=2*i+j
            a(f'''s_mov_b64 exec, s[{40+2*s}:{41+2*s}]
            ds_read_b64 {V(PS+2*s,2)}, v{PS+2*s}
            ds_read_b64 {V(PDr+2*s,2)}, v{PDr+2*s}
            ds_add_rtn_u32 v{RK+s}, v{RK+s}, v119 offset:{HIST}''')
        a('s_mov_b64 exec, -1')
    def geo(i):
        sl=[2*i,2*i+1]; t=lambda k,n: TM+3*k+n
        for k,s in enumerate(sl): a(f'v_lshlrev_b32 v{t(k,0)}, 16, v{PDr+2*s}\nv_and_b32 v{t(k,1)}, 0xffff0000, v{PDr+2*s}\nv_lshlrev_b32 v{t(k,2)}, 16, v{PDr+2*s+1}')
        for k,s in enumerate(sl): a(f'v_dot2_f32_bf16 v{t(k,0)}, v{PS+2*s}, s60, v{t(k,0)}')
        for k,s in enumerate(sl): a(f'v_dot2_f32_bf16 v{t(k,1)}, v{PS+2*s}, s61, v{t(k,1)}')
        for k,s in enumerate(sl): a(f'v_dot2_f32_bf16 v{t(k,2)}, v{PS+2*s+1}, s60, v{t(k,2)}')
        for k,s in enumerate(sl): a(f'v_cvt_pk_bf16_f32 v{PDr+2*s}, 1.0, v{t(k,0)}')
        for k,s in enumerate(sl): a(f'v_mul_f32 v{t(k,0)}, v{t(k,0)}, v{t(k,0)}')
        for k,s in enumerate(sl): a(f'v_cvt_pk_bf16_f32 v{PDr+2*s+1}, v{t(k,1)}, v{t(k,2)}')
        for k,s in enumerate(sl): a(f'v_dot2_f32_bf16 v{t(k,0)}, v{PDr+2*s+1}, v{PDr+2*s+1}, v{t(k,0)}')
        for k,s in enumerate(sl): a(f'v_bfe_u32 v{PS+2*s}, v{A(s)}, 2, 8')
        for k,s in enumerate(sl): a(f'v_and_b32 v{PS+2*s+1}, 0xffff, v{A(s)+1}')
        for k,s in enumerate(sl): a(f'v_cvt_pk_bf16_f32 v{A(s)+1}, v{t(k,0)}, v{t(k,0)}')
    pre(0); pre(1); geo(0); geo(1)
    a('s_cmp_eq_u64 s[48:49], 0\ns_cbranch_scc1 L_np2'); a.cond_begin()
    pre(2); geo(2)
    a('s_cmp_eq_u64 s[52:53], 0\ns_cbranch_scc1 L_np2')
    pre(3); geo(3)
    a.cond_end('L_np2')
    a('s_waitcnt lgkmcnt(0)\ns_barrier')
    stamp(a,'B1p')
    vC=108; vI=109
    a(f'''ds_read_b32 v{vC}, v117 offset:{HIST}
    ds_write_b128 v{LLA}, {V(LL,4)}
    v_mov_b32 v{vI}, v{vC}''')
    scan64(a,V(vI))
    a(f'''v_sub_u32 v{vC}, v{vI}, v{vC}
    v_readlane_b32 s56, v{vI}, 63
    ds_write_b32 v117, v{vC} offset:{BASE}''')
    def rb(sl):
        for s in sl: a(f's_mov_b64 exec, s[{40+2*s}:{41+2*s}]\nds_read_b32 v{PS+2*s}, v{PS+2*s} offset:{BASE}')
        a('s_mov_b64 exec, -1')
    def wv(sl):
        for s in sl: a(f'v_add_u32 v{RK+s}, v{RK+s}, v{PS+2*s}')
        for s in sl: a(f's_mov_b64 exec, s[{40+2*s}:{41+2*s}]\nds_write_b32 v{RK+s}, v{PS+2*s+1} offset:{VB}')
        a('s_mov_b64 exec, -1')
    rb(range(4))
    a(f'''s_cmp_gt_u32 s56, {4*(CAP-32)}
    s_cbranch_scc1 L_slow0
    s_add_u32 s57, s56, 124
    s_lshr_b32 s57, s57, 7
    s_lshr_b32 s58, s57, 4
    s_and_b32 s57, s57, 15
    s_mul_i32 s59, s58, s3
    s_min_u32 s63, s3, s57
    s_add_u32 s59, s59, s63
    s_cmp_lt_u32 s3, s57
    s_addc_u32 {sCNT}, s58, 0
    s_lshl_b32 s64, s59, 7
    v_add_u32 {V(R.vV)}, s64, {V(R.vV)}''')
    stslow=a.state()
    wv(range(4))
    a('s_cmp_eq_u64 s[48:49], 0\ns_cbranch_scc1 L_nv2'); a.cond_begin()
    rb([4,5]); wv([4,5])
    a('s_cmp_eq_u64 s[52:53], 0\ns_cbranch_scc1 L_nv2')
    rb([6,7]); wv([6,7])
    a.cond_end('L_nv2')
    a('s_cmp_lg_u32 s3, 15\ns_cbranch_scc1 L_nopad'); a.cond_begin()
    a(f'''v_lshl_add_u32 v110, v3, 2, s56
    v_lshlrev_b32 v111, 2, v110
    s_mov_b32 exec_hi, 0
    ds_write_b32 v110, v12 offset:{VB}
    ds_write_b128 v111, v[12:15] offset:{REC}
    s_mov_b32 exec_hi, -1
    s_cmp_lg_u32 s2, 0
    s_cbranch_scc1 L_nopad
    v_mov_b32 v110, {EP}
    v_mov_b32 v111, s39
    s_mov_b64 exec, 1
    buffer_store_dword v111, v110, s[24:27], 0 offen
    s_mov_b64 exec, -1''')
    a.cond_end('L_nopad')
    a('s_waitcnt lgkmcnt(0)\ns_barrier')
    stamp(a,'B2a')
    a(f's_cmp_eq_u32 {sCNT}, 0\ns_cbranch_scc1 L_nog'); a.cond_begin()
    for j in range(4): a(P.vr(0,j,0))
    for r in range(16): a(P.ld(0,r))
    a.cond_end('L_nog')
    def wr(sl):
        for s in sl: a(f'v_lshlrev_b32 v{RK+s}, 2, v{RK+s}')
        for s in sl:
            a(f's_mov_b64 exec, s[{40+2*s}:{41+2*s}]\nds_write2_b64 v{RK+s}, {V(PDr+2*s,2)}, {V(A(s),2)} offset0:0 offset1:1' if 0 else
              f'v_mov_b32 v{A(s)-2}, v{PDr+2*s}\nv_mov_b32 v{A(s)-1}, v{PDr+2*s+1}\ns_mov_b64 exec, s[{40+2*s}:{41+2*s}]\nds_write_b128 v{RK+s}, {V(A(s)-2,4)} offset:{REC}\ns_mov_b64 exec, -1')
    wr([0,2,1,3])
    a('s_cmp_eq_u64 s[48:49], 0\ns_cbranch_scc1 L_nw2'); a.cond_begin()
    wr([4,5])
    a('s_cmp_eq_u64 s[52:53], 0\ns_cbranch_scc1 L_nw2')
    wr([6,7])
    a.cond_end('L_nw2')
    a(f's_cmp_eq_u32 {sCNT}, 0\ns_cbranch_scc1 L_nowin'); a.cond_begin()
    a(f'''s_lshl_b32 s65, {sCNT}, 7
    s_add_u32 s65, s65, s64
    s_min_u32 s65, s65, s56
    s_sub_u32 s65, s65, 4
    v_cmp_ge_u32 vcc, s64, v{vI}
    s_bcnt1_i32_b64 s66, vcc
    v_cmp_ge_u32 vcc, s65, v{vI}
    s_bcnt1_i32_b64 s67, vcc
    s_sub_u32 s67, s67, s66
    s_add_u32 s63, s17, s66
    s_lshl_b32 s57, 1, s3
    s_lshl_b32 s58, s64, 2
    v_subrev_u32 v110, s63, v{cR}
    v_and_b32 v110, 7, v110
    v_xor_b32 v111, 4, v110
    v_add_u32 v110, s66, v110
    v_add_u32 v111, s66, v111
    v_mad_u32_u24 v110, v110, v{cM}, v{c0}
    v_mad_u32_u24 v111, v111, v{cM}, v{c1}
    v_add_u32 v112, s66, v3
    v_lshlrev_b32 v112, 2, v112
    v_mov_b32 v113, s57
    v_cmp_ge_u32 vcc, s67, v3
    ds_read_b64_tr_b16 {V(R.XB[0],2)}, v110
    ds_read_b64_tr_b16 {V(R.XB[0]+2,2)}, v111
    ds_read_b64_tr_b16 {V(R.XB[1],2)}, v110 offset:64
    ds_read_b64_tr_b16 {V(R.XB[1]+2,2)}, v111 offset:64
    s_mov_b64 exec, vcc
    ds_or_b32 v112, v113 offset:{MASK}
    s_cmp_gt_u32 s67, 7
    s_cselect_b64 exec, 1, 0
    ds_write_b32 v119, v119 offset:{FLAG-4}
    s_mov_b64 exec, -1''')
    a(f'''v_add_u32 {V(R.vR)}, s58, {V(R.vR)}
    v_add_u32 {V(R.vQ)}, s58, {V(R.vQ)}
    v_add_u32 {V(R.vK)}, s58, {V(R.vK)}
    v_subrev_u32 v110, s63, v{cS}
    v_and_b32 v110, 7, v110
    v_add_u32 v110, s63, v110
    v_and_b32 v110, 63, v110
    v_lshlrev_b32 v110, 20, v110
    v_sub_u32 {V(R.vK)}, {V(R.vK)}, v110''')
    a.cond_end('L_nowin')
    for j in range(4): a(P.vr(1,j,128))
    a(P.fe0)
    a('s_waitcnt lgkmcnt(0)\ns_barrier')
    stamp(a,'B2b')
    a(f'ds_read_b32 v10, v119 offset:{FLAG-4}')
    a(P.fe1); a(P.fq(0))
    a('v_cmp_ne_u32 vcc, 0, v10\ns_cbranch_vccnz L_slow')
    a(f's_cmp_eq_u32 {sCNT}, 0\ns_cbranch_scc1 L_epi')
    a(P.xa)
    a('s_waitcnt lgkmcnt(0)')
    main_loop(a)
    stamp(a,'loopend')
    a(f'''v_and_b32 v76, 31, v3
    v_lshlrev_b32 v76, 2, v76
    v_add_u32 v77, {WX}, v76
    ds_read2_b32 v[78:79], v77 offset0:0 offset1:32
    v_lshrrev_b32 v80, 5, v3
    v_subrev_u32 v80, s63, v80
    s_add_u32 s57, s66, s3
    s_mul_i32 s58, s57, {MSTR}
    s_add_u32 s58, s58, {MA}
    s_lshl_b32 s57, s57, 7
    s_add_u32 s57, s57, {XZ}
    v_add_u32 v81, s58, v76
    v_add_u32 v82, s57, v76
    s_movk_i32 s58, {MSTR}''')
    for j in range(4):
        A0=R.ACC[0]+4*j; A1=R.ACC[1]+4*j
        a(f'''v_add_u32 v83, {2*j}, v80
        v_and_b32 v83, 7, v83
        v_cmp_ge_u32 vcc, s67, v83
        s_cbranch_vccz L_nf{j}''')
        a.cond_begin()
        a(f'v_mad_u32_u24 v84, v83, s58, v81\nv_lshl_add_u32 v85, v83, 7, v82')
        for q in range(1,4): a(f'v_mul_f32 v{A0+q}, v{A0+q}, v78')
        for q in range(1,4): a(f'v_fmac_f32 v{A0+q}, v{A1+q}, v79')
        xyz_reduce(a, V(A0+1), V(A0+2), V(A0+3))
        a(f'''s_mov_b64 exec, vcc
        ds_write2_b32 v84, v{A0}, v{A1} offset0:0 offset1:32
        ds_write_b32 v85, v{A0+1}
        s_mov_b64 exec, -1''')
        a.cond_end(f'L_nf{j}')
    WFr=44; HF=60; HR=68; S=12; U=28
    a(f'''L_epi:
    s_nop 7
    s_waitcnt vmcnt(0) lgkmcnt(0)
    s_cmp_ge_u32 s3, 12
    s_cbranch_scc1 L_posw''')
    st=a.state()
    a(f'''s_and_b32 s57, s3, 3
    s_lshr_b32 s58, s3, 2
    s_lshl_b32 s59, s57, 12
    s_add_u32 s59, s59, {WF}''')
    for kb in range(4): a(f'buffer_load_dwordx4 {V(WFr+4*kb,4)}, v2, s[24:27], s59 offen offset:{1024*kb}{SC}')
    a(f'''s_lshl_b32 s59, s17, 7
    s_add_u32 s28, s4, s59
    s_addc_u32 s29, s5, 0
    s_and_b32 s29, s29, 0xffff
    s_lshl_b32 s30, s18, 7
    s_mov_b32 s31, 0x20000
    s_add_u32 s32, s12, s59
    s_addc_u32 s33, s13, 0
    s_and_b32 s33, s33, 0xffff
    s_mov_b32 s34, s30
    s_mov_b32 s35, 0x20000
    s_lshl_b32 s58, s58, 4
    v_and_b32 v76, 15, v3
    v_add_u32 v76, s58, v76
    v_lshrrev_b32 v77, 4, v3
    v_lshlrev_b32 v78, 7, v76
    v_lshl_add_u32 v79, v77, 4, v78
    v_lshl_add_u32 v78, v77, 3, v78
    s_lshl_b32 s57, s57, 5
    v_add_u32 v78, s57, v78
    buffer_load_dwordx4 {V(HF,4)}, v79, s[28:31], 0 offen
    buffer_load_dwordx4 {V(HF+4,4)}, v79, s[28:31], 0 offen offset:64
    buffer_load_dwordx2 {V(HR,2)}, v78, s[28:31], 0 offen
    v_lshlrev_b32 v80, 2, v76
    s_mov_b32 s58, {MA}
    v_lshl_add_u32 v77, v77, 5, s58
    s_movk_i32 s58, {MSTR}
    s_waitcnt lgkmcnt(0)
    s_barrier''')
    stamp(a,'B4')
    def psum(node, base, stride, reads, n, tag):
        a(f'''ds_read_b32 v80, v80 offset:{MASK}
        v_ffbl_b32 v81, v80
        v_bcnt_u32_b32 v80, v80, 0
        v_add_u32 v81, v81, {node}
        v_mad_u32_u24 v81, v81, {stride}, {base}
        v_cmp_lt_u32 vcc, 0, v80
        v_bfrev_b32 v84, 2
        v_cndmask_b32 v82, v84, v81, vcc''')
        for k,o in enumerate(reads): a(f'ds_read_b128 {V(S+4*k,4)}, v82 offset:{o}')
        a(f's_mov_b32 s59, 1')
        a(f's_nop 1\nL_ps{tag}:')
        a(f'''v_add_u32 v81, {stride}, v81
        v_cmp_lt_u32 vcc, s59, v80
        v_cndmask_b32 v82, v84, v81, vcc''')
        for k,o in enumerate(reads): a(f'ds_read_b128 {V(U+4*k,4)}, v82 offset:{o}')
        a('s_add_u32 s59, s59, 1\nv_cmp_lt_u32 vcc, s59, v80')
        for k in range(n//2): a(f'v_pk_add_f32 {V(S+2*k,2)}, {V(S+2*k,2)}, {V(U+2*k,2)}')
        a(f's_cbranch_vccnz L_ps{tag}')
    psum('v76', 'v77', 's58', [0,16,128,144], 16, 'h')
    a(f'{MF16} v[84:87], {V(WFr,4)}, {V(HF,4)}, 0')
    for k in range(8): a(f'v_cvt_pk_bf16_f32 v{S+k}, v{S+2*k}, v{S+2*k+1}')
    a(f'''{MF16} v[84:87], {V(WFr+4,4)}, {V(HF+4,4)}, v[84:87]
    {MF16} v[88:91], {V(WFr+8,4)}, {V(S,4)}, 0
    {MF16} v[88:91], {V(WFr+12,4)}, {V(S+4,4)}, v[88:91]
    v_lshlrev_b32 v92, 16, v{HR}
    v_and_b32 v93, 0xffff0000, v{HR}
    v_lshlrev_b32 v94, 16, v{HR+1}
    v_and_b32 v95, 0xffff0000, v{HR+1}
    s_mov_b32 s59, {hex(fbits(LN2))}''')
    for i in range(4): a(f'v_fma_f32 v{84+i}, v{84+i}, s62, v{88+i}')
    for i in range(4): a(f'v_exp_f32 v{88+i}, -v{84+i}')
    for i in range(4): a(f'v_mul_f32 v{84+i}, s59, v{84+i}')
    for i in range(4): a(f'v_add_f32 v{88+i}, 1.0, v{88+i}')
    for i in range(4): a(f'v_rcp_f32 v{88+i}, v{88+i}')
    for i in range(4): a(f'v_fmac_f32 v{92+i}, v{84+i}, v{88+i}')
    a(f'''v_cvt_pk_bf16_f32 v92, v92, v93
    v_cvt_pk_bf16_f32 v93, v94, v95
    buffer_store_dwordx2 v[92:93], v78, s[32:35], 0 offen''')
    if OPT['stamp']:
        stamp(a,'issued'); a('s_waitcnt vmcnt(0)'); stamp(a,'drained'); stamp_out(a)
    a('s_endpgm')
    a.set_state(st)
    a(f'''L_posw:
    s_sub_u32 s58, s3, 12
    s_lshl_b32 s58, s58, 4
    v_lshrrev_b32 v76, 2, v3
    v_add_u32 v76, s58, v76
    v_and_b32 v78, 3, v3
    v_add_u32 v79, s17, v76
    v_mul_u32_u24 v79, 6, v79
    v_lshl_add_u32 v79, v78, 1, v79
    v_cmp_gt_u32 vcc, s18, v76
    v_cmp_gt_u32 s[40:41], 3, v78
    s_and_b64 vcc, vcc, s[40:41]
    v_bfrev_b32 v84, 2
    v_cndmask_b32 v79, v84, v79, vcc
    buffer_load_ushort v86, v79, s[8:11], 0 offen
    v_bfrev_b32 v77, v78
    v_lshrrev_b32 v77, 26, v77
    v_add_u32 v77, {XZ}, v77
    v_lshlrev_b32 v80, 2, v76
    s_add_u32 s32, s12, 1280000
    s_addc_u32 s33, s13, 0
    s_and_b32 s33, s33, 0xffff
    s_mov_b32 s34, 60000
    s_mov_b32 s35, 0x20000
    s_movk_i32 s58, 128
    s_waitcnt lgkmcnt(0)
    s_barrier
    s_cmp_eq_u32 s3, 15
    s_cbranch_scc1 L_end''')
    psum('v76', 'v77', 's58', [0,64], 8, 'p')
    a(f'''v_pk_add_f32 {V(S,2)}, {V(S,2)}, {V(S+2,2)}
    v_pk_add_f32 {V(S+4,2)}, {V(S+4,2)}, {V(S+6,2)}
    v_pk_add_f32 {V(S,2)}, {V(S,2)}, {V(S+4,2)}
    v_lshlrev_b32 v86, 16, v86
    v_add_f32 v{S}, v{S}, v{S+1}
    v_add_f32 v{S}, v{S}, v86
    v_cvt_pk_bf16_f32 v{S}, v{S}, v{S}
    buffer_store_short v{S}, v79, s[32:35], 0 offen
    s_endpgm''')
    a.set_state(stslow)
    a(f'''L_slow0:
    s_cmp_lg_u32 s3, 15
    s_cbranch_scc1 L_slow1
    s_cmp_lg_u32 s2, 0
    s_cbranch_scc1 L_slow1
    v_mov_b32 v110, {EP}
    v_mov_b32 v111, s39
    s_mov_b64 exec, 1
    buffer_store_dword v111, v110, s[24:27], 0 offen
    s_mov_b64 exec, -1
    L_slow1:
    L_slow:
    s_waitcnt vmcnt(0) lgkmcnt(0)
    s_mov_b32 s40, s3
    v_lshlrev_b32 v12, 1, v3
    v_cmp_gt_u32 s[42:43], 32, v3
    v_mov_b32 v13, 1.0
    v_mov_b32 v14, {hex(fbits(LOG2E*2.0**KS))}
    v_cndmask_b32 v13, v13, v14, s[42:43]
    v_and_b32 v14, 31, v3
    v_lshlrev_b32 v14, 2, v14
    v_lshlrev_b32 v15, 2, v3
    s_add_u32 s6, s6, {128*128}
    s_addc_u32 s7, s7, 0
    global_load_ushort v16, v12, s[6:7]
    global_load_ushort v17, v12, s[6:7] offset:128
    ds_read_b32 v18, v15 offset:{WX}
    v_lshlrev_b32 v16, 16, v16
    v_lshlrev_b32 v17, 16, v17
    v_mul_f32 v16, s62, v16
    v_mul_f32 v17, s62, v17
    s_lshl_b32 s56, s16, 3
    s_add_u32 s56, s56, {GR}
    s_waitcnt vmcnt(0) lgkmcnt(0)
    L_sn:
    s_cmp_ge_u32 s40, s18
    s_cbranch_scc1 L_epi
    s_add_u32 s41, s17, s40
    s_and_b32 s44, s41, 63
    s_lshl_b32 s44, s44, 4
    s_mul_i32 s45, s41, 6
    v_mov_b32 v19, s45
    buffer_load_ushort v23, v19, s[8:11], 0 offen
    buffer_load_ushort v24, v19, s[8:11], 0 offen offset:2
    buffer_load_ushort v25, v19, s[8:11], 0 offen offset:4
    s_lshl_b32 s45, s40, 7
    v_add_u32 v20, s45, v12
    ds_read_u16 v22, v20 offset:{AL}
    v_lshlrev_b32 v23, 16, v23
    v_lshlrev_b32 v24, 16, v24
    v_lshlrev_b32 v25, 16, v25
    v_lshlrev_b32 v22, 16, v22
    v_mov_b32 v26, 0
    v_mov_b32 v27, 0
    v_mov_b32 v28, 0
    v_mov_b32 v29, 0
    s_mov_b32 s46, 0
    L_sc:
    s_lshl_b32 s47, s46, 11
    v_mov_b32 v19, s47
    buffer_load_dwordx2 v[30:31], v19, s[24:27], s56 offen{SC}
    v_readfirstlane_b32 s48, v30
    v_readfirstlane_b32 s47, v31
    s_cmp_eq_u32 s47, s39
    s_cselect_b32 s48, s48, 0
    s_mul_i32 s49, s46, {CHS}
    s_add_u32 s49, s49, {RECS}
    s_and_b32 s47, s48, 0xffff
    s_add_u32 s49, s49, s47
    s_lshr_b32 s48, s48, 16
    s_mov_b32 s50, 0
    L_sb:
    s_cmp_ge_u32 s50, s48
    s_cbranch_scc1 L_sbe
    v_lshl_add_u32 v19, v3, 3, s50
    buffer_load_dwordx2 v[30:31], v19, s[24:27], s49 offen{SC}
    v_cmp_gt_u32 s[52:53], s48, v19
    v_and_b32 v32, 0xffff, v30
    v_cmp_eq_u32 vcc, s44, v32
    s_and_b64 s[52:53], s[52:53], vcc
    L_se:
    s_cmp_eq_u64 s[52:53], 0
    s_cbranch_scc1 L_see
    s_ff1_i32_b64 s51, s[52:53]
    s_bitset0_b64 s[52:53], s51
    v_readlane_b32 s54, v30, s51
    v_readlane_b32 s55, v31, s51
    s_and_b32 s54, s54, 0xffff0000
    s_and_b32 s55, s55, 0xffff
    s_lshr_b32 s57, s55, 1
    s_add_u32 s57, s57, s55
    s_lshl_b32 s55, s55, 5
    v_mov_b32 v33, s57
    v_add_u32 v36, s55, v14
    buffer_load_ushort v37, v33, s[8:11], 0 offen
    buffer_load_ushort v38, v33, s[8:11], 0 offen offset:2
    buffer_load_ushort v39, v33, s[8:11], 0 offen offset:4
    buffer_load_dword v36, v36, s[24:27], 0 offen{SC}
    v_lshlrev_b32 v37, 16, v37
    v_lshlrev_b32 v38, 16, v38
    v_lshlrev_b32 v39, 16, v39
    v_sub_f32 v37, v23, v37
    v_sub_f32 v38, v24, v38
    v_sub_f32 v39, v25, v39
    v_cvt_pk_bf16_f32 v40, 1.0, v37
    v_mul_f32 v37, v37, v37
    v_cvt_pk_bf16_f32 v41, v38, v39
    v_dot2_f32_bf16 v37, v41, v41, v37
    v_cvt_pk_bf16_f32 v37, 0, v37
    v_lshlrev_b32 v42, 16, v36
    v_cndmask_b32 v36, v36, v42, s[42:43]
    v_add_f32 v36, v36, v22
    v_mul_f32 v36, v36, v13
    v_fmac_f32 v36, v37, v16
    v_fmac_f32 v36, s54, v17
    v_exp_f32 v42, -v36
    v_add_f32 v42, 1.0, v42
    v_rcp_f32 v42, v42
    v_mul_f32 v36, v36, v42
    v_and_b32 v40, 0xffff0000, v40
    v_lshlrev_b32 v42, 16, v41
    v_and_b32 v41, 0xffff0000, v41
    v_add_f32 v26, v26, v36
    v_fmac_f32 v27, v36, v40
    v_fmac_f32 v28, v36, v42
    v_fmac_f32 v29, v36, v41
    s_branch L_se
    L_see:
    s_add_u32 s50, s50, 512
    s_branch L_sb
    L_sbe:
    s_add_u32 s46, s46, 1
    s_cmp_lt_u32 s46, 256
    s_cbranch_scc1 L_sc
    s_nop 4
    v_mul_f32 v27, v27, v18
    v_mul_f32 v28, v28, v18
    v_mul_f32 v29, v29, v18''')
    xyz_reduce(a,'v27','v28','v29')
    a(f'''v_mov_b32 v28, v27
    v_permlane32_swap_b32 v27, v28
    v_add_f32 v27, v27, v28
    s_mul_i32 s45, s40, {MSTR}
    s_add_u32 s45, s45, {MA}
    v_add_u32 v19, s45, v15
    ds_write_b32 v19, v26
    s_lshl_b32 s45, s40, 7
    v_add_u32 v19, s45, v14
    ds_write_b32 v19, v27 offset:{XZ}
    s_lshl_b32 s45, s40, 2
    v_mov_b32 v19, s45
    v_mov_b32 v20, 1
    ds_write_b32 v19, v20 offset:{MASK}
    s_add_u32 s40, s40, 16
    s_waitcnt lgkmcnt(0)
    s_branch L_sn
    L_end:
    s_endpgm''')
    return a

def diag():
    ia,ib,mult=OPT['ia'],OPT['ib'],OPT.get('mult',20)
    a=Asm()
    a(f'''s_cmp_ge_u32 s2, 1
    s_cbranch_scc1 L3_end
    s_load_dwordx2 s[4:5], s[0:1], 80
    s_memrealtime s[8:9]
    v_lshlrev_b32 v1, 7, v0
    v_add_u32 v2, {STB+4*ia}, v1
    v_add_u32 v3, {STB+4*ib}, v1
    s_waitcnt lgkmcnt(0)''')
    for i in range(4):
        a(f'global_load_dword v{10+i}, v2, s[4:5]\nglobal_load_dword v{20+i}, v3, s[4:5]\nv_add_u32 v2, 8192, v2\nv_add_u32 v3, 8192, v3')
    for i in range(4): a(f'v_sub_u32 v{10+i}, s8, v{10+i}\nv_sub_u32 v{20+i}, s8, v{20+i}')
    opa='max' if not OPT.get('amax') else 'min'; opb='min' if not OPT.get('bmin') else 'max'
    for i in range(1,4): a(f'v_{opa}_u32 v10, v10, v{10+i}\nv_{opb}_u32 v20, v20, v{20+i}')
    a('v_readlane_b32 s10, v10, 0\nv_readlane_b32 s11, v20, 0')
    for l in range(1,64):
        a(f'v_readlane_b32 s12, v10, {l}\nv_readlane_b32 s13, v20, {l}\ns_{opa}_u32 s10, s10, s12\ns_{opb}_u32 s11, s11, s13')
    if OPT.get('tonow'): a('s_mov_b32 s11, 0')
    a(f'''s_sub_u32 s10, s10, s11
    s_max_i32 s10, s10, 0
    s_min_u32 s10, s10, 10000
    s_mul_i32 s10, s10, {mult}
    L3_spin:
    s_memrealtime s[12:13]
    s_waitcnt lgkmcnt(0)
    s_sub_u32 s12, s12, s8
    s_cmp_lt_u32 s12, s10
    s_cbranch_scc1 L3_spin
    L3_end:
    s_endpgm''')
    return a
def build():
    N='standalone__cheap_equivariant_egnn__graph_kernel'
    a=kern()
    d='ia' in OPT
    s=HEAD+(f'; @launch kernel={N} grid=(256,1,1) block=(1024,1,1) lds=163840\n; @launch kernel=diag_kernel grid=(1,1,1) block=(64,1,1) lds=0\n' if d else '; @launch grid=(256,1,1) block=(1024,1,1) lds=163840\n')
    s+='.amdgcn_target "amdgcn-amd-amdhsa--gfx950"\n.text\n'
    s+=f'.globl {N}\n.p2align 8\n.type {N},@function\n{N}:\n'+a.text()
    if d: s+='.globl diag_kernel\n.p2align 8\n.type diag_kernel,@function\ndiag_kernel:\n'+diag().text()
    s+='.section .rodata,"a"\n.p2align 6\n'+kd(N,128)
    if d: s+='.p2align 6\n'+kd('diag_kernel',32)
    return s
if __name__=='__main__':
    out=sys.argv[1]
    for x in sys.argv[2:]:
        k,v=x.split('='); OPT[k]=int(v)
    open(out,'w').write(build())
    if names: print(len(names), ','.join(names))
```

```python
import sys, struct
from asmgen import *
import gen
from gen import V, fbits, MF, MF16, LOG2E, LN2, KS, scan64, OPT, R, P, main_loop, xyz_reduce, sLUT, sOFF, sCNT, SRD, kd, HEAD, STB
BT=0x000000; WF=0x140000; EP=0x17F000; GR=0x180000; RECS=0x200000; CHS=20480; WSEND=RECS+256*CHS+4096
OH=0; HIST=1024; BASE=1280; MASK=1536; FLAG=1792; CR=1856; WX=2368; AL=2688; POS=8832; XZ=8832
CAP=3264; VB=16000; REC=VB+CAP*4; NEGROWS=134-KS; LUT=163840-65536-NEGROWS*256
XLO=NEGROWS-32; MA=LUT+(192-XLO-1+32)*256; MSTR=272
H1=9216; OFF1=10240; SORT=11264; WL=31744; HL=48128; WHL=56320
assert REC+CAP*16<=LUT and MA+56*MSTR<=LUT+255*256 and POS+80000<=LUT+32*256 and XLO>=32
SC=' sc1'
nst=[0]
names=[]
def stamp(a, name):
    if OPT['stamp']:
        k=len(names); names.append(name)
        a(f's_memrealtime s[68:69]\ns_waitcnt lgkmcnt(0)\ns_mov_b32 s{72+k}, s68')
def stamp_out(a):
    if OPT['stamp']:
        a(f's_cmp_eq_u32 s3, {OPT.get("wave",0)}\ns_cbranch_scc0 L_nost')
        a(f's_lshl_b32 s3, s2, 7\ns_add_u32 s3, s3, {STB}\ns_mov_b64 exec, -1\nv_mov_b32 v1, s3')
        for k in range(len(names)):
            a(f'v_mov_b32 v2, s{72+k}\nglobal_store_dword v1, v2, s[14:15] offset:{4*k}')
        a(f's_waitcnt vmcnt(0)\nL_nost:')

def kern():
    a=Asm()
    PR=92
    LL=120; LLA=124
    a('''s_cmp_ge_u32 s2, 256
    s_cbranch_scc1 L_end''')
    stamp(a,'start')
    a(f'''s_load_dwordx16 s[40:55], s[0:1], 0
    s_load_dwordx2 s[14:15], s[0:1], 80
    s_load_dwordx2 s[12:13], s[0:1], 64
    v_lshrrev_b32 v1, 6, v0
    v_readfirstlane_b32 s3, v1
    v_and_b32 v3, 63, v0
    v_lshlrev_b32 v2, 4, v3
    s_and_b32 s16, s2, 7
    s_lshl_b32 s16, s16, 5
    s_lshr_b32 s19, s2, 3
    s_add_u32 s16, s16, s19
    s_mul_i32 s17, s16, 625
    s_add_u32 s18, s17, 640
    s_add_u32 s17, s17, 15
    s_lshr_b32 s17, s17, 4
    s_lshr_b32 s18, s18, 4
    s_sub_u32 s18, s18, s17
    s_cmp_ge_u32 s3, 10
    s_cbranch_scc1 L_h0''')
    st0=a.state()
    a(f'''v_lshlrev_b32 v1, 4, v0
    v_lshlrev_b32 v14, 3, v0
    s_mul_i32 s56, s2, 10000
    s_mul_i32 s57, s2, 5000
    v_cmp_gt_u32 vcc, 625, v0
    s_mov_b64 s[64:65], vcc
    s_mov_b64 exec, vcc
    s_waitcnt lgkmcnt(0)
    s_add_u32 s48, s48, s56
    s_addc_u32 s49, s49, 0
    s_add_u32 s46, s46, s56
    s_addc_u32 s47, s47, 0
    s_add_u32 s44, s44, s57
    s_addc_u32 s45, s45, 0
    global_load_dwordx4 v[4:7], v1, s[48:49]
    global_load_dwordx4 v[8:11], v1, s[46:47]
    global_load_dwordx2 v[12:13], v14, s[44:45]
    s_mov_b64 exec, -1
    s_branch L_c0''')
    stE=a.state()
    a.set_state(st0)
    a(f'''L_h0:
    s_cmp_ge_u32 s3, 14
    s_cbranch_scc1 L_h1
    s_sub_u32 s56, s3, 10
    s_lshl_b32 s57, s56, 12
    s_add_u32 s58, s57, {WL}
    s_mov_b32 m0, s58
    s_waitcnt lgkmcnt(0)
    s_add_u32 s60, s50, s57
    s_addc_u32 s61, s51, 0''')
    for i in range(4): a(f'global_load_lds_dwordx4 v2, s[60:61] offset:{1024*i}')
    a('s_branch L_c0')
    a.set_state(st0)
    a(f'''L_h1:
    s_cmp_eq_u32 s3, 15
    s_cbranch_scc1 L_h2
    v_lshrrev_b32 v4, 3, v3
    v_and_b32 v5, 7, v3
    v_xor_b32 v5, v5, v4
    v_lshlrev_b32 v5, 4, v5
    v_lshl_add_u32 v5, v4, 7, v5
    s_lshl_b32 s56, s17, 7
    s_mov_b32 m0, {HL}
    s_waitcnt lgkmcnt(0)
    s_add_u32 s28, s40, s56
    s_addc_u32 s29, s41, 0
    s_and_b32 s29, s29, 0xffff
    s_sub_u32 s30, 1280000, s56
    s_mov_b32 s31, 0x20000''')
    for i in range(4): a(f'buffer_load_dwordx4 v5, s[28:31], 0 offen offset:{1024*i} lds')
    a(f'''s_mov_b32 m0, {HL+4096}
    s_movk_i32 s56, 0x1000
    buffer_load_dwordx4 v5, s[28:31], s56 offen lds
    v_mov_b32 v8, 0
    v_mov_b32 v9, 0
    v_mov_b32 v10, 0
    v_mov_b32 v11, 0
    ds_write_b128 v2, v[8:11] offset:{H1}
    ds_write_b128 v2, v[8:11] offset:{AL+5120}
    v_cmp_gt_u32 vcc, {(CR+128-HIST)//16}, v3
    s_mov_b64 exec, vcc
    ds_write_b128 v2, v[8:11] offset:{HIST}
    s_mov_b64 exec, -1
    v_and_b32 v6, 1, v3
    v_lshlrev_b32 v6, 4, v6
    v_mov_b32 v7, 0x3f80
    v_lshlrev_b32 v6, v6, v7
    v_bfe_u32 v7, v3, 1, 2''')
    for i in range(4): a(f'v_cmp_eq_u32 vcc, {i}, v7\nv_cndmask_b32 v{12+i}, 0, v6, vcc')
    a(f'ds_write_b128 v2, v[12:15] offset:{OH}\ns_branch L_c0')
    a.set_state(st0)
    a(f'''L_h2:
    v_lshlrev_b32 v11, 1, v3
    v_mov_b32 v4, 0
    v_mov_b32 v5, 0
    v_mov_b32 v6, 0
    s_waitcnt lgkmcnt(0)
    s_add_u32 s60, s50, {128*128}
    s_addc_u32 s61, s51, 0
    global_load_short_d16_hi v4, v11, s[60:61]
    global_load_short_d16_hi v5, v11, s[60:61] offset:128
    global_load_short_d16_hi v6, v11, s[52:53]
    s_cmp_ge_u32 s2, 2
    s_cbranch_scc1 L_c0
    s_lshl_b32 s56, s2, 13
    s_mov_b32 m0, {WHL}
    s_add_u32 s60, s54, s56
    s_addc_u32 s61, s55, 0''')
    for i in range(4): a(f'global_load_lds_dwordx4 v2, s[60:61] offset:{1024*i}')
    a(f's_add_u32 s60, s60, 4096\ns_addc_u32 s61, s61, 0\ns_mov_b32 m0, {WHL+4096}')
    for i in range(4): a(f'global_load_lds_dwordx4 v2, s[60:61] offset:{1024*i}')
    a.set_state(stE)
    D_=0x00800080; B2=192-XLO-1
    a(f'''L_c0:
    s_mov_b32 s39, {EP}
    s_load_dword s39, s[14:15], s39
    s_mov_b32 s24, s14
    s_and_b32 s25, s15, 0xffff
    s_mov_b32 s26, {WSEND}
    s_mov_b32 s27, 0x20000
    s_mov_b32 s20, s14
    s_or_b32 s21, s25, 0x80000000
    s_mov_b32 s22, 1280000
    s_mov_b32 s23, 0x00c00000
    s_mov_b32 s4, s40
    s_mov_b32 s5, s41
    s_mov_b32 s8, s42
    s_and_b32 s9, s43, 0xffff
    s_mov_b32 s10, 60000
    s_mov_b32 s11, 0x20000
    s_mov_b32 s6, s50
    s_mov_b32 s7, s51
    s_mov_b32 {sLUT}, {LUT}
    s_mov_b32 {sOFF}, 0
    s_mov_b32 s60, {hex(fbits(LOG2E/2))}
    s_mov_b32 s61, {hex(D_)}
    s_mov_b32 s62, {hex(fbits(LOG2E))}
    v_lshlrev_b32 v76, 18, v0
    v_add_u32 v76, {hex(((KS+XLO)<<23)|0x8000)}, v76
    v_lshlrev_b32 v77, 3, v0
    v_add_u32 v77, {LUT+XLO*256}, v77
    v_add_u32 v78, 0x10000, v77''')
    for i in range(4): a(f'v_add_u32 v{80+i}, {hex(i<<16)}, v76')
    for i in range(4): a(f'v_mul_f32 v{80+i}, s62, v{80+i}')
    for i in range(4): a(f'v_exp_f32 v{84+i}, -v{80+i}')
    for i in range(4): a(f'v_add_f32 v{88+i}, 1.0, v{84+i}')
    for i in range(4): a(f'v_rcp_f32 v{88+i}, v{88+i}')
    for i in range(4): a(f'v_mul_f32 v{80+i}, v{80+i}, v{88+i}')
    for i in range(4): a(f'v_mul_f32 v{84+i}, -v{80+i}, v{84+i}')
    a(f'''v_cvt_pk_bf16_f32 v80, v80, v81
    v_cvt_pk_bf16_f32 v81, v82, v83
    v_cvt_pk_bf16_f32 v84, v84, v85
    v_cvt_pk_bf16_f32 v85, v86, v87
    ds_write_b64 v77, v[80:81]
    ds_write_b64 v78, v[84:85]
    v_and_b32 v76, 15, v0
    v_lshlrev_b32 v77, 19, v76
    v_or_b32 v77, {hex((KS<<23)|0x8000)}, v77''')
    for i in range(8): a(f'v_add_u32 v{80+i}, {hex(i<<16)}, v77')
    for i in range(8): a(f'v_mul_f32 v{80+i}, s60, v{80+i}')
    for i in range(4): a(f'v_cvt_pk_bf16_f32 v{LL+i}, v{80+2*i}, v{81+2*i}')
    a(f'''v_lshrrev_b32 v78, 4, v0
    v_lshl_add_u32 v79, v0, 4, {sLUT}
    v_mul_lo_u32 v80, v78, s61''')
    for i in range(4): a(f'v_add_u32 v{LL+i}, v{LL+i}, v80')
    for i in range(4): a(f'v_add_u32 v{84+i}, {hex(97*D_)}, v{LL+i}')
    a(f'''ds_write_b128 v79, v[84:87] offset:{96*256}
    v_cmp_gt_u32 vcc, {B2-128}, v78
    v_mov_b32 v80, {hex(((255-B2+128)*D_)&0xffffffff)}
    v_mov_b32 v81, {hex(161*D_)}
    v_cndmask_b32 v80, v80, v81, vcc
    v_mov_b32 v81, {(255-B2+128-160)*256}
    v_cndmask_b32 v81, v81, 0, vcc
    v_add_u32 v81, v81, v79''')
    for i in range(4): a(f'v_add_u32 v{88+i}, v80, v{LL+i}')
    a(f'''ds_write_b128 v81, v[88:91] offset:{160*256}
    v_cmp_gt_u32 vcc, {XLO}, v78
    v_mov_b32 v80, {hex(33*D_)}
    v_cndmask_b32 v80, v80, 0, vcc
    v_mov_b32 v81, {32*256}
    v_cndmask_b32 v81, v81, 0, vcc
    v_add_u32 v{LLA}, v81, v79''')
    for i in range(4): a(f'v_add_u32 v{LL+i}, v80, v{LL+i}')
    a(f'''v_mul_u32_u24 v112, 12, v0
    s_waitcnt lgkmcnt(0)
    s_mul_i32 s39, s39, 0x9e3779b1
    s_add_u32 s39, s39, 0x7f4a7c15''')
    stamp(a,'lutdone')
    def posloads():
        for i in range(5):
            a(f's_mov_b32 s56, {12288*i}\nbuffer_load_dwordx3 {V(PR+4*i,3)}, v112, s[8:11], s56 offen')
    a('s_cmp_ge_u32 s3, 10\ns_cbranch_scc1 L_h3')
    st1=a.state()
    a(f'''s_mov_b32 s58, 214749
    s_mov_b32 s59, 0x3f0
    v_mov_b32 v22, 8
    s_mul_i32 s56, s2, {CHS}
    s_add_u32 s66, s56, {RECS}
    s_add_u32 s67, s66, 10000
    s_barrier''')
    stamp(a,'B0')
    for i in range(4): a(f'v_mul_u32_u24 v{14+i}, s58, v{4+i}')
    for i in range(4): a(f'v_lshrrev_b32 v{14+i}, 21, v{14+i}')
    for i in range(4): a(f'v_and_b32 v{14+i}, 0x3fc, v{14+i}')
    a('s_mov_b64 exec, s[64:65]')
    for i in range(4): a(f'ds_add_rtn_u32 v{18+i}, v{14+i}, v22 offset:{H1}')
    a('s_mov_b64 exec, -1')
    posloads()
    for i in range(4): a(f'v_lshl_or_b32 v{25+2*i}, v{4+i}, 16, v{8+i}')
    for i in range(4): a(f'v_lshlrev_b32 v{4+i}, 4, v{4+i}')
    for i in range(4): a(f'v_lshlrev_b32 v{25+2*i}, 2, v{25+2*i}')
    for i in range(4):
        e=12+(i>>1)
        a(f'v_and_b32 v{24+2*i}, 0xffff0000, v{e}' if i&1 else f'v_lshlrev_b32 v{24+2*i}, 16, v{e}')
    for i in range(4): a(f'v_and_or_b32 v{24+2*i}, v{4+i}, s59, v{24+2*i}')
    a('s_waitcnt lgkmcnt(0)\ns_barrier')
    stamp(a,'B1')
    a(f'''ds_read_b128 v[4:7], v2 offset:{H1}
    v_add3_u32 v12, v4, v5, v6
    v_add_u32 v12, v12, v7
    v_mov_b32 v13, v12''')
    scan64(a,'v13')
    a(f'''v_sub_u32 v8, v13, v12
    v_add_u32 v9, v8, v4
    v_add_u32 v10, v9, v5
    v_add_u32 v11, v10, v6
    ds_write_b128 v2, v[8:11] offset:{OFF1}
    s_mov_b64 exec, s[64:65]''')
    for i in range(4): a(f'ds_read_b32 v{14+i}, v{14+i} offset:{OFF1}')
    for i in range(4):
        a(f'v_add_u32 v{14+i}, v{14+i}, v{18+i}')
        a(f'ds_write_b64 v{14+i}, v[{24+2*i}:{25+2*i}] offset:{SORT}')
    a('s_waitcnt lgkmcnt(0)\ns_barrier')
    stamp(a,'B2')
    a(f'''ds_read_b128 v[12:15], v1 offset:{SORT}
    ds_read_b128 v[16:19], v1 offset:{SORT+10000}
    buffer_store_dwordx4 v[12:15], v1, s[24:27], s66 offen{SC}
    buffer_store_dwordx4 v[16:19], v1, s[24:27], s67 offen{SC}
    s_mov_b64 exec, -1''')
    for i in range(4): a(f'v_lshl_or_b32 v{32+2*i}, v{4+i}, 16, v{8+i}\nv_mov_b32 v{33+2*i}, s39')
    a('s_branch L_c1')
    stE=a.state()
    a.set_state(st1); a.vm=[]
    a(f'''L_h3:
    s_cmp_ge_u32 s3, 14
    s_cbranch_scc1 L_h4
    s_setprio 1
    s_and_b32 s58, s3, 1
    s_bfe_u32 s59, s3, 0x10002
    v_lshrrev_b32 v4, 5, v3
    v_bfe_u32 v5, v3, 2, 2
    v_lshl_add_u32 v5, v4, 3, v5
    v_lshlrev_b32 v5, 7, v5
    v_and_b32 v6, 3, v3
    v_lshl_add_u32 v5, v6, 3, v5
    v_and_b32 v6, 16, v3
    v_lshl_add_u32 v5, v6, 1, v5
    s_lshl_b32 s56, s59, 13
    v_add_u32 v5, s56, v5
    v_and_b32 v6, 31, v3
    v_and_b32 v7, 7, v3
    v_xor_b32 v7, v7, v4
    v_lshlrev_b32 v7, 4, v7
    v_lshl_add_u32 v7, v6, 7, v7
    s_lshl_b32 s56, s58, 12
    v_add_u32 v8, s56, v7
    v_xor_b32 v9, 32, v8
    v_xor_b32 v10, 64, v8
    v_xor_b32 v11, 96, v8
    s_lshl_b32 s57, s58, 5
    s_add_u32 s63, s17, s57
    s_sub_u32 s57, s18, s57
    s_lshl_b32 s63, s63, 7
    s_add_u32 s28, s14, s63
    s_addc_u32 s29, s15, 0
    s_and_b32 s29, s29, 0xffff
    s_lshl_b32 s30, s57, 7
    s_mov_b32 s31, 0x20000
    s_mov_b32 s63, {hex((127-KS)<<23)}
    s_mov_b32 s64, 0x7fff0000
    s_mov_b32 s65, 0x80000000
    s_mov_b32 s66, s56
    s_waitcnt vmcnt(0)
    s_barrier''')
    H=12; W=28; D=60
    for kb in range(4):
        a(f'ds_read_b128 {V(H+4*kb,4)}, v{8+kb} offset:{HL}')
        for t in range(2):
            for u in range(2):
                a(f'ds_read_b64_tr_b16 {V(W+8*kb+4*t+2*u,2)}, v5 offset:{WL+kb*2048+u*512+t*64}')
    posloads()
    for kb in range(4):
        for t in range(2):
            a(f'{MF} {V(D+16*t,16)}, {V(H+4*kb,4)}, {V(W+8*kb+4*t,4)}, {V(D+16*t,16) if kb else 0}')
    a('''s_barrier
    s_cmp_eq_u32 s59, 0
    s_cbranch_scc1 L_apack''')
    st2=a.state()
    a('v_lshlrev_b32 v7, 2, v6\nv_lshl_add_u32 v7, v4, 9, v7')
    for j in range(4):
        rs=range(4*j,4*j+4)
        for r in rs: a(f'v_mul_f32 v{D+r}, s63, v{D+r}')
        for r in rs: a(f'v_mul_f32 v{H+r}, s62, abs(v{D+16+r})')
        for r in rs: a(f'v_cvt_pk_bf16_f32 v{D+r}, v{D+r}, 0')
        for r in rs: a(f'v_add_u32 v{H+r}, 0x8000, v{H+r}')
        for r in rs: a(f'v_sub_u32 v{H+r}, v{H+r}, v{D+r} clamp')
        for r in rs: a(f'v_and_or_b32 v{D+r}, v{D+16+r}, s65, v{D+r}')
        for r in rs: a(f'v_and_or_b32 v{D+r}, v{H+r}, s64, v{D+r}')
        for r in rs: a(f'buffer_store_dword v{D+r}, v7, s[28:31], 0 offen offset:{(8*j+(r&3))*128}{SC}')
        if j==0: a('s_cmp_eq_u32 s58, 1\ns_cbranch_scc1 L_gend')
    a('L_gend:\ns_setprio 0\ns_waitcnt lgkmcnt(0)\ns_barrier\ns_branch L_c1')
    a.set_state(st2)
    a('L_apack:\nv_lshlrev_b32 v7, 1, v6\nv_lshl_add_u32 v7, v4, 9, v7\nv_add_u32 v7, s66, v7')
    for j in range(4):
        rs=range(4*j,4*j+4)
        for r in rs: a(f'v_mul_f32 v{D+r}, s63, v{D+r}')
        for r in rs: a(f'v_mul_f32 v{D+16+r}, s62, v{D+16+r}')
        for r in rs: a(f'v_cvt_pk_bf16_f32 v{D+r}, v{D+r}, v{D+16+r}')
        for r in rs:
            a(f'ds_write_b16 v7, v{D+r} offset:{AL+(8*j+(r&3))*128}')
            a(f'ds_write_b16_d16_hi v7, v{D+r} offset:{AL+(8*j+(r&3))*128+64}')
        if j==0: a('s_cmp_eq_u32 s58, 1\ns_cbranch_scc1 L_gend')
    a('s_branch L_gend')
    a.set_state(st1)
    a(f'''L_h4:
    s_waitcnt vmcnt(0)
    s_barrier''')
    posloads()
    a(f'''s_cmp_eq_u32 s3, 14
    s_cbranch_scc1 L_h5
    v_cmp_gt_u32 vcc, 32, v3
    v_mov_b32 v80, s62
    v_mov_b32 v81, {hex((127-KS)<<23)}
    v_cndmask_b32 v80, v80, v81, vcc
    v_mul_f32 v81, v4, v80
    v_mul_f32 v82, v5, v80
    v_cvt_pk_bf16_f32 v82, v82, v81
    v_and_b32 v83, 0xffff0000, v82
    v_fma_f32 v81, v4, v80, -v83
    v_cvt_pk_bf16_f32 v81, v81, 0
    v_lshlrev_b32 v85, 2, v3
    v_mul_f32 v83, {hex(fbits(LN2))}, v6
    ds_write_b16 v11, v82 offset:{CR+128}
    ds_write_b16_d16_hi v11, v82 offset:{CR+256}
    ds_write_b16 v11, v81 offset:{CR+384}
    ds_write_b32 v85, v83 offset:{WX}
    s_cmp_ge_u32 s2, 2
    s_cbranch_scc1 L_h5
    v_lshrrev_b32 v4, 4, v3
    v_bfe_u32 v5, v3, 2, 2
    v_lshl_add_u32 v5, v4, 3, v5
    v_lshlrev_b32 v5, 7, v5
    v_and_b32 v6, 3, v3
    v_lshl_add_u32 v5, v6, 3, v5
    s_lshl_b32 s56, s2, 11
    s_add_u32 s56, s56, {WF}''')
    for nt in range(4):
        for kb in range(2):
            for u in range(2):
                a(f'ds_read_b64_tr_b16 {V(12+8*nt+4*kb+2*u,2)}, v5 offset:{WHL+kb*4096+u*512+nt*32}')
    for nt in range(4):
        for kb in range(2): a(f'buffer_store_dwordx4 {V(12+8*nt+4*kb,4)}, v2, s[24:27], s56 offen offset:{kb*1024}{SC}')
        a('s_add_u32 s56, s56, 4096')
    a('L_h5:\ns_waitcnt lgkmcnt(0)\ns_barrier\ns_barrier')
    a.set_state(stE)
    a('L_c1:')
    stamp(a,'issued')
    cS=10; cR=11; cM=125; c0=126; c1=127; vG=113; vRA=114; vQ16=115
    a(f'''v_lshrrev_b32 v76, 5, v3
    v_bfe_u32 v{cR}, v3, 2, 2
    v_and_b32 v78, 3, v3
    v_bfe_u32 v79, v3, 4, 1
    v_lshlrev_b32 v80, 3, v78
    v_lshl_add_u32 v80, v79, 5, v80
    v_cmp_gt_u32 vcc, 32, v3
    v_mov_b32 v81, 128
    v_cndmask_b32 v{cM}, 0, v81, vcc
    v_mov_b32 v81, {CR}
    v_lshl_add_u32 v82, v{cR}, 7, v81
    v_mov_b32 v83, {AL}
    v_cndmask_b32 v81, v81, v83, vcc
    v_cndmask_b32 v82, v82, v83, vcc
    v_add_u32 v{c0}, v81, v80
    v_add_u32 v{c1}, v82, v80
    s_mov_b32 s56, {VB}
    v_lshl_add_u32 {V(R.vV)}, v76, 6, s56
    s_mov_b32 s56, {REC}
    v_and_b32 v80, 1, v{cR}
    v_bfe_u32 v81, v3, 3, 2
    v_lshl_add_u32 v82, v81, 2, v78
    v_lshl_add_u32 v82, v80, 4, v82
    v_lshl_add_u32 {V(R.vR)}, v82, 4, s56
    v_lshrrev_b32 v81, 1, v{cR}
    v_lshl_add_u32 v81, v80, 2, v81
    v_lshl_add_u32 v81, v76, 4, v81
    v_lshl_add_u32 {V(R.vK)}, v81, 4, s56
    v_lshrrev_b32 v82, 1, v78
    v_and_b32 v83, 1, v78
    v_lshl_add_u32 v82, v82, 2, v83
    v_lshl_add_u32 {V(R.vQ)}, v82, 5, {V(R.vK)}
    v_lshl_add_u32 v{cS}, v79, 2, v78
    v_bfe_u32 v80, v0, 2, 5
    s_lshr_b32 s56, s3, 1
    v_lshl_add_u32 v81, v80, 3, s56
    v_lshlrev_b32 v{vG}, 11, v81
    v_lshlrev_b32 v{vQ16}, 4, v78
    s_mov_b32 s57, {CHS}
    v_mad_u32_u24 v{vRA}, v81, s57, v{vQ16}
    s_lshl_b32 s56, s56, 5
    v_add_u32 v80, s56, v80
    v_mul_u32_u24 v80, 625, v80
    v_add_u32 v80, 15, v80
    v_lshrrev_b32 v80, 4, v80
    v_lshl_add_u32 v81, v78, 5, s19
    v_add_u32 v80, v80, v81
    v_lshlrev_b32 v80, 7, v80
    v_cmp_gt_u32 vcc, 39, v81
    v_bfrev_b32 v82, 2
    v_cndmask_b32 v116, v82, v80, vcc
    v_add_u32 v80, s17, v3
    v_and_b32 v80, 63, v80
    v_lshlrev_b32 v117, 2, v80
    v_lshlrev_b32 v1, 4, v0
    s_lshl_b32 s56, s2, 11
    s_add_u32 s56, s56, {GR}
    v_lshlrev_b32 v80, 5, v3
    s_waitcnt vmcnt(0)
    s_barrier''')
    stamp(a,'Bd')
    a('s_cmp_lg_u32 s3, 0\ns_cbranch_scc1 L_nogr'); a.cond_begin()
    a(f'''buffer_store_dwordx4 v[32:35], v80, s[24:27], s56 offen{SC}
    buffer_store_dwordx4 v[36:39], v80, s[24:27], s56 offen offset:16{SC}''')
    a.cond_end('L_nogr')
    for i in range(5):
        b=PR+4*i
        a(f'v_lshrrev_b32 v{b+3}, 16, v{b+2}\nv_alignbit_b32 v{b+2}, v{b+2}, v{b+1}, 16\nv_and_b32 v{b+1}, 0xffff, v{b+1}')
        if i==3: a('v_add_u32 v1, 0xc000, v1')
        if i==4: a(f'v_cmp_gt_u32 vcc, {5000-4096}, v0\ns_mov_b64 exec, vcc')
        a(f'ds_write_b128 v1, {V(b,4)} offset:{POS+16384*(i%3)}')
    a('s_mov_b64 exec, -1')
    for r in range(32): a(f'v_mov_b32 v{R.ACC[0]+r}, 0')
    a(f'''s_lshl_b32 s56, s16, 3
    s_add_u32 s56, s56, {GR}
    s_mov_b32 s57, {RECS}
    s_mov_b32 s58, 0x80078007
    s_mov_b32 s59, {1<<19}
    s_mov_b32 s60, 0x0000bf80
    s_mov_b32 s61, 0xbf800000
    s_mov_b32 s63, {POS}
    v_mov_b32 v119, 4
    s_waitcnt lgkmcnt(0)
    s_barrier''')
    stamp(a,'B0p')
    RR=[76+6*i for i in range(4)]; RK=100; PS=44; PDr=60; TM=108
    a(f'''L_poll:
    buffer_load_dwordx2 v[108:109], v{vG}, s[24:27], s56 offen{SC}
    v_xor_b32 v109, s39, v109
    v_and_or_b32 v109, v108, s58, v109
    v_cmp_ne_u32 vcc, 0, v109
    s_cbranch_vccz L_got
    s_sleep {OPT.get('slp',2)}
    s_sub_u32 s59, s59, 1
    s_cmp_lg_u32 s59, 0
    s_cbranch_scc1 L_poll
    v_cndmask_b32 v108, v108, 0, vcc
    L_got:''')
    stamp(a,'polled')
    a(f'''v_add_u32_sdwa v{vRA}, v108, v{vRA} dst_sel:DWORD dst_unused:UNUSED_PAD src0_sel:WORD_0 src1_sel:DWORD
    v_lshrrev_b32 v108, 16, v108
    v_sub_u32 v110, v108, v{vQ16}
    v_cmp_lt_i32 vcc, 128, v110
    s_mov_b64 s[48:49], vcc
    s_mov_b64 s[52:53], 0
    s_cbranch_vccz L_nr23''')
    a.cond_begin()
    a(f'''s_mov_b64 exec, vcc
    buffer_load_dwordx4 {V(RR[2]+2,4)}, v{vRA}, s[24:27], s57 offen offset:128{SC}
    buffer_load_dwordx4 {V(RR[3]+2,4)}, v{vRA}, s[24:27], s57 offen offset:192{SC}
    s_mov_b64 exec, -1
    v_cmp_lt_i32 vcc, 136, v110
    s_mov_b64 s[50:51], vcc
    v_cmp_lt_i32 vcc, 192, v110
    s_mov_b64 s[52:53], vcc
    v_cmp_lt_i32 vcc, 200, v110
    s_mov_b64 s[54:55], vcc
    v_cmp_lt_u32 vcc, 256, v108
    s_mov_b64 exec, vcc
    ds_write_b32 v119, v119 offset:{FLAG-4}
    s_mov_b64 exec, -1''')
    a.cond_end('L_nr23')
    a(f'''buffer_load_dwordx4 {V(RR[0]+2,4)}, v{vRA}, s[24:27], s57 offen{SC}
    v_cmp_lt_i32 vcc, 64, v110
    s_mov_b64 s[44:45], vcc
    v_bfrev_b32 v111, 2
    v_cndmask_b32 v111, v111, v{vRA}, vcc
    buffer_load_dwordx4 {V(RR[1]+2,4)}, v111, s[24:27], s57 offen offset:64{SC}
    buffer_load_dword v1, v116, s[24:27], 0 offen{SC}
    v_cmp_lt_i32 s[40:41], 0, v110
    v_cmp_lt_i32 s[42:43], 8, v110
    v_cmp_lt_i32 vcc, 72, v110
    s_mov_b64 s[46:47], vcc''')
    A=lambda s: RR[s>>1]+2+2*(s&1)
    def pre(i):
        for j in range(2):
            s=2*i+j
            a(f'''v_bfe_u32 v{RK+s}, v{A(s)}, 2, 8
            v_mad_u32_u16 v{PS+2*s}, v{A(s)+1}, 2, s63
            v_mad_u32_u16 v{PDr+2*s}, v{A(s)+1}, 2, s63 op_sel:[1,0,0,0]''')
        for j in range(2):
            s=2*i+j
            a(f'''s_mov_b64 exec, s[{40+2*s}:{41+2*s}]
            ds_read_b64 {V(PS+2*s,2)}, v{PS+2*s}
            ds_read_b64 {V(PDr+2*s,2)}, v{PDr+2*s}
            ds_add_rtn_u32 v{RK+s}, v{RK+s}, v119 offset:{HIST}''')
        a('s_mov_b64 exec, -1')
    def geo(i):
        sl=[2*i,2*i+1]; t=lambda k,n: TM+3*k+n
        for k,s in enumerate(sl): a(f'v_lshlrev_b32 v{t(k,0)}, 16, v{PDr+2*s}\nv_and_b32 v{t(k,1)}, 0xffff0000, v{PDr+2*s}\nv_lshlrev_b32 v{t(k,2)}, 16, v{PDr+2*s+1}')
        for k,s in enumerate(sl): a(f'v_dot2_f32_bf16 v{t(k,0)}, v{PS+2*s}, s60, v{t(k,0)}')
        for k,s in enumerate(sl): a(f'v_dot2_f32_bf16 v{t(k,1)}, v{PS+2*s}, s61, v{t(k,1)}')
        for k,s in enumerate(sl): a(f'v_dot2_f32_bf16 v{t(k,2)}, v{PS+2*s+1}, s60, v{t(k,2)}')
        for k,s in enumerate(sl): a(f'v_cvt_pk_bf16_f32 v{PDr+2*s}, 1.0, v{t(k,0)}')
        for k,s in enumerate(sl): a(f'v_mul_f32 v{t(k,0)}, v{t(k,0)}, v{t(k,0)}')
        for k,s in enumerate(sl): a(f'v_cvt_pk_bf16_f32 v{PDr+2*s+1}, v{t(k,1)}, v{t(k,2)}')
        for k,s in enumerate(sl): a(f'v_dot2_f32_bf16 v{t(k,0)}, v{PDr+2*s+1}, v{PDr+2*s+1}, v{t(k,0)}')
        for k,s in enumerate(sl): a(f'v_bfe_u32 v{PS+2*s}, v{A(s)}, 2, 8')
        for k,s in enumerate(sl): a(f'v_and_b32 v{PS+2*s+1}, 0xffff, v{A(s)+1}')
        for k,s in enumerate(sl): a(f'v_cvt_pk_bf16_f32 v{A(s)+1}, v{t(k,0)}, v{t(k,0)}')
    pre(0); pre(1); geo(0); geo(1)
    a('s_cmp_eq_u64 s[48:49], 0\ns_cbranch_scc1 L_np2'); a.cond_begin()
    pre(2); geo(2)
    a('s_cmp_eq_u64 s[52:53], 0\ns_cbranch_scc1 L_np2')
    pre(3); geo(3)
    a.cond_end('L_np2')
    a('s_waitcnt lgkmcnt(0)\ns_barrier')
    stamp(a,'B1p')
    vC=108; vI=109
    a(f'''ds_read_b32 v{vC}, v117 offset:{HIST}
    ds_write_b128 v{LLA}, {V(LL,4)}
    v_mov_b32 v{vI}, v{vC}''')
    scan64(a,V(vI))
    a(f'''v_sub_u32 v{vC}, v{vI}, v{vC}
    v_readlane_b32 s56, v{vI}, 63
    ds_write_b32 v117, v{vC} offset:{BASE}''')
    def rb(sl):
        for s in sl: a(f's_mov_b64 exec, s[{40+2*s}:{41+2*s}]\nds_read_b32 v{PS+2*s}, v{PS+2*s} offset:{BASE}')
        a('s_mov_b64 exec, -1')
    def wv(sl):
        for s in sl: a(f'v_add_u32 v{RK+s}, v{RK+s}, v{PS+2*s}')
        for s in sl: a(f's_mov_b64 exec, s[{40+2*s}:{41+2*s}]\nds_write_b32 v{RK+s}, v{PS+2*s+1} offset:{VB}')
        a('s_mov_b64 exec, -1')
    rb(range(4))
    a(f'''s_cmp_gt_u32 s56, {4*(CAP-32)}
    s_cbranch_scc1 L_slow0
    s_add_u32 s57, s56, 124
    s_lshr_b32 s57, s57, 7
    s_lshr_b32 s58, s57, 4
    s_and_b32 s57, s57, 15
    s_mul_i32 s59, s58, s3
    s_min_u32 s63, s3, s57
    s_add_u32 s59, s59, s63
    s_cmp_lt_u32 s3, s57
    s_addc_u32 {sCNT}, s58, 0
    s_lshl_b32 s64, s59, 7
    v_add_u32 {V(R.vV)}, s64, {V(R.vV)}''')
    stslow=a.state()
    wv(range(4))
    a('s_cmp_eq_u64 s[48:49], 0\ns_cbranch_scc1 L_nv2'); a.cond_begin()
    rb([4,5]); wv([4,5])
    a('s_cmp_eq_u64 s[52:53], 0\ns_cbranch_scc1 L_nv2')
    rb([6,7]); wv([6,7])
    a.cond_end('L_nv2')
    a('s_cmp_lg_u32 s3, 15\ns_cbranch_scc1 L_nopad'); a.cond_begin()
    a(f'''v_lshl_add_u32 v110, v3, 2, s56
    v_lshlrev_b32 v111, 2, v110
    s_mov_b32 exec_hi, 0
    ds_write_b32 v110, v12 offset:{VB}
    ds_write_b128 v111, v[12:15] offset:{REC}
    s_mov_b32 exec_hi, -1
    s_cmp_lg_u32 s2, 0
    s_cbranch_scc1 L_nopad
    v_mov_b32 v110, {EP}
    v_mov_b32 v111, s39
    s_mov_b64 exec, 1
    buffer_store_dword v111, v110, s[24:27], 0 offen
    s_mov_b64 exec, -1''')
    a.cond_end('L_nopad')
    a('s_waitcnt lgkmcnt(0)\ns_barrier')
    stamp(a,'B2a')
    a(f's_cmp_eq_u32 {sCNT}, 0\ns_cbranch_scc1 L_nog'); a.cond_begin()
    for j in range(4): a(P.vr(0,j,0))
    for r in range(16): a(P.ld(0,r))
    a.cond_end('L_nog')
    def wr(sl):
        for s in sl: a(f'v_lshlrev_b32 v{RK+s}, 2, v{RK+s}')
        for s in sl:
            a(f's_mov_b64 exec, s[{40+2*s}:{41+2*s}]\nds_write2_b64 v{RK+s}, {V(PDr+2*s,2)}, {V(A(s),2)} offset0:0 offset1:1' if 0 else
              f'v_mov_b32 v{A(s)-2}, v{PDr+2*s}\nv_mov_b32 v{A(s)-1}, v{PDr+2*s+1}\ns_mov_b64 exec, s[{40+2*s}:{41+2*s}]\nds_write_b128 v{RK+s}, {V(A(s)-2,4)} offset:{REC}\ns_mov_b64 exec, -1')
    wr([0,2,1,3])
    a('s_cmp_eq_u64 s[48:49], 0\ns_cbranch_scc1 L_nw2'); a.cond_begin()
    wr([4,5])
    a('s_cmp_eq_u64 s[52:53], 0\ns_cbranch_scc1 L_nw2')
    wr([6,7])
    a.cond_end('L_nw2')
    a(f's_cmp_eq_u32 {sCNT}, 0\ns_cbranch_scc1 L_nowin'); a.cond_begin()
    a(f'''s_lshl_b32 s65, {sCNT}, 7
    s_add_u32 s65, s65, s64
    s_min_u32 s65, s65, s56
    s_sub_u32 s65, s65, 4
    v_cmp_ge_u32 vcc, s64, v{vI}
    s_bcnt1_i32_b64 s66, vcc
    v_cmp_ge_u32 vcc, s65, v{vI}
    s_bcnt1_i32_b64 s67, vcc
    s_sub_u32 s67, s67, s66
    s_add_u32 s63, s17, s66
    s_lshl_b32 s57, 1, s3
    s_lshl_b32 s58, s64, 2
    v_subrev_u32 v110, s63, v{cR}
    v_and_b32 v110, 7, v110
    v_xor_b32 v111, 4, v110
    v_add_u32 v110, s66, v110
    v_add_u32 v111, s66, v111
    v_mad_u32_u24 v110, v110, v{cM}, v{c0}
    v_mad_u32_u24 v111, v111, v{cM}, v{c1}
    v_add_u32 v112, s66, v3
    v_lshlrev_b32 v112, 2, v112
    v_mov_b32 v113, s57
    v_cmp_ge_u32 vcc, s67, v3
    ds_read_b64_tr_b16 {V(R.XB[0],2)}, v110
    ds_read_b64_tr_b16 {V(R.XB[0]+2,2)}, v111
    ds_read_b64_tr_b16 {V(R.XB[1],2)}, v110 offset:64
    ds_read_b64_tr_b16 {V(R.XB[1]+2,2)}, v111 offset:64
    s_mov_b64 exec, vcc
    ds_or_b32 v112, v113 offset:{MASK}
    s_cmp_gt_u32 s67, 7
    s_cselect_b64 exec, 1, 0
    ds_write_b32 v119, v119 offset:{FLAG-4}
    s_mov_b64 exec, -1''')
    a(f'''v_add_u32 {V(R.vR)}, s58, {V(R.vR)}
    v_add_u32 {V(R.vQ)}, s58, {V(R.vQ)}
    v_add_u32 {V(R.vK)}, s58, {V(R.vK)}
    v_subrev_u32 v110, s63, v{cS}
    v_and_b32 v110, 7, v110
    v_add_u32 v110, s63, v110
    v_and_b32 v110, 63, v110
    v_lshlrev_b32 v110, 20, v110
    v_sub_u32 {V(R.vK)}, {V(R.vK)}, v110''')
    a.cond_end('L_nowin')
    for j in range(4): a(P.vr(1,j,128))
    a(P.fe0)
    a('s_waitcnt lgkmcnt(0)\ns_barrier')
    stamp(a,'B2b')
    a(f'ds_read_b32 v10, v119 offset:{FLAG-4}')
    a(P.fe1); a(P.fq(0))
    a('v_cmp_ne_u32 vcc, 0, v10\ns_cbranch_vccnz L_slow')
    a(f's_cmp_eq_u32 {sCNT}, 0\ns_cbranch_scc1 L_epi')
    a(P.xa)
    a('s_waitcnt lgkmcnt(0)')
    main_loop(a)
    stamp(a,'loopend')
    a(f'''v_and_b32 v76, 31, v3
    v_lshlrev_b32 v76, 2, v76
    v_add_u32 v77, {WX}, v76
    ds_read2_b32 v[78:79], v77 offset0:0 offset1:32
    v_lshrrev_b32 v80, 5, v3
    v_subrev_u32 v80, s63, v80
    s_add_u32 s57, s66, s3
    s_mul_i32 s58, s57, {MSTR}
    s_add_u32 s58, s58, {MA}
    s_lshl_b32 s57, s57, 7
    s_add_u32 s57, s57, {XZ}
    v_add_u32 v81, s58, v76
    v_add_u32 v82, s57, v76
    s_movk_i32 s58, {MSTR}''')
    for j in range(4):
        A0=R.ACC[0]+4*j; A1=R.ACC[1]+4*j
        a(f'''v_add_u32 v83, {2*j}, v80
        v_and_b32 v83, 7, v83
        v_cmp_ge_u32 vcc, s67, v83
        s_cbranch_vccz L_nf{j}''')
        a.cond_begin()
        a(f'v_mad_u32_u24 v84, v83, s58, v81\nv_lshl_add_u32 v85, v83, 7, v82')
        for q in range(1,4): a(f'v_mul_f32 v{A0+q}, v{A0+q}, v78')
        for q in range(1,4): a(f'v_fmac_f32 v{A0+q}, v{A1+q}, v79')
        xyz_reduce(a, V(A0+1), V(A0+2), V(A0+3))
        a(f'''s_mov_b64 exec, vcc
        ds_write2_b32 v84, v{A0}, v{A1} offset0:0 offset1:32
        ds_write_b32 v85, v{A0+1}
        s_mov_b64 exec, -1''')
        a.cond_end(f'L_nf{j}')
    WFr=44; HF=60; HR=68; S=12; U=28
    a(f'''L_epi:
    s_nop 7
    s_waitcnt vmcnt(0) lgkmcnt(0)
    s_cmp_ge_u32 s3, 12
    s_cbranch_scc1 L_posw''')
    st=a.state()
    a(f'''s_and_b32 s57, s3, 3
    s_lshr_b32 s58, s3, 2
    s_lshl_b32 s59, s57, 12
    s_add_u32 s59, s59, {WF}''')
    for kb in range(4): a(f'buffer_load_dwordx4 {V(WFr+4*kb,4)}, v2, s[24:27], s59 offen offset:{1024*kb}{SC}')
    a(f'''s_lshl_b32 s59, s17, 7
    s_add_u32 s28, s4, s59
    s_addc_u32 s29, s5, 0
    s_and_b32 s29, s29, 0xffff
    s_lshl_b32 s30, s18, 7
    s_mov_b32 s31, 0x20000
    s_add_u32 s32, s12, s59
    s_addc_u32 s33, s13, 0
    s_and_b32 s33, s33, 0xffff
    s_mov_b32 s34, s30
    s_mov_b32 s35, 0x20000
    s_lshl_b32 s58, s58, 4
    v_and_b32 v76, 15, v3
    v_add_u32 v76, s58, v76
    v_lshrrev_b32 v77, 4, v3
    v_lshlrev_b32 v78, 7, v76
    v_lshl_add_u32 v79, v77, 4, v78
    v_lshl_add_u32 v78, v77, 3, v78
    s_lshl_b32 s57, s57, 5
    v_add_u32 v78, s57, v78
    buffer_load_dwordx4 {V(HF,4)}, v79, s[28:31], 0 offen
    buffer_load_dwordx4 {V(HF+4,4)}, v79, s[28:31], 0 offen offset:64
    buffer_load_dwordx2 {V(HR,2)}, v78, s[28:31], 0 offen
    v_lshlrev_b32 v80, 2, v76
    s_mov_b32 s58, {MA}
    v_lshl_add_u32 v77, v77, 5, s58
    s_movk_i32 s58, {MSTR}
    s_waitcnt lgkmcnt(0)
    s_barrier''')
    stamp(a,'B4')
    def psum(node, base, stride, reads, n, tag):
        a(f'''ds_read_b32 v80, v80 offset:{MASK}
        v_ffbl_b32 v81, v80
        v_bcnt_u32_b32 v80, v80, 0
        v_add_u32 v81, v81, {node}
        v_mad_u32_u24 v81, v81, {stride}, {base}
        v_cmp_lt_u32 vcc, 0, v80
        v_bfrev_b32 v84, 2
        v_cndmask_b32 v82, v84, v81, vcc''')
        for k,o in enumerate(reads): a(f'ds_read_b128 {V(S+4*k,4)}, v82 offset:{o}')
        a(f's_mov_b32 s59, 1')
        a(f's_nop 1\nL_ps{tag}:')
        a(f'''v_add_u32 v81, {stride}, v81
        v_cmp_lt_u32 vcc, s59, v80
        v_cndmask_b32 v82, v84, v81, vcc''')
        for k,o in enumerate(reads): a(f'ds_read_b128 {V(U+4*k,4)}, v82 offset:{o}')
        a('s_add_u32 s59, s59, 1\nv_cmp_lt_u32 vcc, s59, v80')
        for k in range(n//2): a(f'v_pk_add_f32 {V(S+2*k,2)}, {V(S+2*k,2)}, {V(U+2*k,2)}')
        a(f's_cbranch_vccnz L_ps{tag}')
    psum('v76', 'v77', 's58', [0,16,128,144], 16, 'h')
    a(f'{MF16} v[84:87], {V(WFr,4)}, {V(HF,4)}, 0')
    for k in range(8): a(f'v_cvt_pk_bf16_f32 v{S+k}, v{S+2*k}, v{S+2*k+1}')
    a(f'''{MF16} v[84:87], {V(WFr+4,4)}, {V(HF+4,4)}, v[84:87]
    {MF16} v[88:91], {V(WFr+8,4)}, {V(S,4)}, 0
    {MF16} v[88:91], {V(WFr+12,4)}, {V(S+4,4)}, v[88:91]
    v_lshlrev_b32 v92, 16, v{HR}
    v_and_b32 v93, 0xffff0000, v{HR}
    v_lshlrev_b32 v94, 16, v{HR+1}
    v_and_b32 v95, 0xffff0000, v{HR+1}
    s_mov_b32 s59, {hex(fbits(LN2))}''')
    for i in range(4): a(f'v_fma_f32 v{84+i}, v{84+i}, s62, v{88+i}')
    for i in range(4): a(f'v_exp_f32 v{88+i}, -v{84+i}')
    for i in range(4): a(f'v_mul_f32 v{84+i}, s59, v{84+i}')
    for i in range(4): a(f'v_add_f32 v{88+i}, 1.0, v{88+i}')
    for i in range(4): a(f'v_rcp_f32 v{88+i}, v{88+i}')
    for i in range(4): a(f'v_fmac_f32 v{92+i}, v{84+i}, v{88+i}')
    a(f'''v_cvt_pk_bf16_f32 v92, v92, v93
    v_cvt_pk_bf16_f32 v93, v94, v95
    buffer_store_dwordx2 v[92:93], v78, s[32:35], 0 offen''')
    if OPT['stamp']:
        stamp(a,'issued'); a('s_waitcnt vmcnt(0)'); stamp(a,'drained'); stamp_out(a)
    a('s_endpgm')
    a.set_state(st)
    a(f'''L_posw:
    s_sub_u32 s58, s3, 12
    s_lshl_b32 s58, s58, 4
    v_lshrrev_b32 v76, 2, v3
    v_add_u32 v76, s58, v76
    v_and_b32 v78, 3, v3
    v_add_u32 v79, s17, v76
    v_mul_u32_u24 v79, 6, v79
    v_lshl_add_u32 v79, v78, 1, v79
    v_cmp_gt_u32 vcc, s18, v76
    v_cmp_gt_u32 s[40:41], 3, v78
    s_and_b64 vcc, vcc, s[40:41]
    v_bfrev_b32 v84, 2
    v_cndmask_b32 v79, v84, v79, vcc
    buffer_load_ushort v86, v79, s[8:11], 0 offen
    v_bfrev_b32 v77, v78
    v_lshrrev_b32 v77, 26, v77
    v_add_u32 v77, {XZ}, v77
    v_lshlrev_b32 v80, 2, v76
    s_add_u32 s32, s12, 1280000
    s_addc_u32 s33, s13, 0
    s_and_b32 s33, s33, 0xffff
    s_mov_b32 s34, 60000
    s_mov_b32 s35, 0x20000
    s_movk_i32 s58, 128
    s_waitcnt lgkmcnt(0)
    s_barrier
    s_cmp_eq_u32 s3, 15
    s_cbranch_scc1 L_end''')
    psum('v76', 'v77', 's58', [0,64], 8, 'p')
    a(f'''v_pk_add_f32 {V(S,2)}, {V(S,2)}, {V(S+2,2)}
    v_pk_add_f32 {V(S+4,2)}, {V(S+4,2)}, {V(S+6,2)}
    v_pk_add_f32 {V(S,2)}, {V(S,2)}, {V(S+4,2)}
    v_lshlrev_b32 v86, 16, v86
    v_add_f32 v{S}, v{S}, v{S+1}
    v_add_f32 v{S}, v{S}, v86
    v_cvt_pk_bf16_f32 v{S}, v{S}, v{S}
    buffer_store_short v{S}, v79, s[32:35], 0 offen
    s_endpgm''')
    a.set_state(stslow)
    a(f'''L_slow0:
    s_cmp_lg_u32 s3, 15
    s_cbranch_scc1 L_slow1
    s_cmp_lg_u32 s2, 0
    s_cbranch_scc1 L_slow1
    v_mov_b32 v110, {EP}
    v_mov_b32 v111, s39
    s_mov_b64 exec, 1
    buffer_store_dword v111, v110, s[24:27], 0 offen
    s_mov_b64 exec, -1
    L_slow1:
    L_slow:
    s_waitcnt vmcnt(0) lgkmcnt(0)
    s_mov_b32 s40, s3
    v_lshlrev_b32 v12, 1, v3
    v_cmp_gt_u32 s[42:43], 32, v3
    v_mov_b32 v13, 1.0
    v_mov_b32 v14, {hex(fbits(LOG2E*2.0**KS))}
    v_cndmask_b32 v13, v13, v14, s[42:43]
    v_and_b32 v14, 31, v3
    v_lshlrev_b32 v14, 2, v14
    v_lshlrev_b32 v15, 2, v3
    s_add_u32 s6, s6, {128*128}
    s_addc_u32 s7, s7, 0
    global_load_ushort v16, v12, s[6:7]
    global_load_ushort v17, v12, s[6:7] offset:128
    ds_read_b32 v18, v15 offset:{WX}
    v_lshlrev_b32 v16, 16, v16
    v_lshlrev_b32 v17, 16, v17
    v_mul_f32 v16, s62, v16
    v_mul_f32 v17, s62, v17
    s_lshl_b32 s56, s16, 3
    s_add_u32 s56, s56, {GR}
    s_waitcnt vmcnt(0) lgkmcnt(0)
    L_sn:
    s_cmp_ge_u32 s40, s18
    s_cbranch_scc1 L_epi
    s_add_u32 s41, s17, s40
    s_and_b32 s44, s41, 63
    s_lshl_b32 s44, s44, 4
    s_mul_i32 s45, s41, 6
    v_mov_b32 v19, s45
    buffer_load_ushort v23, v19, s[8:11], 0 offen
    buffer_load_ushort v24, v19, s[8:11], 0 offen offset:2
    buffer_load_ushort v25, v19, s[8:11], 0 offen offset:4
    s_lshl_b32 s45, s40, 7
    v_add_u32 v20, s45, v12
    ds_read_u16 v22, v20 offset:{AL}
    v_lshlrev_b32 v23, 16, v23
    v_lshlrev_b32 v24, 16, v24
    v_lshlrev_b32 v25, 16, v25
    v_lshlrev_b32 v22, 16, v22
    v_mov_b32 v26, 0
    v_mov_b32 v27, 0
    v_mov_b32 v28, 0
    v_mov_b32 v29, 0
    s_mov_b32 s46, 0
    L_sc:
    s_lshl_b32 s47, s46, 11
    v_mov_b32 v19, s47
    buffer_load_dwordx2 v[30:31], v19, s[24:27], s56 offen{SC}
    v_readfirstlane_b32 s48, v30
    v_readfirstlane_b32 s47, v31
    s_cmp_eq_u32 s47, s39
    s_cselect_b32 s48, s48, 0
    s_mul_i32 s49, s46, {CHS}
    s_add_u32 s49, s49, {RECS}
    s_and_b32 s47, s48, 0xffff
    s_add_u32 s49, s49, s47
    s_lshr_b32 s48, s48, 16
    s_mov_b32 s50, 0
    L_sb:
    s_cmp_ge_u32 s50, s48
    s_cbranch_scc1 L_sbe
    v_lshl_add_u32 v19, v3, 3, s50
    buffer_load_dwordx2 v[30:31], v19, s[24:27], s49 offen{SC}
    v_cmp_gt_u32 s[52:53], s48, v19
    v_and_b32 v32, 0xffff, v30
    v_cmp_eq_u32 vcc, s44, v32
    s_and_b64 s[52:53], s[52:53], vcc
    L_se:
    s_cmp_eq_u64 s[52:53], 0
    s_cbranch_scc1 L_see
    s_ff1_i32_b64 s51, s[52:53]
    s_bitset0_b64 s[52:53], s51
    v_readlane_b32 s54, v30, s51
    v_readlane_b32 s55, v31, s51
    s_and_b32 s54, s54, 0xffff0000
    s_and_b32 s55, s55, 0xffff
    s_lshr_b32 s57, s55, 1
    s_add_u32 s57, s57, s55
    s_lshl_b32 s55, s55, 5
    v_mov_b32 v33, s57
    v_add_u32 v36, s55, v14
    buffer_load_ushort v37, v33, s[8:11], 0 offen
    buffer_load_ushort v38, v33, s[8:11], 0 offen offset:2
    buffer_load_ushort v39, v33, s[8:11], 0 offen offset:4
    buffer_load_dword v36, v36, s[24:27], 0 offen{SC}
    v_lshlrev_b32 v37, 16, v37
    v_lshlrev_b32 v38, 16, v38
    v_lshlrev_b32 v39, 16, v39
    v_sub_f32 v37, v23, v37
    v_sub_f32 v38, v24, v38
    v_sub_f32 v39, v25, v39
    v_cvt_pk_bf16_f32 v40, 1.0, v37
    v_mul_f32 v37, v37, v37
    v_cvt_pk_bf16_f32 v41, v38, v39
    v_dot2_f32_bf16 v37, v41, v41, v37
    v_cvt_pk_bf16_f32 v37, 0, v37
    v_lshlrev_b32 v42, 16, v36
    v_cndmask_b32 v36, v36, v42, s[42:43]
    v_add_f32 v36, v36, v22
    v_mul_f32 v36, v36, v13
    v_fmac_f32 v36, v37, v16
    v_fmac_f32 v36, s54, v17
    v_exp_f32 v42, -v36
    v_add_f32 v42, 1.0, v42
    v_rcp_f32 v42, v42
    v_mul_f32 v36, v36, v42
    v_and_b32 v40, 0xffff0000, v40
    v_lshlrev_b32 v42, 16, v41
    v_and_b32 v41, 0xffff0000, v41
    v_add_f32 v26, v26, v36
    v_fmac_f32 v27, v36, v40
    v_fmac_f32 v28, v36, v42
    v_fmac_f32 v29, v36, v41
    s_branch L_se
    L_see:
    s_add_u32 s50, s50, 512
    s_branch L_sb
    L_sbe:
    s_add_u32 s46, s46, 1
    s_cmp_lt_u32 s46, 256
    s_cbranch_scc1 L_sc
    s_nop 4
    v_mul_f32 v27, v27, v18
    v_mul_f32 v28, v28, v18
    v_mul_f32 v29, v29, v18''')
    xyz_reduce(a,'v27','v28','v29')
    a(f'''v_mov_b32 v28, v27
    v_permlane32_swap_b32 v27, v28
    v_add_f32 v27, v27, v28
    s_mul_i32 s45, s40, {MSTR}
    s_add_u32 s45, s45, {MA}
    v_add_u32 v19, s45, v15
    ds_write_b32 v19, v26
    s_lshl_b32 s45, s40, 7
    v_add_u32 v19, s45, v14
    ds_write_b32 v19, v27 offset:{XZ}
    s_lshl_b32 s45, s40, 2
    v_mov_b32 v19, s45
    v_mov_b32 v20, 1
    ds_write_b32 v19, v20 offset:{MASK}
    s_add_u32 s40, s40, 16
    s_waitcnt lgkmcnt(0)
    s_branch L_sn
    L_end:
    s_endpgm''')
    return a

def diag():
    ia,ib,mult=OPT['ia'],OPT['ib'],OPT.get('mult',20)
    a=Asm()
    a(f'''s_cmp_ge_u32 s2, 1
    s_cbranch_scc1 L3_end
    s_load_dwordx2 s[4:5], s[0:1], 80
    s_memrealtime s[8:9]
    v_lshlrev_b32 v1, 7, v0
    v_add_u32 v2, {STB+4*ia}, v1
    v_add_u32 v3, {STB+4*ib}, v1
    s_waitcnt lgkmcnt(0)''')
    for i in range(4):
        a(f'global_load_dword v{10+i}, v2, s[4:5]\nglobal_load_dword v{20+i}, v3, s[4:5]\nv_add_u32 v2, 8192, v2\nv_add_u32 v3, 8192, v3')
    for i in range(4): a(f'v_sub_u32 v{10+i}, s8, v{10+i}\nv_sub_u32 v{20+i}, s8, v{20+i}')
    opa='max' if not OPT.get('amax') else 'min'; opb='min' if not OPT.get('bmin') else 'max'
    for i in range(1,4): a(f'v_{opa}_u32 v10, v10, v{10+i}\nv_{opb}_u32 v20, v20, v{20+i}')
    a('v_readlane_b32 s10, v10, 0\nv_readlane_b32 s11, v20, 0')
    for l in range(1,64):
        a(f'v_readlane_b32 s12, v10, {l}\nv_readlane_b32 s13, v20, {l}\ns_{opa}_u32 s10, s10, s12\ns_{opb}_u32 s11, s11, s13')
    if OPT.get('tonow'): a('s_mov_b32 s11, 0')
    a(f'''s_sub_u32 s10, s10, s11
    s_max_i32 s10, s10, 0
    s_min_u32 s10, s10, 10000
    s_mul_i32 s10, s10, {mult}
    L3_spin:
    s_memrealtime s[12:13]
    s_waitcnt lgkmcnt(0)
    s_sub_u32 s12, s12, s8
    s_cmp_lt_u32 s12, s10
    s_cbranch_scc1 L3_spin
    L3_end:
    s_endpgm''')
    return a
def pre_kernel():
    a=Asm()
    a(f'''s_cmp_ge_u32 s2, 1
    s_cbranch_scc1 L4_end
    s_load_dwordx2 s[4:5], s[0:1], 80
    v_lshlrev_b32 v1, 7, v0
    v_add_u32 v1, {STB+4*20}, v1
    s_waitcnt lgkmcnt(0)
    s_memrealtime s[8:9]
    s_waitcnt lgkmcnt(0)
    v_mov_b32 v2, s8
    global_store_dword v1, v2, s[4:5]
    L4_end:
    s_endpgm''')
    return a
def build():
    N='standalone__cheap_equivariant_egnn__graph_kernel'
    a=kern()
    d='ia' in OPT
    s=HEAD+('; @launch kernel=pre_kernel grid=(1,1,1) block=(256,1,1) lds=0\n' if OPT.get('pre') else '')+(f'; @launch kernel={N} grid=(256,1,1) block=(1024,1,1) lds=163840\n; @launch kernel=diag_kernel grid=(1,1,1) block=(64,1,1) lds=0\n' if d else '; @launch grid=(256,1,1) block=(1024,1,1) lds=163840\n')
    s+='.amdgcn_target "amdgcn-amd-amdhsa--gfx950"\n.text\n'
    s+=f'.globl {N}\n.p2align 8\n.type {N},@function\n{N}:\n'+a.text()
    if d: s+='.globl diag_kernel\n.p2align 8\n.type diag_kernel,@function\ndiag_kernel:\n'+diag().text()
    if OPT.get('pre'): s+='.globl pre_kernel\n.p2align 8\n.type pre_kernel,@function\npre_kernel:\n'+pre_kernel().text()
    s+='.section .rodata,"a"\n.p2align 6\n'+kd(N,128)
    if d: s+='.p2align 6\n'+kd('diag_kernel',32)
    if OPT.get('pre'): s+='.p2align 6\n'+kd('pre_kernel',32)
    return s
if __name__=='__main__':
    out=sys.argv[1]
    for x in sys.argv[2:]:
        k,v=x.split('='); OPT[k]=int(v)
    open(out,'w').write(build())
    if names: print(len(names), ','.join(names))
```

```python
import sys, struct
from asmgen import *
def V(b,n=1): return f'v{b}' if n==1 else f'v[{b}:{b+n-1}]'
def fbits(x): return struct.unpack('<I',struct.pack('<f',x))[0]
MF='v_mfma_f32_32x32x16_bf16'; MF16='v_mfma_f32_16x16x32_bf16'
LOG2E=1.4426950408889634; LN2=0.6931471805599453
KS=68
BT=0x000000; AT=0x140000; P8=0x280000; WF=0x298000; OFFS=0x2A0000; RECS=0x300000; CHS=20480
OPT=dict(stamp=0)

def scan64(a, v):
    for sh in (1,2,4,8): a(f'v_add_u32_dpp {v}, {v}, {v} row_shr:{sh} row_mask:0xf bank_mask:0xf')
    a(f'v_add_u32_dpp {v}, {v}, {v} row_bcast:15 row_mask:0xa bank_mask:0xf')
    a(f'v_add_u32_dpp {v}, {v}, {v} row_bcast:31 row_mask:0xc bank_mask:0xf')

def stamp(a, k, base=70):
    if OPT['stamp']:
        a(f's_memrealtime s[{base+2*k}:{base+2*k+1}]')
STB=0x1000000
def stamp_out(a, n, kidx, wave, base=70, tag=''):
    if OPT['stamp']:
        a(f's_load_dwordx2 s[68:69], s[0:1], 80\ns_waitcnt lgkmcnt(0)')
        a(f's_cmp_eq_u32 s3, {wave}\ns_cbranch_scc0 L_nost{tag}')
        a(f's_lshl_b32 s3, s2, 6\ns_add_u32 s3, s3, {STB+kidx*65536}\ns_mov_b64 exec, -1\nv_mov_b32 v1, s3')
        for k in range(n):
            a(f'v_mov_b32 v2, s{base+2*k}\nglobal_store_dword v1, v2, s[68:69] offset:{4*k}')
        a(f's_waitcnt vmcnt(0)\nL_nost{tag}:')
def k3():
    ka,ia,kb,ib,mult=OPT['ka'],OPT['ia'],OPT['kb'],OPT['ib'],OPT.get('mult',20)
    a=Asm()
    a(f'''s_cmp_ge_u32 s2, 1
    s_cbranch_scc1 L3_end
    s_load_dwordx2 s[4:5], s[0:1], 80
    s_memrealtime s[8:9]
    v_lshlrev_b32 v1, 6, v0
    v_add_u32 v2, {STB+ka*65536+4*ia}, v1
    v_add_u32 v3, {STB+kb*65536+4*ib}, v1
    s_waitcnt lgkmcnt(0)''')
    for i in range(4):
        a(f'global_load_dword v{10+i}, v2, s[4:5]\nglobal_load_dword v{20+i}, v3, s[4:5]\nv_add_u32 v2, 4096, v2\nv_add_u32 v3, 4096, v3')
    for i in range(4): a(f'v_sub_u32 v{10+i}, s8, v{10+i}\nv_sub_u32 v{20+i}, s8, v{20+i}')
    opa='max' if not OPT.get('amax') else 'min'; opb='min' if not OPT.get('bmin') else 'max'
    for i in range(1,4): a(f'v_{opa}_u32 v10, v10, v{10+i}\nv_{opb}_u32 v20, v20, v{20+i}')
    a('v_readlane_b32 s10, v10, 0\nv_readlane_b32 s11, v20, 0')
    for l in range(1,64):
        a(f'v_readlane_b32 s12, v10, {l}\nv_readlane_b32 s13, v20, {l}\ns_{opa}_u32 s10, s10, s12\ns_{opb}_u32 s11, s11, s13')
    a(f'''s_sub_u32 s10, s10, s11
    s_max_i32 s10, s10, 0
    s_min_u32 s10, s10, 10000
    s_mul_i32 s10, s10, {mult}
    L3_spin:
    s_memrealtime s[12:13]
    s_waitcnt lgkmcnt(0)
    s_sub_u32 s12, s12, s8
    s_cmp_lt_u32 s12, s10
    s_cbranch_scc1 L3_spin
    L3_end:
    s_endpgm''')
    return a

def k1():
    a=Asm()
    HIST=0; OFF=1024; SORT=2048; WL=22528; HL=38912; WHL=47104
    a('''s_cmp_ge_u32 s2, 256
    s_cbranch_scc1 L1_end''')
    stamp(a,0)
    a('''s_load_dwordx16 s[4:19], s[0:1], 0
    s_load_dwordx2 s[20:21], s[0:1], 80
    v_lshrrev_b32 v1, 6, v0
    v_readfirstlane_b32 s3, v1
    v_and_b32 v3, 63, v0
    s_cmp_ge_u32 s3, 10
    s_cbranch_scc1 L1_help''')
    st=a.state()
    a(f'''v_lshlrev_b32 v1, 4, v0
    v_lshlrev_b32 v2, 3, v0
    s_mul_i32 s25, s2, 10000
    s_mul_i32 s26, s2, 5000
    v_cmp_gt_u32 vcc, 625, v0
    s_mov_b64 s[30:31], vcc
    s_mov_b64 exec, vcc
    s_waitcnt lgkmcnt(0)
    s_add_u32 s12, s12, s25
    s_addc_u32 s13, s13, 0
    s_add_u32 s10, s10, s25
    s_addc_u32 s11, s11, 0
    s_add_u32 s8, s8, s26
    s_addc_u32 s9, s9, 0
    global_load_dwordx4 v[4:7], v1, s[12:13]
    global_load_dwordx4 v[8:11], v1, s[10:11]
    global_load_dwordx2 v[12:13], v2, s[8:9]
    s_mov_b32 s27, 214749
    s_mov_b32 s28, 0x3f0
    v_mov_b32 v22, 8
    s_mul_i32 s25, s2, {CHS}
    s_add_u32 s25, s25, {RECS}
    s_add_u32 s32, s20, s25
    s_addc_u32 s33, s21, 0
    s_add_u32 s34, s32, 10000
    s_addc_u32 s35, s33, 0
    s_lshl_b32 s25, s2, 10
    s_add_u32 s25, s25, {OFFS}
    s_add_u32 s36, s20, s25
    s_addc_u32 s37, s21, 0
    s_barrier''')
    stamp(a,1)
    for i in range(4): a(f'v_mul_u32_u24 v{14+i}, s27, v{4+i}')
    for i in range(4): a(f'v_lshrrev_b32 v{14+i}, 21, v{14+i}')
    for i in range(4): a(f'v_and_b32 v{14+i}, 0x3fc, v{14+i}')
    for i in range(4): a(f'ds_add_rtn_u32 v{18+i}, v{14+i}, v22 offset:{HIST}')
    for i in range(4): a(f'v_lshlrev_b32 v{4+i}, 4, v{4+i}')
    for i in range(4): a(f'v_lshlrev_b32 v{25+2*i}, 2, v{8+i}')
    for i in range(4):
        e=12+(i>>1)
        a(f'v_and_b32 v{24+2*i}, 0xffff0000, v{e}' if i&1 else f'v_lshlrev_b32 v{24+2*i}, 16, v{e}')
    for i in range(4): a(f'v_and_or_b32 v{24+2*i}, v{4+i}, s28, v{24+2*i}')
    a(f'''s_mov_b64 exec, -1
    v_lshlrev_b32 v23, 4, v3
    s_waitcnt lgkmcnt(0)
    s_barrier''')
    stamp(a,2)
    a(f'''ds_read_b128 v[4:7], v23 offset:{HIST}
    v_add3_u32 v12, v4, v5, v6
    v_add_u32 v12, v12, v7
    v_mov_b32 v13, v12''')
    scan64(a,'v13')
    a(f'''v_sub_u32 v8, v13, v12
    v_add_u32 v9, v8, v4
    v_add_u32 v10, v9, v5
    v_add_u32 v11, v10, v6
    ds_write_b128 v23, v[8:11] offset:{OFF}
    s_mov_b64 exec, s[30:31]''')
    for i in range(4): a(f'ds_read_b32 v{14+i}, v{14+i} offset:{OFF}')
    a('s_cmp_lg_u32 s3, 0\ns_cbranch_scc1 L1_notab'); a.cond_begin()
    for i in range(4): a(f'v_lshl_or_b32 v{32+i}, v{4+i}, 16, v{8+i}')
    a('global_store_dwordx4 v23, v[32:35], s[36:37]')
    a.cond_end('L1_notab')
    for i in range(4):
        a(f'v_add_u32 v{14+i}, v{14+i}, v{18+i}')
        a(f'ds_write_b64 v{14+i}, v[{24+2*i}:{25+2*i}] offset:{SORT}')
    a(f'''s_waitcnt lgkmcnt(0)
    s_barrier''')
    stamp(a,3)
    a(f'''ds_read_b128 v[4:7], v1 offset:{SORT}
    ds_read_b128 v[8:11], v1 offset:{SORT+10000}
    global_store_dwordx4 v1, v[4:7], s[32:33]
    global_store_dwordx4 v1, v[8:11], s[34:35]''')
    if OPT['stamp']:
        stamp(a,4); a('s_waitcnt vmcnt(0)'); stamp(a,5); stamp_out(a,6,0,0,tag='1')
    a('s_endpgm')
    a.set_state(st)
    a(f'''L1_help:
    s_mul_i32 s23, s2, 625
    s_add_u32 s24, s23, 640
    s_add_u32 s23, s23, 15
    s_lshr_b32 s23, s23, 4
    s_lshr_b32 s24, s24, 4
    s_sub_u32 s24, s24, s23
    v_lshlrev_b32 v1, 4, v3
    s_cmp_eq_u32 s3, 14
    s_cbranch_scc1 L1_w14
    s_cmp_eq_u32 s3, 15
    s_cbranch_scc1 L1_w15''')
    st=a.state()
    a(f'''s_sub_u32 s25, s3, 10
    s_lshl_b32 s26, s25, 12
    s_add_u32 s27, s26, {WL}
    s_mov_b32 m0, s27
    s_waitcnt lgkmcnt(0)
    s_add_u32 s14, s14, s26
    s_addc_u32 s15, s15, 0''')
    for i in range(4): a(f'global_load_lds_dwordx4 v1, s[14:15] offset:{1024*i}')
    a(f'''s_and_b32 s28, s25, 1
    s_lshr_b32 s29, s25, 1
    v_lshrrev_b32 v4, 5, v3
    v_bfe_u32 v5, v3, 2, 2
    v_lshl_add_u32 v5, v4, 3, v5
    v_lshlrev_b32 v5, 7, v5
    v_and_b32 v6, 3, v3
    v_lshl_add_u32 v5, v6, 3, v5
    v_and_b32 v6, 16, v3
    v_lshl_add_u32 v5, v6, 1, v5
    s_lshl_b32 s26, s29, 13
    v_add_u32 v5, s26, v5
    v_and_b32 v6, 31, v3
    v_and_b32 v7, 7, v3
    v_xor_b32 v7, v7, v4
    v_lshlrev_b32 v7, 4, v7
    v_lshl_add_u32 v7, v6, 7, v7
    s_lshl_b32 s26, s28, 12
    v_add_u32 v8, s26, v7
    v_xor_b32 v9, 32, v8
    v_xor_b32 v10, 64, v8
    v_xor_b32 v11, 96, v8
    s_lshl_b32 s26, s28, 5
    s_add_u32 s30, s23, s26
    s_sub_u32 s31, s24, s26
    s_lshl_b32 s30, s30, 7
    s_cmp_eq_u32 s29, 0
    s_cselect_b32 s26, {AT}, {BT}
    s_add_u32 s30, s30, s26
    s_add_u32 s40, s20, s30
    s_addc_u32 s41, s21, 0
    s_and_b32 s41, s41, 0xffff
    s_lshl_b32 s42, s31, 7
    s_mov_b32 s43, 0x20000
    s_mov_b32 s44, {hex((127-KS)<<23)}
    s_mov_b32 s45, {hex(fbits(LOG2E))}
    s_mov_b32 s46, 0x7fff0000
    s_mov_b32 s47, 0x80000000
    s_waitcnt vmcnt(0)
    s_barrier''')
    H=12; W=28; D=60
    for kb in range(4): a(f'ds_read_b128 {V(H+4*kb,4)}, v{8+kb} offset:{HL}')
    for kb in range(4):
        for t in range(2):
            for u in range(2):
                a(f'ds_read_b64_tr_b16 {V(W+8*kb+4*t+2*u,2)}, v5 offset:{WL+kb*2048+u*512+t*64}')
    for kb in range(4):
        for t in range(2):
            a(f'{MF} {V(D+16*t,16)}, {V(H+4*kb,4)}, {V(W+8*kb+4*t,4)}, {V(D+16*t,16) if kb else 0}')
    a('''s_barrier
    s_cmp_eq_u32 s29, 0
    s_cbranch_scc1 L1_apack''')
    st2=a.state()
    a('v_lshlrev_b32 v2, 2, v6\nv_lshl_add_u32 v2, v4, 9, v2')
    for j in range(4):
        rs=range(4*j,4*j+4)
        for r in rs: a(f'v_mul_f32 v{D+r}, s44, v{D+r}')
        for r in rs: a(f'v_mul_f32 v{D+16+r}, s45, v{D+16+r}')
        for r in rs: a(f'v_cvt_pk_bf16_f32 v{D+r}, v{D+r}, 0')
        for r in rs: a(f'v_and_b32 v{H+r}, 0x7fffffff, v{D+16+r}')
        for r in rs: a(f'v_add_u32 v{H+r}, 0x8000, v{H+r}')
        for r in rs: a(f'v_sub_u32 v{H+r}, v{H+r}, v{D+r} clamp')
        for r in rs: a(f'v_and_or_b32 v{D+r}, v{D+16+r}, s47, v{D+r}')
        for r in rs: a(f'v_and_or_b32 v{D+r}, v{H+r}, s46, v{D+r}')
        for r in rs: a(f'buffer_store_dword v{D+r}, v2, s[40:43], 0 offen offset:{(8*j+(r&3))*128}')
        if j==0: a('s_cmp_eq_u32 s28, 1\ns_cbranch_scc1 L1_gend')
    a('L1_gend:\ns_barrier\ns_endpgm')
    a.set_state(st2)
    a('L1_apack:\nv_lshlrev_b32 v2, 1, v6\nv_lshl_add_u32 v2, v4, 9, v2')
    for j in range(4):
        rs=range(4*j,4*j+4)
        for r in rs: a(f'v_mul_f32 v{D+r}, s44, v{D+r}')
        for r in rs: a(f'v_mul_f32 v{D+16+r}, s45, v{D+16+r}')
        for r in rs: a(f'v_cvt_pk_bf16_f32 v{D+r}, v{D+r}, v{D+16+r}')
        for r in rs:
            a(f'buffer_store_short v{D+r}, v2, s[40:43], 0 offen offset:{(8*j+(r&3))*128}')
            a(f'buffer_store_short_d16_hi v{D+r}, v2, s[40:43], 0 offen offset:{(8*j+(r&3))*128+64}')
        if j==0: a('s_cmp_eq_u32 s28, 1\ns_cbranch_scc1 L1_gend')
    a('s_barrier\ns_endpgm')
    a.set_state(st)
    a(f'''L1_w14:
    v_mov_b32 v8, 0
    v_mov_b32 v9, 0
    v_mov_b32 v10, 0
    v_mov_b32 v11, 0
    ds_write_b128 v1, v[8:11] offset:{HIST}
    v_lshrrev_b32 v4, 3, v3
    v_and_b32 v5, 7, v3
    v_xor_b32 v5, v5, v4
    v_lshlrev_b32 v5, 4, v5
    v_lshl_add_u32 v5, v4, 7, v5
    v_add_u32 v6, s23, v3
    v_mul_u32_u24 v7, 6, v6
    v_lshlrev_b32 v6, 3, v3
    s_lshl_b32 s25, s23, 7
    s_mov_b32 m0, {HL}
    s_waitcnt lgkmcnt(0)
    s_add_u32 s40, s4, s25
    s_addc_u32 s41, s5, 0
    s_and_b32 s41, s41, 0xffff
    s_sub_u32 s42, 1280000, s25
    s_mov_b32 s43, 0x20000
    s_mov_b32 s44, s6
    s_and_b32 s45, s7, 0xffff
    s_mov_b32 s46, 60000
    s_mov_b32 s47, 0x20000''')
    for i in range(4): a(f'buffer_load_dwordx4 v5, s[40:43], 0 offen offset:{1024*i} lds')
    a(f'''s_mov_b32 m0, {HL+4096}
    s_movk_i32 s25, 0x1000
    buffer_load_dwordx4 v5, s[40:43], s25 offen lds
    buffer_load_ushort v8, v7, s[44:47], 0 offen
    buffer_load_ushort v10, v7, s[44:47], 0 offen offset:2
    buffer_load_ushort v9, v7, s[44:47], 0 offen offset:4
    s_lshl_b32 s25, s23, 3
    s_add_u32 s25, s25, {P8}
    s_add_u32 s48, s20, s25
    s_addc_u32 s49, s21, 0
    s_and_b32 s49, s49, 0xffff
    s_lshl_b32 s50, s24, 3
    s_mov_b32 s51, 0x20000
    s_waitcnt vmcnt(3)
    s_barrier
    v_lshl_or_b32 v8, v10, 16, v8
    buffer_store_dwordx2 v[8:9], v6, s[48:51], 0 offen
    s_barrier
    s_barrier
    s_endpgm''')
    a.set_state(st)
    a(f'''L1_w15:
    s_cmp_ge_u32 s2, 2
    s_cbranch_scc1 L1_end
    s_lshl_b32 s25, s2, 13
    s_mov_b32 m0, {WHL}
    s_waitcnt lgkmcnt(0)
    s_add_u32 s18, s18, s25
    s_addc_u32 s19, s19, 0''')
    for i in range(4): a(f'global_load_lds_dwordx4 v1, s[18:19] offset:{1024*i}')
    a(f's_add_u32 s18, s18, 4096\ns_addc_u32 s19, s19, 0\ns_mov_b32 m0, {WHL+4096}')
    for i in range(4): a(f'global_load_lds_dwordx4 v1, s[18:19] offset:{1024*i}')
    a(f'''v_lshrrev_b32 v4, 4, v3
    v_bfe_u32 v5, v3, 2, 2
    v_lshl_add_u32 v5, v4, 3, v5
    v_lshlrev_b32 v5, 7, v5
    v_and_b32 v6, 3, v3
    v_lshl_add_u32 v5, v6, 3, v5
    s_lshl_b32 s25, s2, 11
    s_add_u32 s25, s25, {WF}
    s_add_u32 s26, s20, s25
    s_addc_u32 s27, s21, 0
    s_barrier
    s_waitcnt vmcnt(0)''')
    for nt in range(4):
        for kb in range(2):
            for u in range(2):
                a(f'ds_read_b64_tr_b16 {V(8+8*nt+4*kb+2*u,2)}, v5 offset:{WHL+kb*4096+u*512+nt*32}')
    a('s_barrier')
    for nt in range(4):
        for kb in range(2): a(f'global_store_dwordx4 v1, {V(8+8*nt+4*kb,4)}, s[26:27] offset:{kb*1024}')
        a('v_add_u32 v1, 4096, v1')
    a('s_barrier\nL1_end:\ns_endpgm')
    return a

OH=0; HIST=1024; MASK=1280; FLAG=1536; PD=1600; CR=2112; WX=2624; AL=3072; XZ=9216
CAP=3232; VB=16384; REC=VB+CAP*4; NEGROWS=134-KS; LUT=163840-65536-NEGROWS*256
POSTOP=255-KS
XLO=NEGROWS-32
MA=LUT+(192-XLO-1+32)*256; MSTR=272
assert REC+CAP*16<=LUT and MA+56*MSTR<=LUT+255*256 and 192-XLO-1+32>=POSTOP and 163840-LUT>=81920
class R:
    FK=4; XAD=5; vV=6; vR=7; vQ=8; vK=9
    ACC=[12,28]; L=[44,60]; YL=76; T=92; SA=108; XA=116; XB=[120,124]
sLUT='s36'; sOFF='s37'; sCNT='s38'; SRD='s[20:23]'

PAD=None
def main_loop(a):
    def mad(r): return f'v_mad_u32_u16 {V(R.YL+r)}, {V(R.YL+r)}, 2, {sLUT} op_sel:[1,0,0,0]'
    def rd(r): return f'ds_read_u16{"_d16_hi" if r&4 else ""} {V(R.YL+r)}, {V(R.YL+r)}'
    def sh(b,r): return f'v_lshlrev_b32 {V(R.YL+r)}, 16, {V(R.L[b]+r)}'
    def ex(b,r): return f'v_exp_f32 {V(R.T+r)}, -{V(R.L[b]+r)}'
    def rc(r): return f'v_rcp_f32 {V(R.T+r)}, {V(R.T+r)}'
    def pa(i): return f'v_pk_add_f32 {V(R.T+2*i,2)}, {V(R.T+2*i,2)}, 1.0 op_sel_hi:[1,0]'
    def pm(b,i): return f'v_pk_mul_f32 {V(R.T+2*i,2)}, {V(R.T+2*i,2)}, {V(R.L[b]+2*i,2)}'
    def cv(kb,i): return f'v_cvt_pk_bf16_f32 {V(R.T+8*kb+i)}, {V(R.T+8*kb+i)}, {V(R.T+8*kb+4+i)}'
    def g2(acc,kb,M): return f'{MF} {V(R.ACC[acc],16)}, {V(R.SA+4*kb,4)}, {V(M,4)}, {V(R.ACC[acc],16)}'
    ylx=f'{MF} {V(R.YL,16)}, {V(R.XA,4)}, {V(R.XB[0],4)}, {V(R.YL,16)}'
    def hi(b): return f'{MF} {V(R.L[b],16)}, {V(R.XA,4)}, {V(R.XB[1],4)}, {V(R.L[b],16)}'
    def ta(u): return f'v_add_u32_dpp {V(R.SA+2*u)}, {V(R.FK)}, {V(R.vK)} quad_perm:[{u},{u},{u},{u}] row_mask:0xf bank_mask:0xf bound_ctrl:1'
    def tr(u,off): return f'ds_read_b64_tr_b16 {V(R.SA+2*u,2)}, {V(R.SA+2*u)} offset:{off+(128*(u>>1)+32*(u&1))}'
    def it(a,b,last):
        n=1-b; o=512*b
        ld=(lambda b,r: '') if last else P.ld
        fe0,fe1,xa,fq=('','','','') if last else (P.fe0,P.fe1,P.xa,P.fq(o+512))
        S=['s_waitcnt vmcnt(0)']
        S+=[sh(b,r) for r in range(16)]+[ta(0),ta(1),hi(b), tr(0,o), tr(1,o), ld(n,0), ld(n,1), ta(2), ta(3), fe0, ylx, tr(2,o), tr(3,o), fe1, ld(n,2), ld(n,3)]
        S+=[ex(b,r) for r in range(0,4)]
        S+=[mad(r) for r in range(0,4)]+[rd(r) for r in range(0,4)]+[ld(n,4),ld(n,5)]
        S+=[ex(b,r) for r in range(4,8)]
        S+=[mad(r) for r in range(4,8)]+[rd(r) for r in range(4,8)]+[ld(n,6),ld(n,7)]
        S+=[ex(b,r) for r in range(8,16)]
        S+=[mad(r) for r in range(8,12)]+[rd(r) for r in range(8,12)]+[ld(n,8),ld(n,9)]
        S+=[pa(i) for i in range(8)]
        S+=[mad(r) for r in range(12,16)]+[rd(r) for r in range(12,16)]+[xa, fq, ld(n,10),ld(n,11)]
        S+=[rc(r) for r in range(0,4)]
        S+=[g2(0,0,R.YL), ld(n,12)]+[rc(r) for r in range(4,7)]
        S+=[g2(0,0,R.YL+4), ld(n,13)]+[rc(r) for r in range(7,10)]
        S+=[g2(0,1,R.YL+8), ld(n,14)]+[rc(r) for r in range(10,13)]
        S+=[g2(0,1,R.YL+12), ld(n,15)]+[rc(r) for r in range(13,16)]
        S+=[pm(b,i) for i in range(8)]
        S+=[cv(0,i) for i in range(4)]+[cv(1,i) for i in range(4)]
        if b==1 and not last:
            S+=[f'v_add_u32 {V(R.vQ)}, 1024, {V(R.vQ)}', f'v_add_u32 {V(R.vK)}, 1024, {V(R.vK)}']
        S+=[g2(1,0,R.T)]+([] if last else [P.vr(b,j,256+128*b) for j in range(4)])+[g2(1,1,R.T+8)]
        if b==1 and not last: S+=[f'v_add_u32 {V(R.vV)}, 256, {V(R.vV)}']
        for x in S: a(x)
    cap={}; final=[False]; cnt=[0]
    def head(a,k):
        a(f's_cmp_gt_u32 {sCNT}, 3\ns_cbranch_scc1 L_go{k}\ns_setprio 2\ns_cmp_eq_u32 {sCNT}, 3\ns_cbranch_scc1 L_go{k}\ns_setprio 1\ns_cmp_eq_u32 {sCNT}, 1\ns_cbranch_scc1 L_last{k}')
        a.raw(f'L_go{k}:')
        if PAD and final[0]: PAD(a)
    def body(a):
        cnt[0]+=1; final[0]=cnt[0]==3
        for b in range(2):
            cap[b]=a.state()
            st=a.state(); head(a,b); a.hists+=[h+[I('s_nop 0'),I('s_nop 0')] for h in st[2]]
            it(a,b,False)
            a(f's_sub_u32 {sCNT}, {sCNT}, 1')
        a('s_branch L_mloop')
    a('s_setprio 3')
    a.loop('L_mloop', body)
    ends=[]
    for b in range(2):
        a.set_state(cap[b])
        if PAD: PAD(a)
        a(f'L_last{b}:\ns_setprio 0')
        it(a,b,True)
        if b==0: a('s_branch L_mdone')
        ends.append(a.state())
    a.hists+=ends[0][2]
    a('L_mdone:\ns_waitcnt lgkmcnt(0)')
class P:
    @staticmethod
    def vr(b,j,off): return f'ds_read_b128 {V(R.L[b]+4*j,4)}, {V(R.vV)} offset:{off+16*j}'
    @staticmethod
    def ld(b,r): return (f'v_min_u32 {V(R.L[b]+r)}, 39996, {V(R.L[b]+r)}\n' if OPT.get('safe') else '')+f'buffer_load_dword {V(R.L[b]+r)}, {V(R.L[b]+r)}, {SRD}, 0 offen'+(' sc1' if OPT.get('gsc',1) else '')
    fe0=f'v_add_u32 {V(R.XAD)}, {sOFF}, {V(R.vR)}'
    fe1=f's_mov_b32 exec_hi, 0\nds_read_u16 {V(R.XAD)}, {V(R.XAD)} offset:8\ns_mov_b32 exec_hi, -1\ns_add_u32 {sOFF}, {sOFF}, 512'
    xa=f'ds_read_b128 {V(R.XA,4)}, {V(R.XAD)}'
    @staticmethod
    def fq(off): return f'ds_read_u16_d16_hi {V(R.FK)}, {V(R.vQ)} offset:{off+8}'

def xyz_reduce(a, x, y, z):
    a(f'v_add_f32_dpp {x}, {x}, {x} row_ror:8 row_mask:0xf bank_mask:0xf')
    a(f'v_add_f32_dpp {z}, {z}, {z} row_ror:8 row_mask:0xf bank_mask:0xf')
    a(f'v_add_f32_dpp {x}, {y}, {y} row_ror:8 row_mask:0xf bank_mask:0xc')
    a(f'v_add_f32_dpp {x}, {x}, {x} row_shl:4 row_mask:0xf bank_mask:0x5')
    a(f'v_add_f32_dpp {x}, {z}, {z} row_shr:4 row_mask:0xf bank_mask:0x2')

def k2():
    a=Asm()
    RR=[12+6*i for i in range(4)]
    RK=36; PS=44; PDr=60; TM=76
    E=R.T; BS=R.T+4; LA=R.T+8; LD=R.T+11; EA=R.T+14
    vO=108; vKey=109; vP=110; vC=112; vI=113; vFour=114; vCW=116
    a('''s_cmp_ge_u32 s2, 256
    s_cbranch_scc1 L2_end''')
    stamp(a,0)
    a(f'''s_load_dwordx2 s[14:15], s[0:1], 80
    s_load_dwordx2 s[4:5], s[0:1], 0
    s_load_dwordx4 s[8:11], s[0:1], 40
    s_load_dwordx2 s[12:13], s[0:1], 64
    v_lshrrev_b32 v1, 6, v0
    v_readfirstlane_b32 s3, v1
    v_and_b32 v3, 63, v0
    s_and_b32 s16, s2, 7
    s_lshl_b32 s16, s16, 5
    s_lshr_b32 s19, s2, 3
    s_add_u32 s16, s16, s19
    s_mul_i32 s17, s16, 625
    s_add_u32 s18, s17, 640
    s_add_u32 s17, s17, 15
    s_lshr_b32 s17, s17, 4
    s_lshr_b32 s18, s18, 4
    s_sub_u32 s18, s18, s17
    v_lshrrev_b32 v10, 2, v0
    v_lshlrev_b32 v1, 10, v10
    v_lshlrev_b32 v2, 4, v3
    s_lshl_b32 s56, s16, 2
    s_add_u32 s56, s56, {OFFS}
    s_mul_i32 s57, s3, 5120
    s_add_u32 s58, s57, {LUT}
    s_add_u32 s57, s57, {P8}
    s_mov_b32 m0, s58
    s_mov_b32 s26, {RECS+256*CHS+4096}
    s_mov_b32 s27, 0x20000
    s_waitcnt lgkmcnt(0)
    s_mov_b32 s24, s14
    s_and_b32 s25, s15, 0xffff
    s_cmp_lg_u32 s3, 8
    s_cbranch_scc1 L2_nocw''')
    a.cond_begin()
    a(f'''v_lshlrev_b32 v11, 1, v3
    s_add_u32 s8, s8, {128*128}
    s_addc_u32 s9, s9, 0
    global_load_short_d16_hi {V(vCW)}, v11, s[8:9]
    global_load_short_d16_hi {V(vCW+1)}, v11, s[8:9] offset:128
    global_load_short_d16_hi {V(vCW+2)}, v11, s[10:11]''')
    a.cond_end('L2_nocw')
    a(f'buffer_load_dword {V(vO)}, v1, s[24:27], s56 offen')
    for i in range(4): a(f'buffer_load_dwordx4 v2, s[24:27], s57 offen offset:{1024*i} lds')
    a(f'''s_add_u32 s58, s58, 4096
    s_add_u32 s57, s57, 4096
    s_mov_b32 m0, s58
    buffer_load_dwordx4 v2, s[24:27], s57 offen lds
    s_mov_b32 s20, s14
    s_or_b32 s21, s25, 0x80000000
    s_mov_b32 s22, 1280000
    s_mov_b32 s23, 0x00c00000
    s_lshl_b32 s59, s17, 7
    s_add_u32 s60, s59, {AT}
    s_add_u32 s28, s14, s60
    s_addc_u32 s29, s15, 0
    s_and_b32 s29, s29, 0xffff
    s_sub_u32 s30, 1280000, s59
    s_mov_b32 s31, 0x20000
    s_mov_b32 s32, s14
    s_mov_b32 s33, s25
    s_mov_b32 s34, 1280000
    s_mov_b32 s35, 0x20000
    s_mov_b32 {sLUT}, {LUT}
    s_mov_b32 {sOFF}, 0
    s_cmp_lg_u32 s3, 6
    s_cbranch_scc1 L2_nooh''')
    a.cond_begin()
    a(f'''v_and_b32 v76, 1, v3
    v_lshlrev_b32 v76, 4, v76
    v_mov_b32 v77, 0x3f80
    v_lshlrev_b32 v76, v76, v77
    v_bfe_u32 v77, v3, 1, 2''')
    for i in range(4): a(f'v_cmp_eq_u32 vcc, {i}, v77\nv_cndmask_b32 v{80+i}, 0, v76, vcc')
    a(f'''ds_write_b128 v2, v[80:83] offset:{OH}
    v_mov_b32 v84, 0
    v_mov_b32 v85, 0
    v_lshlrev_b32 v76, 3, v3
    ds_write_b64 v76, v[84:85] offset:{HIST}
    ds_write_b32 v84, v84 offset:{FLAG}''')
    a.cond_end('L2_nooh')
    D_=0x00800080
    a(f'''v_and_b32 v76, 15, v0
    v_lshlrev_b32 v77, 19, v76
    v_or_b32 v77, {hex((KS<<23)|0x8000)}, v77
    s_mov_b32 s60, {hex(fbits(LOG2E/2))}
    s_mov_b32 s61, {hex(D_)}
    s_mov_b32 s62, {hex(fbits(LOG2E))}''')
    for i in range(8): a(f'v_add_u32 v{80+i}, {hex(i<<16)}, v77')
    for i in range(8): a(f'v_mul_f32 v{80+i}, s60, v{80+i}')
    for i in range(4): a(f'v_cvt_pk_bf16_f32 v{BS+i}, v{80+2*i}, v{81+2*i}')
    a(f'''v_lshrrev_b32 v78, 4, v0
    v_lshl_add_u32 v79, v76, 4, {sLUT}''')
    B2=192-XLO-1
    assert XLO<=64 and B2>=128
    a(f'''v_cmp_gt_u32 vcc, {XLO}, v78
    v_cndmask_b32 v80, 32, 0, vcc
    v_cndmask_b32 v81, 33, 0, vcc
    v_add_u32 v80, v80, v78
    v_add_u32 v81, v81, v78
    v_lshl_add_u32 v{LA}, v80, 8, v79
    v_mul_lo_u32 v{LD}, v81, s61
    v_add_u32 v80, 96, v78
    v_add_u32 v81, 97, v78
    v_lshl_add_u32 v{LA+1}, v80, 8, v79
    v_mul_lo_u32 v{LD+1}, v81, s61
    v_cmp_gt_u32 vcc, {B2-128}, v78
    v_mov_b32 v82, {255-B2+128}
    v_mov_b32 v83, 160
    v_cndmask_b32 v80, v82, v83, vcc
    v_mov_b32 v83, 161
    v_cndmask_b32 v81, v82, v83, vcc
    v_add_u32 v80, v80, v78
    v_add_u32 v81, v81, v78
    v_lshl_add_u32 v{LA+2}, v80, 8, v79
    v_mul_lo_u32 v{LD+2}, v81, s61
    v_mov_b32 {V(vFour)}, 4
    v_add_u32 v80, s17, v3
    v_lshl_add_u32 {V(vP)}, v80, 3, {sLUT}
    v_and_b32 v80, 63, v80
    v_lshlrev_b32 {V(vKey)}, 2, v80
    s_mov_b32 s57, {CHS}
    v_and_b32 v80, 3, v0
    v_lshlrev_b32 v80, 4, v80
    v_mad_u32_u24 v81, v10, s57, v80
    s_mov_b32 s57, {RECS}''')
    stamp(a,1)
    a(f'''v_add_u32_sdwa v81, {V(vO)}, v81 dst_sel:DWORD dst_unused:UNUSED_PAD src0_sel:WORD_0 src1_sel:DWORD
    v_lshrrev_b32 {V(vO)}, 16, {V(vO)}
    v_sub_u32 v82, {V(vO)}, v80
    v_cmp_lt_i32 vcc, 128, v82
    s_mov_b64 s[48:49], vcc
    s_mov_b64 s[50:51], 0
    s_mov_b64 s[52:53], 0
    s_mov_b64 s[54:55], 0
    s_mov_b32 s63, 0
    s_cbranch_vccz L2_nr23''')
    a.cond_begin()
    a(f'''buffer_load_dwordx4 {V(RR[2]+2,4)}, v81, s[24:27], s57 offen offset:128
    buffer_load_dwordx4 {V(RR[3]+2,4)}, v81, s[24:27], s57 offen offset:192
    v_cmp_lt_i32 vcc, 136, v82
    s_mov_b64 s[50:51], vcc
    v_cmp_lt_i32 vcc, 192, v82
    s_mov_b64 s[52:53], vcc
    v_cmp_lt_i32 vcc, 200, v82
    s_mov_b64 s[54:55], vcc
    v_cmp_lt_u32 vcc, 256, {V(vO)}
    s_cmp_lg_u64 vcc, 0
    s_cselect_b32 s63, 1, 0''')
    a.cond_end('L2_nr23')
    a(f'''buffer_load_dwordx4 {V(RR[0]+2,4)}, v81, s[24:27], s57 offen
    v_cmp_lt_i32 vcc, 64, v82
    s_mov_b64 s[44:45], vcc
    v_bfrev_b32 v83, 2
    v_cndmask_b32 v83, v83, v81, vcc
    buffer_load_dwordx4 {V(RR[1]+2,4)}, v83, s[24:27], s57 offen offset:64
    s_mul_i32 s58, s3, 384
    s_add_u32 s59, s58, {AL}
    s_mov_b32 m0, s59
    s_mov_b64 exec, 0xffffff
    buffer_load_dwordx4 v2, s[28:31], s58 offen lds
    s_mov_b64 exec, 0xfffff
    s_lshl_b32 s58, s19, 4
    s_add_u32 s58, s58, s3
    s_mul_i32 s58, s58, 2560
    v_lshlrev_b32 v84, 7, v3
    buffer_load_dword v11, v84, s[32:35], s58 offen
    s_mov_b64 exec, -1
    v_cmp_lt_i32 s[40:41], 0, v82
    v_cmp_lt_i32 s[42:43], 8, v82
    v_cmp_lt_i32 vcc, 72, v82
    s_mov_b64 s[46:47], vcc''')
    stamp(a,2)
    a(f'''v_bfe_u32 v80, v0, 4, 5
    v_lshrrev_b32 v81, 9, v0
    v_lshl_add_u32 v80, v81, 8, v80
    v_add_u32 v80, {XLO}, v80
    v_lshl_add_u32 v{EA}, v80, 8, v79
    v_lshl_add_u32 v77, v80, 23, v77''')
    for h in range(2):
        for i in range(4): a(f'v_add_u32 v{80+i}, {hex((4*h+i)<<16)}, v77')
        for i in range(4): a(f'v_mul_f32 v{80+i}, s62, v{80+i}')
        for i in range(4): a(f'v_exp_f32 v{84+i}, -v{80+i}')
        for i in range(4): a(f'v_add_f32 v{84+i}, 1.0, v{84+i}')
        for i in range(4): a(f'v_rcp_f32 v{84+i}, v{84+i}')
        for i in range(4): a(f'v_mul_f32 v{80+i}, v{80+i}, v{84+i}')
        for i in range(2): a(f'v_cvt_pk_bf16_f32 v{E+2*h+i}, v{80+2*i}, v{81+2*i}')
    a('s_cmp_lg_u32 s3, 8\ns_cbranch_scc1 L2_nocr'); a.cond_begin()
    a(f'''v_cmp_gt_u32 vcc, 32, v3
    v_mov_b32 v80, s62
    v_mov_b32 v81, {hex((127-KS)<<23)}
    v_cndmask_b32 v80, v80, v81, vcc
    v_mul_f32 v81, {V(vCW)}, v80
    v_mul_f32 v82, {V(vCW+1)}, v80
    v_cvt_pk_bf16_f32 v82, v82, v81
    v_and_b32 v83, 0xffff0000, v82
    v_fma_f32 v81, {V(vCW)}, v80, -v83
    v_cvt_pk_bf16_f32 v81, v81, 0
    v_lshlrev_b32 v84, 1, v3
    v_lshlrev_b32 v85, 2, v3
    v_mul_f32 v83, {hex(fbits(LN2))}, {V(vCW+2)}
    ds_write_b16_d16_hi v84, v81 offset:{CR}
    ds_write_b16 v84, v82 offset:{CR+128}
    ds_write_b16_d16_hi v84, v82 offset:{CR+256}
    ds_write_b16 v84, v81 offset:{CR+384}
    ds_write_b32 v85, v83 offset:{WX}''')
    a.cond_end('L2_nocr')
    a('s_waitcnt vmcnt(4) lgkmcnt(0)\ns_barrier')
    stamp(a,3)
    a(f'ds_read_b64 {V(vP,2)}, {V(vP)}')
    def pre(i):
        for j in range(2):
            A=RR[i]+2+2*j; s=2*i+j
            a(f'''v_bfe_u32 v{RK+s}, v{A}, 2, 8
            v_lshl_add_u32 v{PS+2*s}, v{A+1}, 1, {sLUT}
            v_bfe_u32 v{PDr+2*s}, v{A}, 1, 9''')
        for j in range(2):
            s=2*i+j
            a(f'''s_mov_b64 exec, s[{40+2*s}:{41+2*s}]
            ds_add_rtn_u32 v{RK+s}, v{RK+s}, {V(vFour)} offset:{HIST}
            ds_read_b64 {V(PS+2*s,2)}, v{PS+2*s}''')
        a('s_mov_b64 exec, -1')
    pre(0); pre(1)
    a('s_cmp_eq_u64 s[48:49], 0\ns_cbranch_scc1 L2_np23'); a.cond_begin()
    pre(2); pre(3)
    a(f'v_mov_b32 v80, s63\nv_mov_b32 v81, 0\ns_mov_b64 exec, 1\nds_or_b32 v81, v80 offset:{FLAG}\ns_mov_b64 exec, -1')
    a.cond_end('L2_np23')
    a('s_waitcnt vmcnt(1) lgkmcnt(0)\ns_barrier')
    stamp(a,4)
    a(f'''ds_read_b32 {V(vC)}, {V(vKey)} offset:{HIST}
    v_lshlrev_b32 {V(vKey)}, 1, {V(vKey)}
    s_mov_b32 s60, 0x0000bf80
    s_mov_b32 s61, 0xbf800000
    v_mov_b32 {V(vI)}, {V(vC)}''')
    scan64(a,V(vI))
    a(f'''v_sub_u32 {V(vC)}, {V(vI)}, {V(vC)}
    v_readlane_b32 s56, {V(vI)}, 63
    v_lshl_or_b32 {V(vP+1)}, {V(vC)}, 16, {V(vP+1)}
    ds_write_b64 {V(vKey)}, {V(vP,2)} offset:{PD}''')
    for s in range(4): a(f'ds_read_b64 {V(PDr+2*s,2)}, v{PDr+2*s} offset:{PD}')
    a(f'''s_cmp_gt_u32 s56, {4*(CAP-32)}
    s_cbranch_scc1 L2_slow0
    s_add_u32 s57, s56, 124
    s_lshr_b32 s57, s57, 7
    s_lshr_b32 s58, s57, 4
    s_and_b32 s57, s57, 15
    s_mul_i32 s59, s58, s3
    s_min_u32 s63, s3, s57
    s_add_u32 s59, s59, s63
    s_cmp_lt_u32 s3, s57
    s_addc_u32 {sCNT}, s58, 0
    s_lshl_b32 s64, s59, 7
    s_lshl_b32 s65, {sCNT}, 7
    s_add_u32 s65, s65, s64
    s_min_u32 s65, s65, s56
    s_sub_u32 s65, s65, 4
    v_cmp_ge_u32 vcc, s64, {V(vI)}
    s_bcnt1_i32_b64 s66, vcc
    v_cmp_ge_u32 vcc, s65, {V(vI)}
    s_bcnt1_i32_b64 s67, vcc
    s_sub_u32 s67, s67, s66''')
    stslow=a.state()
    def post(sl):
        t=lambda k,n: TM+4*k+n
        for k,s in enumerate(sl): a(f'v_add_u32_sdwa v{RK+s}, v{PDr+2*s+1}, v{RK+s} dst_sel:DWORD dst_unused:UNUSED_PAD src0_sel:WORD_1 src1_sel:DWORD')
        for k,s in enumerate(sl): a(f'v_lshlrev_b32 v{t(k,0)}, 16, v{PDr+2*s}\nv_and_b32 v{t(k,1)}, 0xffff0000, v{PDr+2*s}\nv_lshlrev_b32 v{t(k,2)}, 16, v{PDr+2*s+1}')
        A=lambda s: RR[s>>1]+2+2*(s&1)
        for k,s in enumerate(sl): a(f's_mov_b64 exec, s[{40+2*s}:{41+2*s}]\nds_write_b32 v{RK+s}, v{A(s)+1} offset:{VB}')
        a('s_mov_b64 exec, -1')
        for k,s in enumerate(sl): a(f'v_dot2_f32_bf16 v{t(k,0)}, v{PS+2*s}, s60, v{t(k,0)}')
        for k,s in enumerate(sl): a(f'v_dot2_f32_bf16 v{t(k,1)}, v{PS+2*s}, s61, v{t(k,1)}')
        for k,s in enumerate(sl): a(f'v_dot2_f32_bf16 v{t(k,2)}, v{PS+2*s+1}, s60, v{t(k,2)}')
        for k,s in enumerate(sl): a(f'v_cvt_pk_bf16_f32 v{A(s)-2}, 1.0, v{t(k,0)}')
        for k,s in enumerate(sl): a(f'v_mul_f32 v{t(k,0)}, v{t(k,0)}, v{t(k,0)}')
        for k,s in enumerate(sl): a(f'v_cvt_pk_bf16_f32 v{A(s)-1}, v{t(k,1)}, v{t(k,2)}')
        for k,s in enumerate(sl): a(f'v_dot2_f32_bf16 v{t(k,0)}, v{A(s)-1}, v{A(s)-1}, v{t(k,0)}')
        for k,s in enumerate(sl): a(f'v_lshlrev_b32 v{RK+s}, 2, v{RK+s}')
        for k,s in enumerate(sl): a(f'v_cvt_pk_bf16_f32 v{A(s)+1}, v{t(k,0)}, v{t(k,0)}')
        for k,s in enumerate(sl): a(f's_mov_b64 exec, s[{40+2*s}:{41+2*s}]\nds_write_b128 v{RK+s}, {V(A(s)-2,4)} offset:{REC}')
        a('s_mov_b64 exec, -1')
    post([0,2]); post([1,3])
    a('s_cmp_eq_u64 s[48:49], 0\ns_cbranch_scc1 L2_nq23'); a.cond_begin()
    for s in range(4,8): a(f'ds_read_b64 {V(PDr+2*s,2)}, v{PDr+2*s} offset:{PD}')
    post([4,6]); post([5,7])
    a.cond_end('L2_nq23')
    a('s_cmp_lg_u32 s3, 15\ns_cbranch_scc1 L2_nopad'); a.cond_begin()
    a(f'''v_mov_b32 v80, 0
    v_mov_b32 v81, 0
    v_mov_b32 v82, 0
    v_mov_b32 v83, 0
    v_lshl_add_u32 v84, v3, 2, s56
    v_lshlrev_b32 v85, 2, v84
    s_mov_b32 exec_hi, 0
    ds_write_b32 v84, v80 offset:{VB}
    ds_write_b128 v85, v[80:83] offset:{REC}
    s_mov_b32 exec_hi, -1''')
    a.cond_end('L2_nopad')
    a(f's_cmp_eq_u32 {sCNT}, 0\ns_cbranch_scc1 L2_nowin'); a.cond_begin()
    a(f'''s_add_u32 s63, s17, s66
    s_cmp_gt_u32 s67, 7
    s_cselect_b32 s58, 1, 0
    s_lshl_b32 s57, 1, s3
    v_add_u32 v80, s66, v3
    v_lshlrev_b32 v80, 2, v80
    v_mov_b32 v81, s57
    v_mov_b32 v82, s58
    v_mov_b32 v83, 0
    v_cmp_ge_u32 vcc, s67, v3
    s_mov_b64 exec, vcc
    ds_or_b32 v80, v81 offset:{MASK}
    s_mov_b64 exec, 1
    ds_or_b32 v83, v82 offset:{FLAG}
    s_mov_b64 exec, -1
    v_lshrrev_b32 v76, 5, v3
    v_bfe_u32 v77, v3, 2, 2
    v_and_b32 v78, 3, v3
    v_bfe_u32 v79, v3, 4, 1
    v_lshlrev_b32 v80, 3, v78
    v_lshl_add_u32 v80, v79, 5, v80
    v_subrev_u32 v81, s63, v77
    v_add_u32 v82, 4, v81
    v_and_b32 v81, 7, v81
    v_and_b32 v82, 7, v82
    s_lshl_b32 s58, s66, 7
    s_add_u32 s58, s58, {AL}
    v_lshl_add_u32 v81, v81, 7, s58
    v_lshl_add_u32 v82, v82, 7, s58
    v_mov_b32 v83, {CR}
    v_lshl_add_u32 v84, v77, 7, v83
    v_cmp_gt_u32 vcc, 32, v3
    v_cndmask_b32 v81, v83, v81, vcc
    v_cndmask_b32 v82, v84, v82, vcc
    v_add_u32 v81, v81, v80
    v_add_u32 v82, v82, v80
    ds_read_b64_tr_b16 {V(R.XB[0],2)}, v81
    ds_read_b64_tr_b16 {V(R.XB[0]+2,2)}, v82
    ds_read_b64_tr_b16 {V(R.XB[1],2)}, v81 offset:64
    ds_read_b64_tr_b16 {V(R.XB[1]+2,2)}, v82 offset:64
    s_add_u32 s58, s64, {VB}
    v_lshl_add_u32 {V(R.vV)}, v76, 6, s58
    s_lshl_b32 s58, s64, 2
    s_add_u32 s58, s58, {REC}
    v_and_b32 v80, 1, v77
    v_bfe_u32 v81, v3, 3, 2
    v_lshl_add_u32 v82, v81, 2, v78
    v_lshl_add_u32 v82, v80, 4, v82
    v_lshl_add_u32 {V(R.vR)}, v82, 4, s58
    v_lshrrev_b32 v81, 1, v77
    v_lshl_add_u32 v81, v80, 2, v81
    v_lshl_add_u32 v81, v76, 4, v81
    v_lshl_add_u32 v81, v81, 4, s58
    v_lshrrev_b32 v82, 1, v78
    v_and_b32 v83, 1, v78
    v_lshl_add_u32 v82, v82, 2, v83
    v_lshl_add_u32 {V(R.vQ)}, v82, 5, v81
    v_lshl_add_u32 v82, v79, 2, v78
    v_subrev_u32 v82, s63, v82
    v_and_b32 v82, 7, v82
    v_add_u32 v82, s63, v82
    v_and_b32 v82, 63, v82
    v_lshlrev_b32 v82, 20, v82
    v_sub_u32 {V(R.vK)}, v81, v82''')
    a.cond_end('L2_nowin')
    a(f'v_mov_b32 v10, 0\ns_waitcnt lgkmcnt(0)\ns_barrier')
    stamp(a,5)
    a(f'ds_read_b32 v10, v10 offset:{FLAG}')
    for b in range(2):
        for j in range(4): a(P.vr(b,j,128*b))
    a(P.fe0); a(P.fe1); a(P.fq(0))
    a('v_cmp_ne_u32 vcc, 0, v10\ns_cbranch_vccnz L2_slow')
    a(f's_cmp_eq_u32 {sCNT}, 0\ns_cbranch_scc1 L2_nog'); a.cond_begin()
    for r in range(16): a(P.ld(0,r))
    a(P.xa)
    a.cond_end('L2_nog')
    a(f'ds_write_b128 v{EA}, {V(E,4)}')
    for p in range(3):
        for i in range(4): a(f'v_add_u32 v{76+4*p+i}, v{BS+i}, v{LD+p}')
        a(f'ds_write_b128 v{LA+p}, {V(76+4*p,4)}')
    for r in range(32): a(f'v_mov_b32 v{R.ACC[0]+r}, 0')
    a('s_waitcnt lgkmcnt(0)\ns_barrier')
    stamp(a,6)
    if OPT['stamp']: a('s_memtime s[92:93]')
    a(f's_cmp_eq_u32 {sCNT}, 0\ns_cbranch_scc1 L2_epi')
    main_loop(a)
    stamp(a,7)
    a(f'''v_and_b32 v76, 31, v3
    v_lshlrev_b32 v76, 2, v76
    v_add_u32 v77, {WX}, v76
    ds_read2_b32 v[78:79], v77 offset0:0 offset1:32''')
    a(f'''v_lshrrev_b32 v80, 5, v3
    v_subrev_u32 v80, s63, v80
    s_add_u32 s57, s66, s3
    s_mul_i32 s58, s57, {MSTR}
    s_add_u32 s58, s58, {MA}
    s_lshl_b32 s57, s57, 7
    s_add_u32 s57, s57, {XZ}
    v_add_u32 v81, s58, v76
    v_add_u32 v82, s57, v76
    s_movk_i32 s58, {MSTR}''')
    for j in range(4):
        A0=R.ACC[0]+4*j; A1=R.ACC[1]+4*j
        a(f'''v_add_u32 v83, {2*j}, v80
        v_and_b32 v83, 7, v83
        v_cmp_ge_u32 vcc, s67, v83
        s_cbranch_vccz L2_nf{j}''')
        a.cond_begin()
        a(f'v_mad_u32_u24 v84, v83, s58, v81\nv_lshl_add_u32 v85, v83, 7, v82')
        for q in range(1,4): a(f'v_mul_f32 v{A0+q}, v{A0+q}, v78')
        for q in range(1,4): a(f'v_fmac_f32 v{A0+q}, v{A1+q}, v79')
        xyz_reduce(a, V(A0+1), V(A0+2), V(A0+3))
        a(f'''s_mov_b64 exec, vcc
        ds_write2_b32 v84, v{A0}, v{A1} offset0:0 offset1:32
        ds_write_b32 v85, v{A0+1}
        s_mov_b64 exec, -1''')
        a.cond_end(f'L2_nf{j}')
    WFr=44; HF=60; HR=68; S=12; U=28
    a(f'''L2_epi:
    s_nop 7
    s_waitcnt vmcnt(0)
    s_cmp_ge_u32 s3, 12
    s_cbranch_scc1 L2_posw''')
    st=a.state()
    a(f'''s_and_b32 s57, s3, 3
    s_lshr_b32 s58, s3, 2
    s_lshl_b32 s59, s57, 12
    s_add_u32 s59, s59, {WF}''')
    for kb in range(4): a(f'buffer_load_dwordx4 {V(WFr+4*kb,4)}, v2, s[24:27], s59 offen offset:{1024*kb}')
    a(f'''s_lshl_b32 s59, s17, 7
    s_add_u32 s28, s4, s59
    s_addc_u32 s29, s5, 0
    s_and_b32 s29, s29, 0xffff
    s_lshl_b32 s30, s18, 7
    s_add_u32 s32, s12, s59
    s_addc_u32 s33, s13, 0
    s_and_b32 s33, s33, 0xffff
    s_mov_b32 s34, s30
    s_lshl_b32 s58, s58, 4
    v_and_b32 v76, 15, v3
    v_add_u32 v76, s58, v76
    v_lshrrev_b32 v77, 4, v3
    v_lshlrev_b32 v78, 7, v76
    v_lshl_add_u32 v79, v77, 4, v78
    v_lshl_add_u32 v78, v77, 3, v78
    s_lshl_b32 s57, s57, 5
    v_add_u32 v78, s57, v78
    buffer_load_dwordx4 {V(HF,4)}, v79, s[28:31], 0 offen
    buffer_load_dwordx4 {V(HF+4,4)}, v79, s[28:31], 0 offen offset:64
    buffer_load_dwordx2 {V(HR,2)}, v78, s[28:31], 0 offen
    v_lshlrev_b32 v80, 2, v76
    s_mov_b32 s58, {MA}
    v_lshl_add_u32 v77, v77, 5, s58
    s_movk_i32 s58, {MSTR}
    s_waitcnt lgkmcnt(0)
    s_barrier''')
    stamp(a,8)
    if OPT['stamp']: a('s_memtime s[94:95]')
    def psum(getmask, node, base, stride, reads, n, tag):
        a(f'''{getmask}
        v_ffbl_b32 v81, v80
        v_bcnt_u32_b32 v80, v80, 0
        v_add_u32 v81, v81, {node}
        v_mad_u32_u24 v81, v81, {stride}, {base}
        v_cmp_lt_u32 vcc, 0, v80
        v_bfrev_b32 v84, 2
        v_cndmask_b32 v82, v84, v81, vcc''')
        for k,o in enumerate(reads): a(f'ds_read_b128 {V(S+4*k,4)}, v82 offset:{o}')
        a(f's_mov_b32 s59, 1')
        a(f's_nop 1\nL2_ps{tag}:')
        a(f'''v_add_u32 v81, {stride}, v81
        v_cmp_lt_u32 vcc, s59, v80
        v_cndmask_b32 v82, v84, v81, vcc''')
        for k,o in enumerate(reads): a(f'ds_read_b128 {V(U+4*k,4)}, v82 offset:{o}')
        a('s_add_u32 s59, s59, 1\nv_cmp_lt_u32 vcc, s59, v80')
        for k in range(n//2): a(f'v_pk_add_f32 {V(S+2*k,2)}, {V(S+2*k,2)}, {V(U+2*k,2)}')
        a(f's_cbranch_vccnz L2_ps{tag}')
    psum(f'ds_read_b32 v80, v80 offset:{MASK}', 'v76', 'v77', 's58', [0,16,128,144], 16, 'h')
    a(f'{MF16} v[84:87], {V(WFr,4)}, {V(HF,4)}, 0')
    for k in range(8): a(f'v_cvt_pk_bf16_f32 v{S+k}, v{S+2*k}, v{S+2*k+1}')
    a(f'''{MF16} v[84:87], {V(WFr+4,4)}, {V(HF+4,4)}, v[84:87]
    {MF16} v[88:91], {V(WFr+8,4)}, {V(S,4)}, 0
    {MF16} v[88:91], {V(WFr+12,4)}, {V(S+4,4)}, v[88:91]
    v_lshlrev_b32 v92, 16, v{HR}
    v_and_b32 v93, 0xffff0000, v{HR}
    v_lshlrev_b32 v94, 16, v{HR+1}
    v_and_b32 v95, 0xffff0000, v{HR+1}
    s_mov_b32 s59, {hex(fbits(LN2))}''')
    for i in range(4): a(f'v_fma_f32 v{84+i}, v{84+i}, s62, v{88+i}')
    for i in range(4): a(f'v_exp_f32 v{88+i}, -v{84+i}')
    for i in range(4): a(f'v_mul_f32 v{84+i}, s59, v{84+i}')
    for i in range(4): a(f'v_add_f32 v{88+i}, 1.0, v{88+i}')
    for i in range(4): a(f'v_rcp_f32 v{88+i}, v{88+i}')
    for i in range(4): a(f'v_fmac_f32 v{92+i}, v{84+i}, v{88+i}')
    a(f'''v_cvt_pk_bf16_f32 v92, v92, v93
    v_cvt_pk_bf16_f32 v93, v94, v95
    buffer_store_dwordx2 v[92:93], v78, s[32:35], 0 offen''')
    if OPT['stamp']:
        stamp(a,9); a('s_waitcnt vmcnt(0)'); stamp(a,10); stamp_out(a,13,1,OPT.get('wave',0),tag='2')
    a('s_endpgm')
    a.set_state(st)
    a(f'''L2_posw:
    s_sub_u32 s58, s3, 12
    s_lshl_b32 s58, s58, 4
    v_lshrrev_b32 v76, 2, v3
    v_add_u32 v76, s58, v76
    v_and_b32 v78, 3, v3
    v_add_u32 v79, s17, v76
    v_and_b32 v85, 63, v79
    v_lshlrev_b32 v85, 3, v85
    v_lshl_add_u32 v85, v78, 1, v85
    ds_read_u16_d16_hi v86, v85 offset:{PD}
    v_mul_u32_u24 v79, 6, v79
    v_lshl_add_u32 v79, v78, 1, v79
    v_bfrev_b32 v77, v78
    v_lshrrev_b32 v77, 26, v77
    v_add_u32 v77, {XZ}, v77
    v_lshlrev_b32 v80, 2, v76
    s_add_u32 s32, s12, 1280000
    s_addc_u32 s33, s13, 0
    s_and_b32 s33, s33, 0xffff
    s_mov_b32 s34, 60000
    s_movk_i32 s58, 128
    s_waitcnt lgkmcnt(0)
    s_barrier
    s_cmp_eq_u32 s3, 15
    s_cbranch_scc1 L2_end''')
    psum(f'ds_read_b32 v80, v80 offset:{MASK}', 'v76', 'v77', 's58', [0,64], 8, 'p')
    a(f'''v_pk_add_f32 {V(S,2)}, {V(S,2)}, {V(S+2,2)}
    v_pk_add_f32 {V(S+4,2)}, {V(S+4,2)}, {V(S+6,2)}
    v_pk_add_f32 {V(S,2)}, {V(S,2)}, {V(S+4,2)}
    v_add_f32 v{S}, v{S}, v{S+1}
    v_add_f32 v{S}, v{S}, v86
    v_cvt_pk_bf16_f32 v{S}, v{S}, v{S}
    v_cmp_gt_u32 vcc, s18, v76
    v_cmp_gt_u32 s[40:41], 3, v78
    s_and_b64 vcc, vcc, s[40:41]
    v_cndmask_b32 v79, v84, v79, vcc
    buffer_store_short v{S}, v79, s[32:35], 0 offen
    s_endpgm''')
    a.set_state(stslow)
    a(f'''L2_slow0:
    s_waitcnt lgkmcnt(0)
    s_barrier
    L2_slow:
    s_waitcnt vmcnt(0) lgkmcnt(0)
    s_barrier
    s_load_dwordx2 s[8:9], s[0:1], 40
    s_mov_b32 s40, s3
    v_lshlrev_b32 v12, 1, v3
    v_cmp_gt_u32 s[42:43], 32, v3
    v_mov_b32 v13, 1.0
    v_mov_b32 v14, {hex(fbits(LOG2E*2.0**KS))}
    v_cndmask_b32 v13, v13, v14, s[42:43]
    v_and_b32 v14, 31, v3
    v_lshlrev_b32 v14, 2, v14
    v_lshlrev_b32 v15, 2, v3
    v_mov_b32 v16, 0
    v_mov_b32 v17, 0
    s_waitcnt lgkmcnt(0)
    s_add_u32 s8, s8, {128*128}
    s_addc_u32 s9, s9, 0
    global_load_short_d16_hi v16, v12, s[8:9]
    global_load_short_d16_hi v17, v12, s[8:9] offset:128
    ds_read_b32 v18, v15 offset:{WX}
    v_mul_f32 v16, s62, v16
    v_mul_f32 v17, s62, v17
    s_lshl_b32 s56, s16, 2
    s_add_u32 s56, s56, {OFFS}
    s_waitcnt vmcnt(0) lgkmcnt(0)
    L2_sn:
    s_cmp_ge_u32 s40, s18
    s_cbranch_scc1 L2_epi
    s_add_u32 s41, s17, s40
    s_and_b32 s44, s41, 63
    s_lshl_b32 s45, s44, 3
    s_lshl_b32 s44, s44, 4
    v_mov_b32 v19, s45
    ds_read_b64 v[20:21], v19 offset:{PD}
    s_lshl_b32 s45, s40, 7
    v_add_u32 v19, s45, v12
    v_mov_b32 v22, 0
    ds_read_u16_d16_hi v22, v19 offset:{AL}
    v_lshlrev_b32 v23, 16, v20
    v_and_b32 v24, 0xffff0000, v20
    v_lshlrev_b32 v25, 16, v21
    v_mov_b32 v26, 0
    v_mov_b32 v27, 0
    v_mov_b32 v28, 0
    v_mov_b32 v29, 0
    s_mov_b32 s46, 0
    s_waitcnt lgkmcnt(0)
    L2_sc:
    s_lshl_b32 s47, s46, 10
    v_mov_b32 v19, s47
    buffer_load_dword v30, v19, s[24:27], s56 offen
    v_readfirstlane_b32 s48, v30
    s_mul_i32 s49, s46, {CHS}
    s_add_u32 s49, s49, {RECS}
    s_and_b32 s47, s48, 0xffff
    s_add_u32 s49, s49, s47
    s_lshr_b32 s48, s48, 16
    s_mov_b32 s50, 0
    L2_sb:
    s_cmp_ge_u32 s50, s48
    s_cbranch_scc1 L2_sbe
    v_lshl_add_u32 v19, v3, 3, s50
    buffer_load_dwordx2 v[30:31], v19, s[24:27], s49 offen
    v_cmp_gt_u32 s[52:53], s48, v19
    v_and_b32 v32, 0xffff, v30
    v_cmp_eq_u32 vcc, s44, v32
    s_and_b64 s[52:53], s[52:53], vcc
    L2_se:
    s_cmp_eq_u64 s[52:53], 0
    s_cbranch_scc1 L2_see
    s_ff1_i32_b64 s51, s[52:53]
    s_bitset0_b64 s[52:53], s51
    v_readlane_b32 s54, v30, s51
    v_readlane_b32 s55, v31, s51
    s_and_b32 s54, s54, 0xffff0000
    s_lshl_b32 s57, s55, 1
    s_add_u32 s57, s57, {P8}
    s_lshl_b32 s55, s55, 5
    v_mov_b32 v33, s57
    v_add_u32 v36, s55, v14
    buffer_load_dwordx2 v[34:35], v33, s[24:27], 0 offen
    buffer_load_dword v36, v36, s[24:27], 0 offen
    v_dot2_f32_bf16 v37, v34, s60, v23
    v_dot2_f32_bf16 v38, v34, s61, v24
    v_dot2_f32_bf16 v39, v35, s60, v25
    v_cvt_pk_bf16_f32 v40, 1.0, v37
    v_mul_f32 v37, v37, v37
    v_cvt_pk_bf16_f32 v41, v38, v39
    v_dot2_f32_bf16 v37, v41, v41, v37
    v_cvt_pk_bf16_f32 v37, 0, v37
    v_lshlrev_b32 v42, 16, v36
    v_cndmask_b32 v36, v36, v42, s[42:43]
    v_add_f32 v36, v36, v22
    v_mul_f32 v36, v36, v13
    v_fmac_f32 v36, v37, v16
    v_fmac_f32 v36, s54, v17
    v_exp_f32 v42, -v36
    v_add_f32 v42, 1.0, v42
    v_rcp_f32 v42, v42
    v_mul_f32 v36, v36, v42
    v_and_b32 v40, 0xffff0000, v40
    v_lshlrev_b32 v42, 16, v41
    v_and_b32 v41, 0xffff0000, v41
    v_add_f32 v26, v26, v36
    v_fmac_f32 v27, v36, v40
    v_fmac_f32 v28, v36, v42
    v_fmac_f32 v29, v36, v41
    s_branch L2_se
    L2_see:
    s_add_u32 s50, s50, 512
    s_branch L2_sb
    L2_sbe:
    s_add_u32 s46, s46, 1
    s_cmp_lt_u32 s46, 256
    s_cbranch_scc1 L2_sc
    s_nop 4
    v_mul_f32 v27, v27, v18
    v_mul_f32 v28, v28, v18
    v_mul_f32 v29, v29, v18''')
    xyz_reduce(a,'v27','v28','v29')
    a(f'''v_mov_b32 v28, v27
    v_permlane32_swap_b32 v27, v28
    v_add_f32 v27, v27, v28
    s_mul_i32 s45, s40, {MSTR}
    s_add_u32 s45, s45, {MA}
    v_add_u32 v19, s45, v15
    ds_write_b32 v19, v26
    s_lshl_b32 s45, s40, 7
    v_add_u32 v19, s45, v14
    ds_write_b32 v19, v27 offset:{XZ}
    s_lshl_b32 s45, s40, 2
    v_mov_b32 v19, s45
    v_mov_b32 v20, 1
    ds_write_b32 v19, v20 offset:{MASK}
    s_add_u32 s40, s40, 16
    s_waitcnt lgkmcnt(0)
    s_branch L2_sn
    L2_end:
    s_endpgm''')
    return a

HEAD=open('standalone__cheap_equivariant_egnn__graph.s.ref').read().split('; Override launch')[0]
def kd(name, vg):
    return f'''.amdhsa_kernel {name}
  .amdhsa_next_free_vgpr {vg}
  .amdhsa_next_free_sgpr 96
  .amdhsa_accum_offset {vg}
  .amdhsa_group_segment_fixed_size 0
  .amdhsa_kernarg_size 88
  .amdhsa_user_sgpr_count 2
  .amdhsa_user_sgpr_kernarg_segment_ptr 1
  .amdhsa_system_sgpr_workgroup_id_x 1
  .amdhsa_float_denorm_mode_32 3
.end_amdhsa_kernel
'''
def build():
    N1='egnn_bin_kernel'; N2='standalone__cheap_equivariant_egnn__graph_kernel'
    a1=k1(); a2=k2()
    s=HEAD
    s+=f'; @launch kernel={N1} grid=(256,1,1) block=(1024,1,1) lds=90112\n'
    s+=f'; @launch kernel={N2} grid=(256,1,1) block=(1024,1,1) lds=163840\n'
    ks=[(N1,a1),(N2,a2)]
    if 'ka' in OPT:
        s+='; @launch kernel=diag_kernel grid=(1,1,1) block=(64,1,1) lds=0\n'; ks.append(('diag_kernel',k3()))
    s+='.amdgcn_target "amdgcn-amd-amdhsa--gfx950"\n.text\n'
    for n,a in ks:
        s+=f'.globl {n}\n.p2align 8\n.type {n},@function\n{n}:\n'+a.text()
    s+='.section .rodata,"a"\n.p2align 6\n'+kd(N1,96)+'.p2align 6\n'+kd(N2,128)
    if 'ka' in OPT: s+='.p2align 6\n'+kd('diag_kernel',32)
    return s
if __name__=='__main__':
    out=sys.argv[1]
    for x in sys.argv[2:]:
        k,v=x.split('='); OPT[k]=int(v)
    open(out,'w').write(build())
```

```python
import sys, struct
from asmgen import *
import gen
from gen import V, fbits, MF, MF16, LOG2E, LN2, KS, scan64, OPT, R, P, main_loop, xyz_reduce, sLUT, sOFF, sCNT, SRD, kd, HEAD, STB
BT=0x000000; WF=0x140000; EP=0x17F000; GR=0x180000; F2=0x200000; RECS=0x240000; CHS=20480; WSEND=RECS+256*CHS+4096
OH=0; HIST=1024; BASE=1280; MASK=1536; FLAG=1792; CR=1856; WX=2368; PD=2624; AL=3200; POS=9344; XZ=9344
CAP=3232; VB=16512; REC=VB+CAP*4; NEGROWS=134-KS; LUT=163840-65536-NEGROWS*256
XLO=NEGROWS-32; MA=LUT+(192-XLO-1+32)*256; MSTR=272
H1=9728; OFF1=10752; SORT=11776; WL=32256; HL=48640; WHL=56832
assert REC+CAP*16<=LUT and MA+56*MSTR<=LUT+255*256 and POS+80000<=LUT+32*256 and XLO>=32
SC=' sc1'
nst=[0]
names=[]
def stamp(a, name):
    if OPT['stamp']:
        k=len(names); names.append(name)
        a(f's_memrealtime s[68:69]\ns_waitcnt lgkmcnt(0)\ns_mov_b32 s{72+k}, s68')
def stamp_out(a):
    if OPT['stamp']:
        a(f's_cmp_eq_u32 s3, {OPT.get("wave",0)}\ns_cbranch_scc0 L_nost')
        a(f's_lshl_b32 s3, s2, 7\ns_add_u32 s3, s3, {STB}\ns_mov_b64 exec, -1\nv_mov_b32 v1, s3')
        for k in range(len(names)):
            a(f'v_mov_b32 v2, s{72+k}\nglobal_store_dword v1, v2, s[14:15] offset:{4*k}')
        a(f's_waitcnt vmcnt(0)\nL_nost:')

npad=[0]
def pad(a):
    if OPT.get('warm',0):
        a(f'L_pad{npad[0]}:'); a('s_cbranch_execz L_wret'); npad[0]+=1
def kern():
    a=Asm()
    PR=92
    LL=120; LLA=124
    a('''s_cmp_ge_u32 s2, 256
    s_cbranch_scc1 L_end''')
    stamp(a,'start')
    a(f'''s_load_dwordx16 s[40:55], s[0:1], 0
    s_load_dwordx2 s[14:15], s[0:1], 80
    s_load_dwordx2 s[12:13], s[0:1], 64
    v_lshrrev_b32 v1, 6, v0
    v_readfirstlane_b32 s3, v1
    v_and_b32 v3, 63, v0
    v_lshlrev_b32 v2, 4, v3
    s_and_b32 s16, s2, 7
    s_lshl_b32 s16, s16, 5
    s_lshr_b32 s19, s2, 3
    s_add_u32 s16, s16, s19
    s_mul_i32 s17, s16, 625
    s_add_u32 s18, s17, 640
    s_add_u32 s17, s17, 15
    s_lshr_b32 s17, s17, 4
    s_lshr_b32 s18, s18, 4
    s_sub_u32 s18, s18, s17
    s_mov_b32 s10, 60000
    s_mov_b32 s11, 0x20000
    s_cmp_ge_u32 s3, 10
    s_cbranch_scc1 L_h0''')
    st0=a.state()
    a(f'''v_lshlrev_b32 v1, 4, v0
    v_lshlrev_b32 v14, 3, v0
    s_mul_i32 s56, s2, 10000
    s_mul_i32 s57, s2, 5000
    v_cmp_gt_u32 vcc, 625, v0
    s_mov_b64 s[64:65], vcc
    s_mov_b64 exec, vcc
    s_waitcnt lgkmcnt(0)
    s_add_u32 s48, s48, s56
    s_addc_u32 s49, s49, 0
    s_add_u32 s46, s46, s56
    s_addc_u32 s47, s47, 0
    s_add_u32 s44, s44, s57
    s_addc_u32 s45, s45, 0
    global_load_dwordx4 v[4:7], v1, s[48:49]
    global_load_dwordx4 v[8:11], v1, s[46:47]
    global_load_dwordx2 v[12:13], v14, s[44:45]
    s_mov_b64 exec, -1
    s_branch L_c0''')
    stE=a.state()
    a.set_state(st0)
    a(f'''L_h0:
    v_mul_u32_u24 v1, 12, v3
    s_cmp_ge_u32 s3, 14
    s_cbranch_scc1 L_h1
    s_sub_u32 s56, s3, 10
    s_lshl_b32 s57, s56, 12
    s_add_u32 s58, s57, {WL}
    s_mov_b32 m0, s58
    s_waitcnt lgkmcnt(0)
    s_add_u32 s60, s50, s57
    s_addc_u32 s61, s51, 0''')
    for i in range(4): a(f'global_load_lds_dwordx4 v2, s[60:61] offset:{1024*i}')
    a(f'''s_cmp_lg_u32 s3, 11
    s_cbranch_scc1 L_c0
    s_cmp_ge_u32 s2, 2
    s_cbranch_scc1 L_c0
    s_lshl_b32 s56, s2, 13
    s_mov_b32 m0, {WHL}
    s_add_u32 s60, s54, s56
    s_addc_u32 s61, s55, 0''')
    for i in range(4): a(f'global_load_lds_dwordx4 v2, s[60:61] offset:{1024*i}')
    a(f's_add_u32 s60, s60, 4096\ns_addc_u32 s61, s61, 0\ns_mov_b32 m0, {WHL+4096}')
    for i in range(4): a(f'global_load_lds_dwordx4 v2, s[60:61] offset:{1024*i}')
    a('s_branch L_c0')
    a.set_state(st0)
    a(f'''L_h1:
    s_cmp_eq_u32 s3, 15
    s_cbranch_scc1 L_h2
    v_lshrrev_b32 v4, 3, v3
    v_and_b32 v5, 7, v3
    v_xor_b32 v5, v5, v4
    v_lshlrev_b32 v5, 4, v5
    v_lshl_add_u32 v5, v4, 7, v5
    v_add_u32 v11, s17, v3
    v_mul_u32_u24 v7, 6, v11
    s_lshl_b32 s56, s17, 7
    s_mov_b32 m0, {HL}
    s_waitcnt lgkmcnt(0)
    s_add_u32 s28, s40, s56
    s_addc_u32 s29, s41, 0
    s_and_b32 s29, s29, 0xffff
    s_sub_u32 s30, 1280000, s56
    s_mov_b32 s31, 0x20000
    s_mov_b32 s8, s42
    s_and_b32 s9, s43, 0xffff''')
    for i in range(4): a(f'buffer_load_dwordx4 v5, s[28:31], 0 offen offset:{1024*i} lds')
    a(f'''s_mov_b32 m0, {HL+4096}
    s_movk_i32 s56, 0x1000
    buffer_load_dwordx4 v5, s[28:31], s56 offen lds
    buffer_load_ushort v8, v7, s[8:11], 0 offen
    buffer_load_ushort v10, v7, s[8:11], 0 offen offset:2
    buffer_load_ushort v9, v7, s[8:11], 0 offen offset:4
    s_branch L_c0''')
    a.set_state(st0)
    a(f'''L_h2:
    v_lshlrev_b32 v11, 1, v3
    v_lshlrev_b32 v7, 7, v3
    s_getpc_b64 s[60:61]
    v_mov_b64 v[12:13], 0
    v_mov_b64 v[14:15], 0''')
    if OPT.get('cpf',1):
        a('v_add_u32 v10, 0x1c00, v7\nglobal_load_dword v8, v7, s[60:61] offset:512\nglobal_load_dword v9, v10, s[60:61]')
    a(f'''ds_write_b128 v2, v[12:15] offset:{H1}
    ds_write_b128 v2, v[12:15] offset:{AL+5120}
    s_mov_b32 exec_hi, {hex((1<<((CR+128-HIST)//16-32))-1)}
    ds_write_b128 v2, v[12:15] offset:{HIST}
    s_mov_b32 exec_hi, -1
    s_waitcnt lgkmcnt(0)
    s_add_u32 s60, s50, {128*128}
    s_addc_u32 s61, s51, 0
    global_load_ushort v4, v11, s[60:61]
    global_load_ushort v5, v11, s[60:61] offset:128
    global_load_ushort v6, v11, s[52:53]
    s_mov_b32 s8, s42
    s_and_b32 s9, s43, 0xffff
    s_mul_i32 s56, s19, {15*128}
    s_mov_b64 exec, 0x7fff
    buffer_load_dword v10, v7, s[8:11], s56 offen
    s_mov_b64 exec, -1''')
    a.set_state(stE)
    D_=0x00800080; B2=192-XLO-1
    a(f'''L_c0:
    s_mov_b32 s39, {EP}
    s_load_dword s39, s[14:15], s39
    s_mov_b32 s24, s14
    s_and_b32 s25, s15, 0xffff
    s_mov_b32 s26, {WSEND}
    s_mov_b32 s27, 0x20000
    s_mov_b32 s20, s14
    s_or_b32 s21, s25, 0x80000000
    s_mov_b32 s22, 1280000
    s_mov_b32 s23, 0x00c00000
    s_mov_b32 s4, s40
    s_mov_b32 s5, s41
    s_mov_b32 s8, s42
    s_and_b32 s9, s43, 0xffff
    s_mov_b32 s6, s50
    s_mov_b32 s7, s51
    s_barrier''')
    if OPT.get('warm',0):
        a('s_mov_b64 exec, 0')
        a.raw('@WARMTREE@')
        a('L_wret:\ns_mov_b64 exec, -1')
    stamp(a,'B0')
    a(f'''s_mov_b32 {sLUT}, {LUT}
    s_mov_b32 {sOFF}, 0
    s_mov_b32 s60, {hex(fbits(LOG2E/2))}
    s_mov_b32 s61, {hex(D_)}
    s_mov_b32 s62, {hex(fbits(LOG2E))}
''')
    a(f'''v_lshlrev_b32 v76, 18, v0
    v_add_u32 v76, {hex(((KS+XLO)<<23)|0x8000)}, v76
    v_lshlrev_b32 v77, 3, v0
    v_add_u32 v77, {LUT+XLO*256}, v77
    v_add_u32 v78, 0x10000, v77''')
    for i in range(4): a(f'v_add_u32 v{80+i}, {hex(i<<16)}, v76')
    for i in range(4): a(f'v_mul_f32 v{80+i}, s62, v{80+i}')
    for i in range(4): a(f'v_exp_f32 v{84+i}, -v{80+i}')
    for i in range(4): a(f'v_add_f32 v{88+i}, 1.0, v{84+i}')
    for i in range(4): a(f'v_rcp_f32 v{88+i}, v{88+i}')
    for i in range(4): a(f'v_mul_f32 v{80+i}, v{80+i}, v{88+i}')
    for i in range(4): a(f'v_mul_f32 v{84+i}, -v{80+i}, v{84+i}')
    a(f'''v_cvt_pk_bf16_f32 v80, v80, v81
    v_cvt_pk_bf16_f32 v81, v82, v83
    v_cvt_pk_bf16_f32 v84, v84, v85
    v_cvt_pk_bf16_f32 v85, v86, v87
    ds_write_b64 v77, v[80:81]
    ds_write_b64 v78, v[84:85]''')
    a(f'''v_and_b32 v76, 15, v0
    v_lshlrev_b32 v77, 19, v76
    v_or_b32 v77, {hex((KS<<23)|0x8000)}, v77''')
    for i in range(8): a(f'v_add_u32 v{80+i}, {hex(i<<16)}, v77')
    for i in range(8): a(f'v_mul_f32 v{80+i}, s60, v{80+i}')
    for i in range(4): a(f'v_cvt_pk_bf16_f32 v{LL+i}, v{80+2*i}, v{81+2*i}')
    a(f'''v_lshrrev_b32 v78, 4, v0
    v_lshl_add_u32 v79, v0, 4, {sLUT}
    v_mul_lo_u32 v80, v78, s61''')
    for i in range(4): a(f'v_add_u32 v{LL+i}, v{LL+i}, v80')
    for i in range(4): a(f'v_add_u32 v{84+i}, {hex(97*D_)}, v{LL+i}')
    a(f'ds_write_b128 v79, v[84:87] offset:{96*256}')
    a(f'''v_sub_u32 v82, {B2-128-1}, v78
    v_ashrrev_i32 v82, 31, v82
    v_and_b32 v80, {hex(((255-B2+128-161)*D_)&0xffffffff)}, v82
    v_add_u32 v80, {hex(161*D_)}, v80
    v_and_b32 v81, {(255-B2+128-160)*256}, v82
    v_add_u32 v81, v81, v79''')
    for i in range(4): a(f'v_add_u32 v{88+i}, v80, v{LL+i}')
    a(f'''ds_write_b128 v81, v[88:91] offset:{160*256}
    v_sub_u32 v82, {XLO-1}, v78
    v_ashrrev_i32 v82, 31, v82
    v_and_b32 v80, {hex(33*D_)}, v82
    v_and_b32 v81, {32*256}, v82
    v_add_u32 v{LLA}, v81, v79''')
    for i in range(4): a(f'v_add_u32 v{LL+i}, v80, v{LL+i}')
    a(f'''s_waitcnt lgkmcnt(0)
    s_mul_i32 s39, s39, 0x9e3779b1
    s_add_u32 s39, s39, 0x7f4a7c15
    s_and_b32 s70, s39, 0xfc0f
    s_bfe_u32 s71, s39, 0x20004
    s_and_b32 s56, s39, 0xffff0000
    s_or_b32 s71, s71, s56''')
    stamp(a,'lutdone')
    a('s_cmp_ge_u32 s3, 10\ns_cbranch_scc1 L_h3')
    st1=a.state()
    a(f'''s_mov_b32 s58, 214749
    s_mov_b32 s59, 0x3f0
    v_mov_b32 v22, 8
    v_mov_b32 v23, s70
    s_mov_b32 s63, 0xffff0000
    s_mul_i32 s56, s2, {CHS}
    s_add_u32 s66, s56, {RECS}
    s_add_u32 s67, s66, 10240''')
    pad(a)
    for i in range(4): a(f'v_mul_u32_u24 v{14+i}, s58, v{4+i}')
    stamp(a,'data')
    for i in range(4): a(f'v_lshrrev_b32 v{14+i}, 21, v{14+i}')
    for i in range(4): a(f'v_and_b32 v{14+i}, 0x3fc, v{14+i}')
    a('s_mov_b64 exec, s[64:65]')
    for i in range(4): a(f'ds_add_rtn_u32 v{18+i}, v{14+i}, v22 offset:{H1}')
    a('s_mov_b64 exec, -1')
    for i in range(4): a(f'v_lshlrev_b32 v{4+i}, 4, v{4+i}')
    for i in range(4): a(f'v_and_or_b32 v{24+2*i}, v{4+i}, s59, v23')
    a('s_waitcnt lgkmcnt(0)\ns_barrier')
    stamp(a,'B1')
    a(f'ds_read_b128 v[4:7], v2 offset:{H1}')
    for i in range(4): a(f'v_lshl_or_b32 v{25+2*i}, v{8+i}, 2, s71')
    for i in range(4):
        e=12+(i>>1)
        a(f'v_and_or_b32 v{24+2*i}, v{e}, s63, v{24+2*i}' if i&1 else f'v_lshl_or_b32 v{24+2*i}, v{e}, 16, v{24+2*i}')
    a(f'''v_add3_u32 v12, v4, v5, v6
    v_add_u32 v12, v12, v7
    v_mov_b32 v13, v12''')
    scan64(a,'v13')
    a(f'''v_sub_u32 v8, v13, v12
    v_add_u32 v9, v8, v4
    v_add_u32 v10, v9, v5
    v_add_u32 v11, v10, v6
    ds_write_b128 v2, v[8:11] offset:{OFF1}
    s_mov_b64 exec, s[64:65]''')
    for i in range(4): a(f'ds_read_b32 v{14+i}, v{14+i} offset:{OFF1}')
    for i in range(4):
        a(f'v_add_u32 v{14+i}, v{14+i}, v{18+i}')
        a(f'ds_write_b64 v{14+i}, v[{24+2*i}:{25+2*i}] offset:{SORT}')
    a('s_mov_b64 exec, -1\ns_cmp_ge_u32 s3, 2\ns_cbranch_scc1 L_nogr'); a.cond_begin()
    a(f'''v_lshlrev_b32 v40, 3, v0
    ds_read_b64 v[4:5], v40 offset:{H1}
    ds_read_b64 v[6:7], v40 offset:{OFF1}
    s_lshl_b32 s56, s2, 11
    s_add_u32 s56, s56, {GR}
    v_mov_b32 v33, s39
    v_mov_b32 v35, s39
    v_lshl_or_b32 v32, v4, 16, v6
    v_lshl_or_b32 v34, v5, 16, v7
    buffer_store_dwordx4 v[32:35], v1, s[24:27], s56 offen{SC}''')
    a.cond_end('L_nogr')
    a('v_cmp_gt_u32 vcc, 616, v0\ns_waitcnt lgkmcnt(0)\ns_barrier')
    stamp(a,'B2')
    a(f'''ds_read_b128 v[12:15], v1 offset:{SORT}
    ds_read_b128 v[16:19], v1 offset:{SORT+10240}
    buffer_store_dwordx4 v[12:15], v1, s[24:27], s66 offen{SC}
    s_mov_b64 exec, vcc
    buffer_store_dwordx4 v[16:19], v1, s[24:27], s67 offen{SC}
    s_mov_b64 exec, -1''')
    stamp(a,'issued')
    a('s_barrier\ns_branch L_c1')
    stE=a.state()
    def posload(reg, k, sreg):
        if k%5==0 and k: a(f's_add_u32 {sreg}, {sreg}, {5*768}')
        a(f'buffer_load_dwordx3 {V(reg,3)}, v1, s[8:11], {sreg} offen offset:{(k%5)*768}')
    def posrepack(b): a(f'v_lshrrev_b32 v{b+3}, 16, v{b+2}\nv_alignbit_b32 v{b+2}, v{b+2}, v{b+1}, 16\nv_and_b32 v{b+1}, 0xffff, v{b+1}')
    a.set_state(st1); a.vm=[]
    pad(a)
    a(f'''L_h3:
    s_cmp_ge_u32 s3, 14
    s_cbranch_scc1 L_h4
    s_setprio 1
    s_sub_u32 s67, s3, 10
    s_mul_i32 s56, s67, {7*768}''')
    for k in range(7): posload(PR+4*k,k,'s56')
    a(f'''s_and_b32 s58, s3, 1
    s_bfe_u32 s59, s3, 0x10002
    v_lshrrev_b32 v4, 5, v3
    v_bfe_u32 v5, v3, 2, 2
    v_lshl_add_u32 v5, v4, 3, v5
    v_lshlrev_b32 v5, 7, v5
    v_and_b32 v6, 3, v3
    v_lshl_add_u32 v5, v6, 3, v5
    v_and_b32 v6, 16, v3
    v_lshl_add_u32 v5, v6, 1, v5
    s_lshl_b32 s56, s59, 13
    v_add_u32 v5, s56, v5
    v_and_b32 v6, 31, v3
    v_and_b32 v7, 7, v3
    v_xor_b32 v7, v7, v4
    v_lshlrev_b32 v7, 4, v7
    v_lshl_add_u32 v7, v6, 7, v7
    s_lshl_b32 s66, s58, 12
    v_add_u32 v8, s66, v7
    v_xor_b32 v9, 32, v8
    v_xor_b32 v10, 64, v8
    v_xor_b32 v11, 96, v8
    s_lshl_b32 s57, s58, 5
    s_add_u32 s63, s17, s57
    s_sub_u32 s57, s18, s57
    s_lshl_b32 s63, s63, 7
    s_add_u32 s28, s14, s63
    s_addc_u32 s29, s15, 0
    s_and_b32 s29, s29, 0xffff
    s_lshl_b32 s30, s57, 7
    s_mov_b32 s31, 0x20000
    s_mov_b32 s63, {hex((127-KS)<<23)}
    s_mov_b32 s64, 0x7fff0000
    s_mov_b32 s65, 0x80000000
    s_mul_i32 s67, s67, {7*1024}
    v_add_u32 v1, s67, v2
    s_waitcnt vmcnt(7)
    s_barrier''')
    H=12; W=28; D=60
    for kb in range(4):
        a(f'ds_read_b128 {V(H+4*kb,4)}, v{8+kb} offset:{HL}')
        for t in range(2):
            for u in range(2):
                a(f'ds_read_b64_tr_b16 {V(W+8*kb+4*t+2*u,2)}, v5 offset:{WL+kb*2048+u*512+t*64}')
    for kb in range(4):
        for t in range(2):
            a(f'{MF} {V(D+16*t,16)}, {V(H+4*kb,4)}, {V(W+8*kb+4*t,4)}, {V(D+16*t,16) if kb else 0}')
            if 2*kb+t<7: posrepack(PR+4*(2*kb+t))
    a('''s_cmp_eq_u32 s59, 0
    s_cbranch_scc1 L_apack''')
    st2=a.state()
    GB=OPT.get('gb',0)
    a('v_lshlrev_b32 v7, 2, v6\nv_lshl_add_u32 v7, v4, 9, v7')
    for j in range(4):
        rs=range(4*j,4*j+4)
        for r in rs: a(f'v_mul_f32 v{D+r}, s63, v{D+r}')
        for r in rs: a(f'v_mul_f32 v{H+r}, s62, abs(v{D+16+r})')
        for r in rs: a(f'v_cvt_pk_bf16_f32 v{D+r}, v{D+r}, 0')
        for r in rs: a(f'v_add_u32 v{H+r}, 0x8000, v{H+r}')
        for r in rs: a(f'v_sub_u32 v{H+r}, v{H+r}, v{D+r} clamp')
        for r in rs: a(f'v_and_or_b32 v{D+r}, v{D+16+r}, s65, v{D+r}')
        for r in rs: a(f'v_and_or_b32 v{D+r}, v{H+r}, s64, v{D+r}')
        for r in rs: a(f'buffer_store_dword v{D+r}, v7, s[28:31], 0 offen offset:{(8*j+(r&3))*128}{SC}')
        if j==0: a('s_cmp_eq_u32 s58, 1\ns_cbranch_scc1 L_g2')
        if j==GB: a('s_barrier'); pad(a)
        if j==GB+1: a('s_barrier')
    a('s_branch L_g0')
    a.set_state(st2)
    a('L_apack:\nv_lshlrev_b32 v7, 1, v6\nv_lshl_add_u32 v7, v4, 9, v7\nv_add_u32 v7, s66, v7')
    for j in range(4):
        rs=range(4*j,4*j+4)
        for r in rs: a(f'v_mul_f32 v{D+r}, s63, v{D+r}')
        for r in rs: a(f'v_mul_f32 v{D+16+r}, s62, v{D+16+r}')
        for r in rs: a(f'v_cvt_pk_bf16_f32 v{D+r}, v{D+r}, v{D+16+r}')
        if j==0: a('s_cmp_eq_u32 s58, 1\ns_cbranch_scc1 L_a1'); sta1=a.state()
    a('s_barrier\ns_barrier')
    for r in range(16):
        a(f'ds_write_b16 v7, v{D+r} offset:{AL+(8*(r>>2)+(r&3))*128}')
        a(f'ds_write_b16_d16_hi v7, v{D+r} offset:{AL+(8*(r>>2)+(r&3))*128+64}')
    a('s_branch L_g0')
    a.set_state(sta1)
    pad(a)
    a('L_a1:')
    for r in range(4):
        a(f'ds_write_b16 v7, v{D+r} offset:{AL+r*128}')
        a(f'ds_write_b16_d16_hi v7, v{D+r} offset:{AL+r*128+64}')
    a(f'''s_cmp_ge_u32 s2, 2
    s_cbranch_scc1 L_g2
    v_lshrrev_b32 v4, 4, v3
    v_bfe_u32 v5, v3, 2, 2
    v_lshl_add_u32 v5, v4, 3, v5
    v_lshlrev_b32 v5, 7, v5
    v_and_b32 v6, 3, v3
    v_lshl_add_u32 v5, v6, 3, v5
    s_lshl_b32 s56, s2, 11
    s_add_u32 s56, s56, {WF}''')
    for nt in range(4):
        for kb in range(2):
            for u in range(2):
                a(f'ds_read_b64_tr_b16 {V(12+8*nt+4*kb+2*u,2)}, v5 offset:{WHL+kb*4096+u*512+nt*32}')
    a('s_barrier\ns_waitcnt lgkmcnt(0)\ns_barrier')
    for nt in range(4):
        for kb in range(2): a(f'buffer_store_dwordx4 {V(12+8*nt+4*kb,4)}, v2, s[24:27], s56 offen offset:{kb*1024}{SC}')
        a('s_add_u32 s56, s56, 4096')
    a('s_branch L_g0\nL_g2:\ns_barrier\ns_barrier\nL_g0:')
    for k in range(7): a(f'ds_write_b128 v1, {V(PR+4*k,4)} offset:{POS+1024*k}')
    a('s_branch L_c1')
    a.set_state(st1); a.vm=[]
    a(f'''L_h4:
    s_cmp_eq_u32 s3, 14
    s_cbranch_scc0 L_h5
    v_and_b32 v6, 1, v3
    v_lshlrev_b32 v6, 4, v6
    v_mov_b32 v7, 0x3f80
    v_lshlrev_b32 v6, v6, v7
    v_bfe_u32 v7, v3, 1, 2''')
    for i in range(4): a(f'v_cmp_eq_u32 vcc, {i}, v7\nv_cndmask_b32 v{12+i}, 0, v6, vcc')
    a(f'''ds_write_b128 v2, v[12:15] offset:{OH}
    v_mov_b32 v12, s70
    v_mov_b32 v13, s71
    v_lshlrev_b32 v6, 3, v3
    s_mov_b64 exec, 0xfff
    ds_write_b64 v6, v[12:13] offset:{SORT+20000}
    s_mov_b64 exec, -1
    v_and_b32 v11, 63, v11
    v_lshlrev_b32 v11, 3, v11
    s_waitcnt vmcnt(0)
    v_lshl_or_b32 v8, v10, 16, v8
    ds_write_b64 v11, v[8:9] offset:{PD}
    s_branch L_h6
    L_h5:
    v_cmp_gt_u32 vcc, 32, v3
    v_mov_b32 v80, s62
    v_mov_b32 v81, {hex((127-KS)<<23)}
    v_cndmask_b32 v80, v80, v81, vcc
    s_waitcnt vmcnt(0)
    v_lshlrev_b32 v4, 16, v4
    v_lshlrev_b32 v5, 16, v5
    v_lshlrev_b32 v6, 16, v6
    v_mul_f32 v81, v4, v80
    v_mul_f32 v82, v5, v80
    v_cvt_pk_bf16_f32 v82, v82, v81
    v_and_b32 v83, 0xffff0000, v82
    v_fma_f32 v81, v4, v80, -v83
    v_cvt_pk_bf16_f32 v81, v81, 0
    v_lshlrev_b32 v85, 2, v3
    v_mul_f32 v83, {hex(fbits(LN2))}, v6
    ds_write_b16 v11, v82 offset:{CR+128}
    ds_write_b16_d16_hi v11, v82 offset:{CR+256}
    ds_write_b16 v11, v81 offset:{CR+384}
    ds_write_b32 v85, v83 offset:{WX}
    L_h6:
    s_sub_u32 s67, s3, 14
    s_mul_i32 s67, s67, 26
    s_add_u32 s67, s67, 28
    s_mul_i32 s56, s67, 768
    s_lshl_b32 s67, s67, 10
    s_add_u32 s67, s67, {POS}
    s_waitcnt lgkmcnt(0)
    s_barrier''')
    pad(a)
    for k in range(26): posload(12+4*k,k,'s56')
    a('v_add_u32 v4, s67, v2\ns_barrier\ns_barrier')
    for k in range(26):
        posrepack(12+4*k)
        if k==24: a('s_cmp_eq_u32 s3, 15\ns_cselect_b64 exec, 0xff, -1')
        if k==25: a('s_cselect_b64 exec, 0, -1')
        a(f'ds_write_b128 v4, {V(12+4*k,4)} offset:{1024*k}')
        if k==13: pad(a)
    a('s_mov_b64 exec, -1')
    a.set_state(stE); a.vm=[]
    a('L_c1:\ns_setprio 0')
    stamp(a,'B2c')
    cS=10; cR=11; cM=125; c0=126; c1=127; vG=113; vRA=114; vQ16=115; vW=116; vKey=117; vF2=118; vFour=119
    a(f'''; producer of this lane: c = (wave>>1) + 8*((wave&1)*16 + lane>>2)
    v_bfe_u32 v80, v0, 2, 5
    s_lshr_b32 s56, s3, 1
    v_lshl_add_u32 v81, v80, 3, s56
    v_lshlrev_b32 v{vG}, 11, v81
    s_lshl_b32 s66, s16, 3
    s_add_u32 s66, s66, {GR}
''')
    a(f'''v_and_b32 v78, 3, v3
    v_lshlrev_b32 v{vQ16}, 4, v78
    s_mov_b32 s57, {CHS}
    v_mad_u32_u24 v{vRA}, v81, s57, v{vQ16}
    v_lshrrev_b32 v{vF2}, 1, v{vG}
    s_lshl_b32 s56, s56, 5
    v_add_u32 v80, s56, v80
    v_mul_u32_u24 v80, 625, v80
    v_add_u32 v80, 15, v80
    v_lshrrev_b32 v80, 4, v80
    v_lshl_add_u32 v81, v78, 5, s19
    v_add_u32 v80, v80, v81
    v_lshlrev_b32 v{vW}, 7, v80
    v_cmp_gt_u32 s[32:33], 39, v81
    v_add_u32 v80, s17, v3
    v_and_b32 v80, 63, v80
    v_lshlrev_b32 v{vKey}, 2, v80
    v_lshrrev_b32 v84, 5, v3
    v_bfe_u32 v{cR}, v3, 2, 2
    v_bfe_u32 v79, v3, 4, 1
    v_lshlrev_b32 v80, 3, v78
    v_lshl_add_u32 v80, v79, 5, v80
    v_lshlrev_b32 v81, 7, v84
    v_sub_u32 v{cM}, 128, v81
    s_mov_b32 s56, {(CR-AL)&0xffffff}
    v_mad_i32_i24 v80, v84, s56, v80
    v_add_u32 v{c0}, {AL}, v80
    v_mad_u32_u24 v{c1}, v{cR}, v81, v{c0}
    s_mov_b32 s56, {VB}
    v_lshl_add_u32 {V(R.vV)}, v84, 6, s56
    s_mov_b32 s56, {REC}
    v_and_b32 v80, 1, v{cR}
    v_bfe_u32 v81, v3, 3, 2
    v_lshl_add_u32 v82, v81, 2, v78
    v_lshl_add_u32 v82, v80, 4, v82
    v_lshl_add_u32 {V(R.vR)}, v82, 4, s56
    v_lshrrev_b32 v81, 1, v{cR}
    v_lshl_add_u32 v81, v80, 2, v81
    v_lshl_add_u32 v81, v84, 4, v81
    v_lshl_add_u32 {V(R.vK)}, v81, 4, s56
    v_lshrrev_b32 v82, 1, v78
    v_and_b32 v83, 1, v78
    v_lshl_add_u32 v82, v82, 2, v83
    v_lshl_add_u32 {V(R.vQ)}, v82, 5, {V(R.vK)}
    v_lshl_add_u32 v{cS}, v79, 2, v78''')
    for r in range(16): a(f'v_mov_b64 {V(R.ACC[0]+2*r,2)}, 0')
    a(f'''s_mov_b32 s57, {RECS}
    s_mov_b32 s58, 0x80078007
    s_mov_b32 s59, {1<<19}
    s_mov_b32 s60, 0x0000bf80
    s_mov_b32 s61, 0xbf800000
    s_mov_b32 s63, {POS}
    s_mov_b32 s34, 0xfc0f
    s_mov_b32 s35, 0xffff0003
    v_mov_b32 v{vFour}, 4
    s_branch L_poll1''')
    stp=a.state()
    pad(a)
    a(f'''L_poll:
    s_sleep {OPT.get('slp',8)}
    s_mov_b64 exec, vcc
    L_poll1:
    buffer_load_dwordx2 v[76:77], v{vG}, s[24:27], s66 offen{SC}
    s_waitcnt vmcnt(0)
    v_xor_b32 v77, s39, v77
    v_and_or_b32 v77, v76, s58, v77
    v_cmp_ne_u32 vcc, 0, v77
    s_mov_b64 exec, -1
    s_cbranch_vccz L_got
    s_sub_u32 s59, s59, 1
    s_cmp_lg_u32 s59, 0
    s_cbranch_scc1 L_poll
    v_mov_b32 v76, 0
    L_got:''')
    stamp(a,'polled')
    RR=[76+6*i for i in range(4)]; RK=100; TM=108
    PSr=lambda s: (60 if s<4 else 44)+4*(s&3)
    PDr=lambda s: PSr(s)+2
    A=lambda s: RR[s>>1]+2+2*(s&1)
    M=lambda s: f's[{40+2*s}:{41+2*s}]'
    a(f'''v_add_u32_sdwa v{vRA}, v76, v{vRA} dst_sel:DWORD dst_unused:UNUSED_PAD src0_sel:WORD_0 src1_sel:DWORD
    v_lshrrev_b32 v76, 19, v76
    v_lshrrev_b32 v77, 3, v{vQ16}
    v_sub_u32 v77, v76, v77''')
    for s in range(8): a(f'v_cmp_lt_i32 {M(s)}, {8*(s>>1)+(s&1)}, v77')
    a(f'''v_cmp_lt_u32 vcc, 32, v76
    s_mov_b64 exec, vcc
    ds_write_b32 v{vFour}, v{vFour} offset:{FLAG-4}
    s_mov_b64 exec, -1
    s_waitcnt lgkmcnt(0)
    s_barrier''')
    stamp(a,'B0p')
    a('s_mov_b32 s67, 0\nL_rec:')
    a(f's_cmp_eq_u64 {M(4)}, 0\ns_cbranch_scc1 L_nr23'); a.cond_begin()
    for i in (2,3): a(f's_mov_b64 exec, {M(2*i)}\nbuffer_load_dwordx4 {V(RR[i]+2,4)}, v{vRA}, s[24:27], s57 offen offset:{64*i}{SC}')
    a.cond_end('L_nr23')
    for i in (0,1): a(f's_mov_b64 exec, {M(2*i)}\nbuffer_load_dwordx4 {V(RR[i]+2,4)}, v{vRA}, s[24:27], s57 offen offset:{64*i}{SC}')
    a(f'''s_mov_b64 exec, -1
    s_cmp_eq_u32 s3, s67
    s_cbranch_scc1 L_sf2
    s_waitcnt vmcnt(0)
    L_nf2:
    v_mov_b32 v108, 0''')
    def untag(i):
        r=RR[i]+2
        a(f'''s_mov_b64 exec, {M(2*i)}
        v_xor_b32 v{r}, s70, v{r}
        v_xor_b32 v{r+1}, s71, v{r+1}
        v_xor_b32 v{r+2}, s70, v{r+2}
        v_xor_b32 v{r+3}, s71, v{r+3}
        v_bitop3_b32 v109, v{r}, v{r+2}, s34 bitop3:0xa8
        v_bitop3_b32 v110, v{r+1}, v{r+3}, s35 bitop3:0xa8
        v_or3_b32 v108, v108, v109, v110''')
    untag(0); untag(1)
    a(f's_cmp_eq_u64 {M(4)}, 0\ns_cbranch_scc1 L_nu23'); a.cond_begin()
    untag(2); untag(3)
    a.cond_end('L_nu23')
    a(f'''s_mov_b64 exec, -1
    v_cmp_ne_u32 vcc, 0, v108
    s_cbranch_vccnz L_retry
    L_ok:''')
    stamp(a,'recs')
    def pre(sl):
        for s in sl:
            a(f'''v_bfe_u32 v{RK+s}, v{A(s)}, 2, 8
            v_lshl_add_u32 v{PSr(s)}, v{A(s)+1}, 1, s63
            v_bfe_u32 v{PDr(s)}, v{A(s)}, 1, 9''')
        for s in sl:
            a(f'''s_mov_b64 exec, {M(s)}
            ds_add_rtn_u32 v{RK+s}, v{RK+s}, v{vFour} offset:{HIST}
            ds_read_b64 {V(PSr(s),2)}, v{PSr(s)}
            ds_read_b64 {V(PDr(s),2)}, v{PDr(s)} offset:{PD}''')
        a('s_mov_b64 exec, -1')
    def geo(sl):
        t=lambda k,n: TM+2+2*k+n
        for k,s in enumerate(sl): a(f'v_lshlrev_b32 v{t(k,0)}, 16, v{PDr(s)}\nv_and_b32 v{t(k,1)}, 0xffff0000, v{PDr(s)}\nv_lshlrev_b32 v{PDr(s)+1}, 16, v{PDr(s)+1}')
        for k,s in enumerate(sl): a(f'v_dot2_f32_bf16 v{t(k,0)}, v{PSr(s)}, s60, v{t(k,0)}')
        for k,s in enumerate(sl): a(f'v_dot2_f32_bf16 v{t(k,1)}, v{PSr(s)}, s61, v{t(k,1)}')
        for k,s in enumerate(sl): a(f'v_dot2_f32_bf16 v{PDr(s)+1}, v{PSr(s)+1}, s60, v{PDr(s)+1}')
        for k,s in enumerate(sl): a(f'v_cvt_pk_bf16_f32 v{A(s)-2}, 1.0, v{t(k,0)}')
        for k,s in enumerate(sl): a(f'v_mul_f32 v{t(k,0)}, v{t(k,0)}, v{t(k,0)}')
        for k,s in enumerate(sl): a(f'v_cvt_pk_bf16_f32 v{A(s)-1}, v{t(k,1)}, v{PDr(s)+1}')
        for k,s in enumerate(sl): a(f'v_dot2_f32_bf16 v{t(k,0)}, v{A(s)-1}, v{A(s)-1}, v{t(k,0)}')
        for k,s in enumerate(sl): a(f'v_lshlrev_b32 v{RK+s}, 2, v{RK+s}')
        for k,s in enumerate(sl): a(f'v_cvt_pk_bf16_f32 v{A(s)+1}, v{t(k,0)}, v{t(k,0)}')
        for k,s in enumerate(sl): a(f's_mov_b64 exec, {M(s)}\nds_write_b128 v{RK+s}, {V(A(s)-2,4)} offset:{REC}')
        a('s_mov_b64 exec, -1')
    pre([0,1]); pre([2,3])
    a(f'''s_mov_b64 exec, s[32:33]
    buffer_load_dword v1, v{vW}, s[24:27], 0 offen{SC}
    s_mov_b64 exec, -1''')
    a(f's_cmp_eq_u64 {M(4)}, 0\ns_cbranch_scc1 L_np2'); a.cond_begin()
    pre([4,5])
    a(f's_cmp_eq_u64 {M(6)}, 0\ns_cbranch_scc1 L_np2')
    pre([6,7])
    a.cond_end('L_np2')
    KA=lambda s: TM+2+(s&3)
    for s in range(4): a(f'v_bfe_u32 v{KA(s)}, v{A(s)}, 2, 8')
    a('s_waitcnt lgkmcnt(0)\ns_barrier')
    pad(a)
    stamp(a,'B1p')
    vC=108; vI=109
    a(f'''ds_read_b32 v{vC}, v{vKey} offset:{HIST}
    s_and_b32 s67, s16, 0xe0
    s_lshl_b32 s67, s67, 2
    s_add_u32 s67, s67, {F2}
    buffer_load_dwordx2 v[4:5], v{vF2}, s[24:27], s67 offen{SC}
    ds_write_b128 v{LLA}, {V(LL,4)}
    v_mov_b32 v{vI}, v{vC}''')
    scan64(a,V(vI))
    a(f'''v_sub_u32 v{vC}, v{vI}, v{vC}
    v_readlane_b32 s56, v{vI}, 63
    ds_write_b32 v{vKey}, v{vC} offset:{BASE}''')
    def rb(sl):
        for s in sl: a(f's_mov_b64 exec, {M(s)}\nds_read_b32 v{KA(s)}, v{KA(s)} offset:{BASE}')
        a('s_mov_b64 exec, -1')
    def wv(sl):
        for s in sl: a(f'v_add_u32 v{RK+s}, v{RK+s}, v{KA(s)}')
        for s in sl: a(f's_mov_b64 exec, {M(s)}\nds_write_b32 v{RK+s}, v{A(s)+1} offset:{VB}')
        a('s_mov_b64 exec, -1')
    rb(range(4))
    a(f'''s_add_u32 s57, s56, 124
    s_lshr_b32 s57, s57, 7
    s_lshr_b32 s58, s57, 4
    s_and_b32 s57, s57, 15
    s_mul_i32 s64, s58, s3
    s_min_u32 s63, s3, s57
    s_add_u32 s64, s64, s63
    s_cmp_lt_u32 s3, s57
    s_addc_u32 {sCNT}, s58, 0
    s_lshl_b32 s64, s64, 7
    s_cmp_gt_u32 s56, {4*(CAP-32)}
    s_cbranch_scc1 L_big''')
    stbig=a.state()
    wv(range(4))
    a(f's_cmp_eq_u64 {M(4)}, 0\ns_cbranch_scc1 L_nv2'); a.cond_begin()
    for s in (4,5): a(f'v_bfe_u32 v{KA(s)}, v{A(s)}, 2, 8')
    rb([4,5]); wv([4,5]); geo([4]); geo([5])
    a(f's_cmp_eq_u64 {M(6)}, 0\ns_cbranch_scc0 L_v67')
    st67=a.state()
    a.cond_end('L_nv2')
    a('s_cmp_lg_u32 s3, 15\ns_cbranch_scc1 L_nopad'); a.cond_begin()
    a(f'''v_lshl_add_u32 v110, v3, 2, s56
    v_lshlrev_b32 v111, 2, v110
    s_mov_b32 exec_hi, 0
    ds_write_b32 v110, v12 offset:{VB}
    ds_write_b128 v111, v[12:15] offset:{REC}
    s_mov_b32 exec_hi, -1''')
    a.cond_end('L_nopad')
    a(f'''v_add_u32 {V(R.vV)}, s64, {V(R.vV)}
    L_f2:
    v_xor_b32 v4, s39, v4
    v_xnor_b32 v5, s39, v5
    v_or_b32 v4, v4, v5
    v_cmp_ne_u32 vcc, 0, v4
    s_cbranch_vccnz L_f2retry
    L_f2ok:
    s_waitcnt lgkmcnt(0)
    s_barrier''')
    pad(a)
    stamp(a,'B2a')
    a(f's_cmp_eq_u32 {sCNT}, 0\ns_cbranch_scc1 L_nog'); a.cond_begin()
    for j in range(4): a(P.vr(0,j,0))
    for r in range(16): a(P.ld(0,r))
    a.cond_end('L_nog')
    geo([0,2]); geo([1,3])
    a(f's_cmp_eq_u32 {sCNT}, 0\ns_cbranch_scc1 L_nowin'); a.cond_begin()
    a(f'''s_lshl_b32 s65, {sCNT}, 7
    s_add_u32 s65, s65, s64
    s_min_u32 s65, s65, s56
    s_sub_u32 s65, s65, 4
    v_cmp_ge_u32 vcc, s64, v{vI}
    s_bcnt1_i32_b64 s66, vcc
    v_cmp_ge_u32 vcc, s65, v{vI}
    s_bcnt1_i32_b64 s67, vcc
    s_sub_u32 s67, s67, s66
    s_add_u32 s63, s17, s66
    s_lshl_b32 s57, 1, s3
    s_lshl_b32 s58, s64, 2
    v_subrev_u32 v110, s63, v{cR}
    v_and_b32 v110, 7, v110
    v_xor_b32 v111, 4, v110
    v_add_u32 v110, s66, v110
    v_add_u32 v111, s66, v111
    v_mad_u32_u24 v110, v110, v{cM}, v{c0}
    v_mad_u32_u24 v111, v111, v{cM}, v{c1}
    v_add_lshl_u32 v112, s66, v3, 2
    v_mov_b32 v113, s57
    v_cmp_ge_u32 vcc, s67, v3
    ds_read_b64_tr_b16 {V(R.XB[0],2)}, v110
    ds_read_b64_tr_b16 {V(R.XB[0]+2,2)}, v111
    ds_read_b64_tr_b16 {V(R.XB[1],2)}, v110 offset:64
    ds_read_b64_tr_b16 {V(R.XB[1]+2,2)}, v111 offset:64
    s_mov_b64 exec, vcc
    ds_or_b32 v112, v113 offset:{MASK}
    s_cmp_gt_u32 s67, 7
    s_cselect_b64 exec, 1, 0
    ds_write_b32 v{vFour}, v{vFour} offset:{FLAG-4}
    s_mov_b64 exec, -1
    v_add_u32 {V(R.vR)}, s58, {V(R.vR)}
    v_add_u32 {V(R.vQ)}, s58, {V(R.vQ)}
    v_add_u32 {V(R.vK)}, s58, {V(R.vK)}
    v_subrev_u32 v110, s63, v{cS}
    v_and_b32 v110, 7, v110
    v_add_u32 v110, s63, v110
    v_and_b32 v110, 63, v110
    v_lshlrev_b32 v110, 20, v110
    v_sub_u32 {V(R.vK)}, {V(R.vK)}, v110''')
    a.cond_end('L_nowin')
    for j in range(4): a(P.vr(1,j,128))
    a(P.fe0)
    a('s_waitcnt lgkmcnt(0)\ns_barrier')
    stamp(a,'B2b')
    a(f'ds_read_b32 v10, v{vFour} offset:{FLAG-4}')
    a(P.fe1); a(P.fq(0))
    a('v_cmp_ne_u32 vcc, 0, v10\ns_cbranch_vccnz L_slow')
    a(f's_cmp_eq_u32 {sCNT}, 0\ns_cbranch_scc1 L_epi')
    a(P.xa)
    a('s_waitcnt lgkmcnt(0)')
    gen.PAD=pad
    main_loop(a)
    pad(a)
    stamp(a,'loopend')
    a(f'''v_and_b32 v76, 31, v3
    v_lshlrev_b32 v76, 2, v76
    v_add_u32 v77, {WX}, v76
    ds_read2_b32 v[78:79], v77 offset0:0 offset1:32
    v_lshrrev_b32 v80, 5, v3
    v_subrev_u32 v80, s63, v80
    s_add_u32 s57, s66, s3
    s_mul_i32 s58, s57, {MSTR}
    s_add_u32 s58, s58, {MA}
    s_lshl_b32 s57, s57, 7
    s_add_u32 s57, s57, {XZ}
    v_add_u32 v81, s58, v76
    v_add_u32 v82, s57, v76
    s_movk_i32 s58, {MSTR}''')
    for j in range(4):
        A0=R.ACC[0]+4*j; A1=R.ACC[1]+4*j
        a(f'''v_add_u32 v83, {2*j}, v80
        v_and_b32 v83, 7, v83
        v_cmp_ge_u32 vcc, s67, v83
        s_cbranch_vccz L_nfl{j}''')
        a.cond_begin()
        a(f'v_mad_u32_u24 v84, v83, s58, v81\nv_lshl_add_u32 v85, v83, 7, v82')
        for q in range(1,4): a(f'v_mul_f32 v{A0+q}, v{A0+q}, v78')
        for q in range(1,4): a(f'v_fmac_f32 v{A0+q}, v{A1+q}, v79')
        xyz_reduce(a, V(A0+1), V(A0+2), V(A0+3))
        a(f'''s_mov_b64 exec, vcc
        ds_write2_b32 v84, v{A0}, v{A1} offset0:0 offset1:32
        ds_write_b32 v85, v{A0+1}
        s_mov_b64 exec, -1''')
        a.cond_end(f'L_nfl{j}')
    WFr=44; HF=60; HR=68; S=12; U=28
    a(f'''L_epi:
    s_nop 7
    s_waitcnt vmcnt(0) lgkmcnt(0)
    s_cmp_ge_u32 s3, 12
    s_cbranch_scc1 L_posw''')
    st=a.state()
    a(f'''s_and_b32 s57, s3, 3
    s_lshr_b32 s58, s3, 2
    s_lshl_b32 s59, s57, 12
    s_add_u32 s59, s59, {WF}''')
    for kb in range(4): a(f'buffer_load_dwordx4 {V(WFr+4*kb,4)}, v2, s[24:27], s59 offen offset:{1024*kb}{SC}')
    a(f'''s_lshl_b32 s59, s17, 7
    s_add_u32 s28, s4, s59
    s_addc_u32 s29, s5, 0
    s_and_b32 s29, s29, 0xffff
    s_lshl_b32 s30, s18, 7
    s_mov_b32 s31, 0x20000
    s_add_u32 s32, s12, s59
    s_addc_u32 s33, s13, 0
    s_and_b32 s33, s33, 0xffff
    s_mov_b32 s34, s30
    s_mov_b32 s35, 0x20000
    s_lshl_b32 s58, s58, 4
    v_and_b32 v76, 15, v3
    v_add_u32 v76, s58, v76
    v_lshrrev_b32 v77, 4, v3
    v_lshlrev_b32 v78, 7, v76
    v_lshl_add_u32 v79, v77, 4, v78
    v_lshl_add_u32 v78, v77, 3, v78
    s_lshl_b32 s57, s57, 5
    v_add_u32 v78, s57, v78
    buffer_load_dwordx4 {V(HF,4)}, v79, s[28:31], 0 offen
    buffer_load_dwordx4 {V(HF+4,4)}, v79, s[28:31], 0 offen offset:64
    buffer_load_dwordx2 {V(HR,2)}, v78, s[28:31], 0 offen
    v_lshlrev_b32 v80, 2, v76
    s_mov_b32 s58, {MA}
    v_lshl_add_u32 v77, v77, 5, s58
    s_movk_i32 s58, {MSTR}
    s_waitcnt lgkmcnt(0)
    s_barrier''')
    pad(a)
    stamp(a,'B4')
    def psum(node, base, stride, reads, n, tag):
        a(f'''ds_read_b32 v80, v80 offset:{MASK}
        v_ffbl_b32 v81, v80
        v_bcnt_u32_b32 v80, v80, 0
        v_add_u32 v81, v81, {node}
        v_mad_u32_u24 v81, v81, {stride}, {base}
        v_cmp_lt_u32 vcc, 0, v80
        v_bfrev_b32 v84, 2
        v_cndmask_b32 v82, v84, v81, vcc''')
        for k,o in enumerate(reads): a(f'ds_read_b128 {V(S+4*k,4)}, v82 offset:{o}')
        a(f's_mov_b32 s59, 1')
        a(f's_nop 1\nL_ps{tag}:')
        a(f'''v_add_u32 v81, {stride}, v81
        v_cmp_lt_u32 vcc, s59, v80
        v_cndmask_b32 v82, v84, v81, vcc''')
        for k,o in enumerate(reads): a(f'ds_read_b128 {V(U+4*k,4)}, v82 offset:{o}')
        a('s_add_u32 s59, s59, 1\nv_cmp_lt_u32 vcc, s59, v80')
        for k in range(n//2): a(f'v_pk_add_f32 {V(S+2*k,2)}, {V(S+2*k,2)}, {V(U+2*k,2)}')
        a(f's_cbranch_vccnz L_ps{tag}')
    psum('v76', 'v77', 's58', [0,16,128,144], 16, 'h')
    a(f'{MF16} v[84:87], {V(WFr,4)}, {V(HF,4)}, 0')
    for k in range(8): a(f'v_cvt_pk_bf16_f32 v{S+k}, v{S+2*k}, v{S+2*k+1}')
    a(f'''{MF16} v[84:87], {V(WFr+4,4)}, {V(HF+4,4)}, v[84:87]
    {MF16} v[88:91], {V(WFr+8,4)}, {V(S,4)}, 0
    {MF16} v[88:91], {V(WFr+12,4)}, {V(S+4,4)}, v[88:91]
    v_lshlrev_b32 v92, 16, v{HR}
    v_and_b32 v93, 0xffff0000, v{HR}
    v_lshlrev_b32 v94, 16, v{HR+1}
    v_and_b32 v95, 0xffff0000, v{HR+1}
    s_mov_b32 s59, {hex(fbits(LN2))}''')
    for i in range(4): a(f'v_fma_f32 v{84+i}, v{84+i}, s62, v{88+i}')
    for i in range(4): a(f'v_exp_f32 v{88+i}, -v{84+i}')
    for i in range(4): a(f'v_mul_f32 v{84+i}, s59, v{84+i}')
    for i in range(4): a(f'v_add_f32 v{88+i}, 1.0, v{88+i}')
    for i in range(4): a(f'v_rcp_f32 v{88+i}, v{88+i}')
    for i in range(4): a(f'v_fmac_f32 v{92+i}, v{84+i}, v{88+i}')
    a(f'''v_cvt_pk_bf16_f32 v92, v92, v93
    v_cvt_pk_bf16_f32 v93, v94, v95
    buffer_store_dwordx2 v[92:93], v78, s[32:35], 0 offen''')
    if OPT['stamp']:
        stamp(a,'issued'); a('s_waitcnt vmcnt(0)'); stamp(a,'drained'); stamp_out(a)
    a('s_endpgm')
    a.set_state(st)
    a(f'''L_posw:
    s_sub_u32 s58, s3, 12
    s_lshl_b32 s58, s58, 4
    v_lshrrev_b32 v76, 2, v3
    v_add_u32 v76, s58, v76
    v_and_b32 v78, 3, v3
    v_add_u32 v79, s17, v76
    v_mul_u32_u24 v79, 6, v79
    v_lshl_add_u32 v79, v78, 1, v79
    v_cmp_gt_u32 vcc, s18, v76
    v_cmp_gt_u32 s[40:41], 3, v78
    s_and_b64 vcc, vcc, s[40:41]
    v_bfrev_b32 v84, 2
    v_cndmask_b32 v79, v84, v79, vcc
    buffer_load_ushort v86, v79, s[8:11], 0 offen
    v_bfrev_b32 v77, v78
    v_lshrrev_b32 v77, 26, v77
    v_add_u32 v77, {XZ}, v77
    v_lshlrev_b32 v80, 2, v76
    s_add_u32 s32, s12, 1280000
    s_addc_u32 s33, s13, 0
    s_and_b32 s33, s33, 0xffff
    s_mov_b32 s34, 60000
    s_mov_b32 s35, 0x20000
    s_movk_i32 s58, 128
    s_waitcnt lgkmcnt(0)
    s_barrier
    s_cmp_eq_u32 s3, 15
    s_cbranch_scc1 L_w15''')
    psum('v76', 'v77', 's58', [0,64], 8, 'p')
    a(f'''v_pk_add_f32 {V(S,2)}, {V(S,2)}, {V(S+2,2)}
    v_pk_add_f32 {V(S+4,2)}, {V(S+4,2)}, {V(S+6,2)}
    v_pk_add_f32 {V(S,2)}, {V(S,2)}, {V(S+4,2)}
    v_lshlrev_b32 v86, 16, v86
    v_add_f32 v{S}, v{S}, v{S+1}
    v_add_f32 v{S}, v{S}, v86
    v_cvt_pk_bf16_f32 v{S}, v{S}, v{S}
    buffer_store_short v{S}, v79, s[32:35], 0 offen
    s_endpgm
    L_w15:
    s_cmp_lg_u32 s2, 0
    s_cbranch_scc1 L_end
    v_mov_b32 v110, {EP}
    v_mov_b32 v111, s39
    s_mov_b64 exec, 1
    buffer_store_dword v111, v110, s[24:27], 0 offen
    s_endpgm''')
    a.set_state(st67)
    pad(a)
    a('L_v67:')
    for s in (6,7): a(f'v_bfe_u32 v{KA(s)}, v{A(s)}, 2, 8')
    rb([6,7]); wv([6,7]); geo([6]); geo([7])
    a('s_branch L_nv2')
    a(f'''L_sf2:
    s_lshl_b32 s56, s2, 10
    s_add_u32 s56, s56, {F2}
    s_not_b32 s66, s39
    s_mov_b32 s67, 16
    v_mov_b32 v108, s39
    v_mov_b32 v109, s66
    v_mov_b32 v110, s39
    v_mov_b32 v111, s66
    buffer_store_dwordx4 v[108:111], v2, s[24:27], s56 offen{SC}
    s_waitcnt vmcnt(1)
    s_nop 0
    s_branch L_nf2''')
    a(f'''L_retry:
    s_sleep 2
    s_sub_u32 s59, s59, 1
    s_cmp_gt_i32 s59, 0
    s_cbranch_scc1 L_rec''')
    for s in range(8): a(f's_mov_b64 {M(s)}, 0')
    a(f'''s_branch L_ok
    L_f2retry:
    s_sleep 2
    buffer_load_dwordx2 v[4:5], v{vF2}, s[24:27], s67 offen{SC}
    s_waitcnt vmcnt(0)
    s_sub_u32 s59, s59, 1
    s_cmp_gt_i32 s59, 0
    s_cbranch_scc1 L_f2
    s_branch L_f2ok''')
    a.set_state(stbig)
    a(f'''L_big:
    s_waitcnt lgkmcnt(0)
    ds_write_b32 v{vFour}, v{vFour} offset:{FLAG-4}
    s_mov_b32 {sCNT}, 0''')
    for s in range(8): a(f's_mov_b64 {M(s)}, 0')
    a(f'''s_waitcnt vmcnt(0)
    s_branch L_nopad
    L_slow:
    s_waitcnt vmcnt(0) lgkmcnt(0)
    s_mov_b32 s40, s3
    v_lshlrev_b32 v12, 1, v3
    v_cmp_gt_u32 s[42:43], 32, v3
    v_mov_b32 v13, 1.0
    v_mov_b32 v14, {hex(fbits(LOG2E*2.0**KS))}
    v_cndmask_b32 v13, v13, v14, s[42:43]
    v_and_b32 v14, 31, v3
    v_lshlrev_b32 v14, 2, v14
    v_lshlrev_b32 v15, 2, v3
    s_add_u32 s6, s6, {128*128}
    s_addc_u32 s7, s7, 0
    global_load_ushort v16, v12, s[6:7]
    global_load_ushort v17, v12, s[6:7] offset:128
    ds_read_b32 v18, v15 offset:{WX}
    v_lshlrev_b32 v16, 16, v16
    v_lshlrev_b32 v17, 16, v17
    v_mul_f32 v16, s62, v16
    v_mul_f32 v17, s62, v17
    s_lshl_b32 s56, s16, 3
    s_add_u32 s56, s56, {GR}
    s_waitcnt vmcnt(0) lgkmcnt(0)
    L_sn:
    s_cmp_ge_u32 s40, s18
    s_cbranch_scc1 L_epi
    s_add_u32 s41, s17, s40
    s_and_b32 s44, s41, 63
    s_lshl_b32 s44, s44, 4
    s_mul_i32 s45, s41, 6
    v_mov_b32 v19, s45
    buffer_load_ushort v23, v19, s[8:11], 0 offen
    buffer_load_ushort v24, v19, s[8:11], 0 offen offset:2
    buffer_load_ushort v25, v19, s[8:11], 0 offen offset:4
    s_lshl_b32 s45, s40, 7
    v_add_u32 v20, s45, v12
    ds_read_u16 v22, v20 offset:{AL}
    v_lshlrev_b32 v23, 16, v23
    v_lshlrev_b32 v24, 16, v24
    v_lshlrev_b32 v25, 16, v25
    v_lshlrev_b32 v22, 16, v22
    v_mov_b32 v26, 0
    v_mov_b32 v27, 0
    v_mov_b32 v28, 0
    v_mov_b32 v29, 0
    s_mov_b32 s46, 0
    L_sc:
    s_lshl_b32 s47, s46, 11
    v_mov_b32 v19, s47
    buffer_load_dwordx2 v[30:31], v19, s[24:27], s56 offen{SC}
    v_readfirstlane_b32 s48, v30
    v_readfirstlane_b32 s47, v31
    s_cmp_eq_u32 s47, s39
    s_cselect_b32 s48, s48, 0
    s_mul_i32 s49, s46, {CHS}
    s_add_u32 s49, s49, {RECS}
    s_and_b32 s47, s48, 0xffff
    s_add_u32 s49, s49, s47
    s_lshr_b32 s48, s48, 16
    s_mov_b32 s50, 0
    L_sb:
    s_cmp_ge_u32 s50, s48
    s_cbranch_scc1 L_sbe
    v_lshl_add_u32 v19, v3, 3, s50
    buffer_load_dwordx2 v[30:31], v19, s[24:27], s49 offen{SC}
    v_cmp_gt_u32 s[52:53], s48, v19
    v_xor_b32 v30, s70, v30
    v_xor_b32 v31, s71, v31
    v_and_b32 v32, 0xffff, v30
    v_cmp_eq_u32 vcc, s44, v32
    s_and_b64 s[52:53], s[52:53], vcc
    L_se:
    s_cmp_eq_u64 s[52:53], 0
    s_cbranch_scc1 L_see
    s_ff1_i32_b64 s51, s[52:53]
    s_bitset0_b64 s[52:53], s51
    v_readlane_b32 s54, v30, s51
    v_readlane_b32 s55, v31, s51
    s_and_b32 s54, s54, 0xffff0000
    s_and_b32 s55, s55, 0xffff
    s_lshr_b32 s57, s55, 1
    s_add_u32 s57, s57, s55
    s_lshl_b32 s55, s55, 5
    v_mov_b32 v33, s57
    v_add_u32 v36, s55, v14
    buffer_load_ushort v37, v33, s[8:11], 0 offen
    buffer_load_ushort v38, v33, s[8:11], 0 offen offset:2
    buffer_load_ushort v39, v33, s[8:11], 0 offen offset:4
    buffer_load_dword v36, v36, s[24:27], 0 offen{SC}
    v_lshlrev_b32 v37, 16, v37
    v_lshlrev_b32 v38, 16, v38
    v_lshlrev_b32 v39, 16, v39
    v_sub_f32 v37, v23, v37
    v_sub_f32 v38, v24, v38
    v_sub_f32 v39, v25, v39
    v_cvt_pk_bf16_f32 v40, 1.0, v37
    v_mul_f32 v37, v37, v37
    v_cvt_pk_bf16_f32 v41, v38, v39
    v_dot2_f32_bf16 v37, v41, v41, v37
    v_cvt_pk_bf16_f32 v37, 0, v37
    v_lshlrev_b32 v42, 16, v36
    v_cndmask_b32 v36, v36, v42, s[42:43]
    v_add_f32 v36, v36, v22
    v_mul_f32 v36, v36, v13
    v_fmac_f32 v36, v37, v16
    v_fmac_f32 v36, s54, v17
    v_exp_f32 v42, -v36
    v_add_f32 v42, 1.0, v42
    v_rcp_f32 v42, v42
    v_mul_f32 v36, v36, v42
    v_and_b32 v40, 0xffff0000, v40
    v_lshlrev_b32 v42, 16, v41
    v_and_b32 v41, 0xffff0000, v41
    v_add_f32 v26, v26, v36
    v_fmac_f32 v27, v36, v40
    v_fmac_f32 v28, v36, v42
    v_fmac_f32 v29, v36, v41
    s_branch L_se
    L_see:
    s_add_u32 s50, s50, 512
    s_branch L_sb
    L_sbe:
    s_add_u32 s46, s46, 1
    s_cmp_lt_u32 s46, 256
    s_cbranch_scc1 L_sc
    s_nop 4
    v_mul_f32 v27, v27, v18
    v_mul_f32 v28, v28, v18
    v_mul_f32 v29, v29, v18''')
    xyz_reduce(a,'v27','v28','v29')
    a(f'''v_mov_b32 v28, v27
    v_permlane32_swap_b32 v27, v28
    v_add_f32 v27, v27, v28
    s_mul_i32 s45, s40, {MSTR}
    s_add_u32 s45, s45, {MA}
    v_add_u32 v19, s45, v15
    ds_write_b32 v19, v26
    s_lshl_b32 s45, s40, 7
    v_add_u32 v19, s45, v14
    ds_write_b32 v19, v27 offset:{XZ}
    s_lshl_b32 s45, s40, 2
    v_mov_b32 v19, s45
    v_mov_b32 v20, 1
    ds_write_b32 v19, v20 offset:{MASK}
    s_add_u32 s40, s40, 16
    s_waitcnt lgkmcnt(0)
    s_branch L_sn
    L_end:
    s_endpgm''')
    return a

def diag():
    ia,ib,mult=OPT['ia'],OPT['ib'],OPT.get('mult',20)
    a=Asm()
    a(f'''s_cmp_ge_u32 s2, 1
    s_cbranch_scc1 L3_end
    s_load_dwordx2 s[4:5], s[0:1], 80
    s_memrealtime s[8:9]
    v_lshlrev_b32 v1, 7, v0
    v_add_u32 v2, {STB+4*ia}, v1
    v_add_u32 v3, {STB+4*ib}, v1
    s_waitcnt lgkmcnt(0)''')
    for i in range(4):
        a(f'global_load_dword v{10+i}, v2, s[4:5]\nglobal_load_dword v{20+i}, v3, s[4:5]\nv_add_u32 v2, 8192, v2\nv_add_u32 v3, 8192, v3')
    for i in range(4): a(f'v_sub_u32 v{10+i}, s8, v{10+i}\nv_sub_u32 v{20+i}, s8, v{20+i}')
    opa='max' if not OPT.get('amax') else 'min'; opb='min' if not OPT.get('bmin') else 'max'
    for i in range(1,4): a(f'v_{opa}_u32 v10, v10, v{10+i}\nv_{opb}_u32 v20, v20, v{20+i}')
    a('v_readlane_b32 s10, v10, 0\nv_readlane_b32 s11, v20, 0')
    for l in range(1,64):
        a(f'v_readlane_b32 s12, v10, {l}\nv_readlane_b32 s13, v20, {l}\ns_{opa}_u32 s10, s10, s12\ns_{opb}_u32 s11, s11, s13')
    if OPT.get('tonow'): a('s_mov_b32 s11, 0')
    a(f'''s_sub_u32 s10, s10, s11
    s_max_i32 s10, s10, 0
    s_min_u32 s10, s10, 10000
    s_mul_i32 s10, s10, {mult}
    L3_spin:
    s_memrealtime s[12:13]
    s_waitcnt lgkmcnt(0)
    s_sub_u32 s12, s12, s8
    s_cmp_lt_u32 s12, s10
    s_cbranch_scc1 L3_spin
    L3_end:
    s_endpgm''')
    return a
def pre_kernel():
    a=Asm()
    a(f'''s_cmp_ge_u32 s2, 1
    s_cbranch_scc1 L4_end
    s_load_dwordx2 s[4:5], s[0:1], 80
    v_lshlrev_b32 v1, 7, v0
    v_add_u32 v1, {STB+4*20}, v1
    s_waitcnt lgkmcnt(0)
    s_memrealtime s[8:9]
    s_waitcnt lgkmcnt(0)
    v_mov_b32 v2, s8
    global_store_dword v1, v2, s[4:5]
    L4_end:
    s_endpgm''')
    return a
def build():
    N='standalone__cheap_equivariant_egnn__graph_kernel'
    a=kern()
    n=npad[0]; assert n<=16, n
    tree=''.join(f'    s_cmp_eq_u32 s3, {15-k}\n    s_cbranch_scc1 L_pad{k}\n' for k in range(n))
    a.out=[tree.rstrip() if x=='@WARMTREE@' else x for x in a.out]
    d='ia' in OPT
    s=HEAD+('; @launch kernel=pre_kernel grid=(1,1,1) block=(256,1,1) lds=0\n' if OPT.get('pre') else '')+(f'; @launch kernel={N} grid=(256,1,1) block=(1024,1,1) lds=163840\n; @launch kernel=diag_kernel grid=(1,1,1) block=(64,1,1) lds=0\n' if d else '; @launch grid=(256,1,1) block=(1024,1,1) lds=163840\n')
    s+='.amdgcn_target "amdgcn-amd-amdhsa--gfx950"\n.text\n'
    s+=f'.globl {N}\n.p2align 8\n.type {N},@function\n{N}:\n'+a.text()
    if d: s+='.globl diag_kernel\n.p2align 8\n.type diag_kernel,@function\ndiag_kernel:\n'+diag().text()
    if OPT.get('pre'): s+='.globl pre_kernel\n.p2align 8\n.type pre_kernel,@function\npre_kernel:\n'+pre_kernel().text()
    s+='.section .rodata,"a"\n.p2align 6\n'+kd(N,128)
    if d: s+='.p2align 6\n'+kd('diag_kernel',32)
    if OPT.get('pre'): s+='.p2align 6\n'+kd('pre_kernel',32)
    return s
if __name__=='__main__':
    out=sys.argv[1]
    for x in sys.argv[2:]:
        k,v=x.split('='); OPT[k]=int(v)
    open(out,'w').write(build())
    if names: print(len(names), ','.join(names))
```

```python
import sys, struct, re
from asmgen import *
def V(b,n=1): return f'v{b}' if n==1 else f'v[{b}:{b+n-1}]'
def fbits(x): return struct.unpack('<I',struct.pack('<f',x))[0]
MF='v_mfma_f32_32x32x16_bf16'; MF16='v_mfma_f32_16x16x32_bf16'
LOG2E=1.4426950408889634; LN2=0.6931471805599453
KS=68
OPT=dict(stamp=0)
STB=0x1000000
BT=0x000000; WF=0x140000; EP=0x17F000; GR=0x180000; F2=0x200000; RECS=0x240000; CHS=20480; WSEND=RECS+256*CHS+4096
OH=0; HIST=1024; BASE=1280; MASK=1536; FLAG=1792; C1=1800; C2=1804; CR=1856; WX=2368; PD=2624; AL=3200; POS=9344
XZ=9344; HE=16512; VB=21632; CAP=2976; REC=VB+CAP*4
NEGROWS=134-KS; LUT=163840-65536-NEGROWS*256
XLO=NEGROWS-32; MA=LUT+(192-XLO-1+32)*256; MSTR=272
H1=9728; OFF1=10752; SORT=11776; WL=32256; HL=48640; WHL=61952
assert REC+CAP*16<=LUT and MA+56*MSTR<=LUT+255*256 and POS+80000<=LUT+32*256 and XLO>=32
SC=' sc1'
class R:
    FK=4; XAD=5; vV=6; vR=7; vQ=8; vK=9
    ACC=[12,28]; L=[44,60]; YL=76; T=92; SA=108; XA=116; XB=[120,124]
sLUT='s36'; sOFF='s37'; sCNT='s38'; SRD='s[20:23]'

names=[]
def stamp(a, name):
    if OPT['stamp'] and name not in OPT.get('nost','').split(','):
        if name not in names: names.append(name)
        k=names.index(name); assert k<30
        a(f's_memrealtime s[68:69]\ns_waitcnt lgkmcnt(0)\ns_mov_b32 s{72+k}, s68')
def finish(a):
    if OPT['stamp']:
        stamp(a,'issued'); a('s_waitcnt vmcnt(0)'); stamp(a,'drained'); a('s_branch L_stout')
    else: a('s_endpgm')
def stamp_tail(a):
    if OPT['stamp']:
        a(f'L_stout:\ns_barrier\ns_lshl_b32 s68, s2, 4\ns_add_u32 s3, s3, s68\ns_lshl_b32 s3, s3, 7\ns_add_u32 s3, s3, {STB}\ns_mov_b64 exec, -1\nv_mov_b32 v1, s3')
        for k in range(30):
            a(f'v_mov_b32 v2, s{72+k}\nglobal_store_dword v1, v2, s[14:15] offset:{4*k}')
        a(f's_waitcnt vmcnt(0)\ns_endpgm')
class BAsm(Asm):
    def __call__(s, text):
        for line in text.split('\n'):
            m=re.match(r'\s*s_barrier\s*;\s*@(\w+)', line)
            if m and OPT['stamp']:
                stamp(s,'a'+m.group(1)); Asm.__call__(s,'s_barrier'); stamp(s,m.group(1))
            else: Asm.__call__(s,line)

def scan64(a, v, fill=()):
    fill=list(fill)
    ops=[f'row_shr:{sh} row_mask:0xf' for sh in (1,2,4,8)]+['row_bcast:15 row_mask:0xa','row_bcast:31 row_mask:0xc']
    for o in ops:
        for _ in range(2):
            if fill: a(fill.pop(0))
        a(f'v_add_u32_dpp {v}, {v}, {v} {o} bank_mask:0xf')
    for x in fill: a(x)
def xyz_reduce(a, x, y, z):
    a(f'v_add_f32_dpp {x}, {x}, {x} row_ror:8 row_mask:0xf bank_mask:0xf')
    a(f'v_add_f32_dpp {z}, {z}, {z} row_ror:8 row_mask:0xf bank_mask:0xf')
    a(f'v_add_f32_dpp {x}, {y}, {y} row_ror:8 row_mask:0xf bank_mask:0xc')
    a(f'v_add_f32_dpp {x}, {x}, {x} row_shl:4 row_mask:0xf bank_mask:0x5')
    a(f'v_add_f32_dpp {x}, {z}, {z} row_shr:4 row_mask:0xf bank_mask:0x2')

class P:
    @staticmethod
    def vr(b,j,off): return f'ds_read_b128 {V(R.L[b]+4*j,4)}, {V(R.vV)} offset:{off+16*j}'
    @staticmethod
    def ld(b,r): return (f'v_min_u32 {V(R.L[b]+r)}, 39996, {V(R.L[b]+r)}\n' if OPT.get('safe') else '')+f'buffer_load_dword {V(R.L[b]+r)}, {V(R.L[b]+r)}, {SRD}, 0 offen{SC}'
    fe0=f'v_add_u32 {V(R.XAD)}, {sOFF}, {V(R.vR)}'
    fe1=f's_mov_b32 exec_hi, 0\nds_read_u16 {V(R.XAD)}, {V(R.XAD)} offset:8\ns_mov_b32 exec_hi, -1\ns_add_u32 {sOFF}, {sOFF}, 512'
    xa=f'ds_read_b128 {V(R.XA,4)}, {V(R.XAD)}'
    @staticmethod
    def fq(off): return f'ds_read_u16_d16_hi {V(R.FK)}, {V(R.vQ)} offset:{off+8}'

def main_loop(a):
    def mad(r): return f'v_mad_u32_u16 {V(R.YL+r)}, {V(R.YL+r)}, 2, {sLUT} op_sel:[1,0,0,0]'
    def rd(r): return f'ds_read_u16{"_d16_hi" if r&4 else ""} {V(R.YL+r)}, {V(R.YL+r)}'
    def sh(b):
        if OPT.get('sh64'): return [f'v_lshlrev_b64 {V(R.YL+r,2)}, 16, {V(R.L[b]+r,2)}' for r in range(0,16,2)]
        return [f'v_lshlrev_b32 {V(R.YL+r)}, 16, {V(R.L[b]+r)}' for r in range(16)]
    def ex(b,r): return f'v_exp_f32 {V(R.T+r)}, -{V(R.L[b]+r)}'
    def rc(r): return f'v_rcp_f32 {V(R.T+r)}, {V(R.T+r)}'
    def pa(i): return f'v_pk_add_f32 {V(R.T+2*i,2)}, {V(R.T+2*i,2)}, 1.0 op_sel_hi:[1,0]'
    def pm(b,i): return f'v_pk_mul_f32 {V(R.T+2*i,2)}, {V(R.T+2*i,2)}, {V(R.L[b]+2*i,2)}'
    def cv(kb,i): return f'v_cvt_pk_bf16_f32 {V(R.T+8*kb+i)}, {V(R.T+8*kb+i)}, {V(R.T+8*kb+4+i)}'
    def g2(acc,kb,M): return f'{MF} {V(R.ACC[acc],16)}, {V(R.SA+4*kb,4)}, {V(M,4)}, {V(R.ACC[acc],16)}'
    ylx=f'{MF} {V(R.YL,16)}, {V(R.XA,4)}, {V(R.XB[0],4)}, {V(R.YL,16)}'
    def hi(b): return f'{MF} {V(R.L[b],16)}, {V(R.XA,4)}, {V(R.XB[1],4)}, {V(R.L[b],16)}'
    def ta(u): return f'v_add_u32_dpp {V(R.SA+2*u)}, {V(R.FK)}, {V(R.vK)} quad_perm:[{u},{u},{u},{u}] row_mask:0xf bank_mask:0xf bound_ctrl:1'
    def tr(u,off): return f'ds_read_b64_tr_b16 {V(R.SA+2*u,2)}, {V(R.SA+2*u)} offset:{off+(128*(u>>1)+32*(u&1))}'
    def it(a,b,last):
        n=1-b; o=512*b
        ld=(lambda b,r: '') if last else P.ld
        fe0,fe1,xa,fq=('','','','') if last else (P.fe0,P.fe1,P.xa,P.fq(o+512))
        S=['s_waitcnt vmcnt(0)']
        S+=sh(b)+[ta(0),ta(1),hi(b), tr(0,o), tr(1,o), ld(n,0), ld(n,1), ta(2), ta(3), fe0, ylx, tr(2,o), tr(3,o), fe1, ld(n,2), ld(n,3)]
        S+=[ex(b,r) for r in range(0,4)]
        S+=[mad(r) for r in range(0,4)]+[rd(r) for r in range(0,4)]+[ld(n,4),ld(n,5)]
        S+=[ex(b,r) for r in range(4,8)]
        S+=[mad(r) for r in range(4,8)]+[rd(r) for r in range(4,8)]+[ld(n,6),ld(n,7)]
        S+=[ex(b,r) for r in range(8,16)]
        S+=[mad(r) for r in range(8,12)]+[rd(r) for r in range(8,12)]+[ld(n,8),ld(n,9)]
        S+=[pa(i) for i in range(8)]
        S+=[mad(r) for r in range(12,16)]+[rd(r) for r in range(12,16)]+[xa, fq, ld(n,10),ld(n,11)]
        S+=[rc(r) for r in range(0,4)]
        S+=[g2(0,0,R.YL), ld(n,12)]+[rc(r) for r in range(4,7)]
        S+=[g2(0,0,R.YL+4), ld(n,13)]+[rc(r) for r in range(7,10)]
        S+=[g2(0,1,R.YL+8), ld(n,14)]+[rc(r) for r in range(10,13)]
        S+=[g2(0,1,R.YL+12), ld(n,15)]+[rc(r) for r in range(13,16)]
        S+=[pm(b,i) for i in range(8)]
        S+=[cv(0,i) for i in range(4)]+[cv(1,i) for i in range(4)]
        if b==1 and not last:
            S+=[f'v_add_u32 {V(R.vQ)}, 1024, {V(R.vQ)}', f'v_add_u32 {V(R.vK)}, 1024, {V(R.vK)}']
        S+=[g2(1,0,R.T)]+([] if last else [P.vr(b,j,256+128*b) for j in range(4)])+[g2(1,1,R.T+8)]
        if b==1 and not last: S+=[f'v_add_u32 {V(R.vV)}, 256, {V(R.vV)}']
        for x in S: a(x)
    cap={}
    def head(a,k):
        a(f's_cmp_gt_u32 {sCNT}, 3\ns_cbranch_scc1 L_go{k}\ns_setprio 2\ns_cmp_eq_u32 {sCNT}, 3\ns_cbranch_scc1 L_go{k}\ns_setprio 1\ns_cmp_eq_u32 {sCNT}, 1\ns_cbranch_scc1 L_last{k}')
        a.raw(f'L_go{k}:')
    def body(a):
        for b in range(2):
            cap[b]=a.state()
            st=a.state(); head(a,b); a.hists+=[h+[I('s_nop 0'),I('s_nop 0')] for h in st[2]]
            it(a,b,False)
            a(f's_sub_u32 {sCNT}, {sCNT}, 1')
        a('s_branch L_mloop')
    a('s_setprio 3')
    a.loop('L_mloop', body)
    ends=[]
    for b in range(2):
        a.set_state(cap[b]); a(f'L_last{b}:\ns_setprio 0')
        it(a,b,True)
        if b==0: a('s_branch L_mdone')
        ends.append(a.state())
    a.hists+=ends[0][2]
    a('L_mdone:')

def kern():
    a=BAsm()
    LL=120; LLA=124
    D_=0x00800080; B2=192-XLO-1
    a('''s_cmp_ge_u32 s2, 256
    s_cbranch_scc1 L_end''')
    stamp(a,'start')
    a(f'''s_load_dwordx16 s[40:55], s[0:1], 0
    s_load_dwordx2 s[14:15], s[0:1], 80
    s_load_dwordx2 s[12:13], s[0:1], 64
    v_lshrrev_b32 v1, 6, v0
    v_readfirstlane_b32 s3, v1
    v_and_b32 v3, 63, v0
    v_lshlrev_b32 v2, 4, v3
    v_lshlrev_b32 v1, 4, v0
    v_lshlrev_b32 v14, 3, v0
    v_cmp_gt_u32 vcc, 625, v0
    s_mul_i32 s56, s2, 10000
    s_mul_i32 s57, s2, 5000
    s_mov_b64 s[64:65], vcc
    s_lshr_b32 s19, s2, 3
    s_mov_b32 s39, {EP}
    s_cmp_lg_u32 s3, 0
    s_cbranch_scc1 L_nz''')
    a.cond_begin()
    if OPT.get('cpf',1):
        a(f'''; pull four lines of this kernel's later code towards this die
        s_getpc_b64 s[60:61]
        L_pc:
        s_lshl_b32 s58, s19, 9
        v_lshl_add_u32 v16, v3, 7, s58
        v_min_u32 v16, L_end-L_pc-896, v16
        s_mov_b64 exec, 15
        global_load_dword v17, v16, s[60:61] offset:896
        s_mov_b64 exec, -1''')
        a.vm=[]
    a(f'''v_mov_b64 v[8:9], 0
    v_mov_b64 v[10:11], 0
    ds_write_b128 v2, v[8:11] offset:{H1}
    s_mov_b32 exec_hi, {hex((1<<((CR+128-HIST)//16-32))-1)}
    ds_write_b128 v2, v[8:11] offset:{HIST}
    s_mov_b32 exec_hi, -1''')
    a.cond_end('L_nz')
    a(f'''s_cmp_ge_u32 s3, 10
    s_waitcnt lgkmcnt(0)''')
    if OPT.get('wso'): a(f's_add_u32 s14, s14, {OPT["wso"]<<20}\ns_addc_u32 s15, s15, 0\ns_cmp_ge_u32 s3, 10')
    a(f'''s_load_dword s39, s[14:15], s39
    s_cbranch_scc1 L_n1''')
    a.cond_begin()
    a(f'''s_add_u32 s48, s48, s56
    s_addc_u32 s49, s49, 0
    s_mov_b64 exec, vcc
    global_load_dwordx4 v[4:7], v1, s[48:49]
    s_add_u32 s46, s46, s56
    s_addc_u32 s47, s47, 0
    s_add_u32 s44, s44, s57
    s_addc_u32 s45, s45, 0''')
    a.cond_end('L_n1')
    a('''s_barrier ; @B0
    s_cmp_ge_u32 s3, 10
    s_cbranch_scc1 L_n2''')
    a.cond_begin()
    a('''global_load_dwordx4 v[8:11], v1, s[46:47]
    global_load_dwordx2 v[12:13], v14, s[44:45]
    s_mov_b64 exec, -1''')
    a.cond_end('L_n2')
    for e in a.vm: e[2]=True
    a('s_branch L_common'); i0=len(a.out)
    a('L_common:')
    if OPT['stamp']:
        for k in range(len(names),30): a(f's_mov_b32 s{72+k}, 0')
    stamp(a,'common')
    a(f'''
    s_and_b32 s16, s2, 7
    s_lshl_b32 s16, s16, 5
    s_add_u32 s16, s16, s19
    s_mul_i32 s17, s16, 625
    s_add_u32 s18, s17, 640
    s_add_u32 s17, s17, 15
    s_lshr_b32 s17, s17, 4
    s_lshr_b32 s18, s18, 4
    s_sub_u32 s18, s18, s17
    s_mov_b32 s24, s14
    s_and_b32 s25, s15, 0xffff
    s_mov_b32 s26, {WSEND}
    s_mov_b32 s27, 0x20000
    s_mov_b32 s20, s14
    s_or_b32 s21, s25, 0x80000000
    s_mov_b32 s22, 1280000
    s_mov_b32 s23, 0x00c00000
    s_lshl_b32 s56, s17, 7
    s_add_u32 s4, s40, s56
    s_addc_u32 s5, s41, 0
    s_and_b32 s5, s5, 0xffff
    s_sub_u32 s6, 1280000, s56
    s_mov_b32 s7, 0x20000
    s_mov_b32 s8, s42
    s_and_b32 s9, s43, 0xffff
    s_mov_b32 s10, 60000
    s_mov_b32 s11, 0x20000
    s_mov_b32 {sLUT}, {LUT}
    s_mov_b32 {sOFF}, 0
    s_mov_b32 s62, {hex(fbits(LOG2E))}
    v_lshlrev_b32 v76, 18, v0
    v_add_u32 v76, {hex(((KS+XLO)<<23)|0x8000)}, v76
    v_lshlrev_b32 v77, 3, v0
    v_add_u32 v77, {LUT+XLO*256}, v77
    v_add_u32 v78, 0x10000, v77''')
    for i in range(1,4): a(f'v_add_u32 v{80+i}, {hex(i<<16)}, v76')
    for i in range(4): a(f'v_mul_f32 v{80+i}, s62, v{80+i if i else 76}')
    for i in range(4): a(f'v_exp_f32 v{84+i}, -v{80+i}')
    for i in range(2): a(f'v_pk_add_f32 {V(88+2*i,2)}, {V(84+2*i,2)}, 1.0 op_sel_hi:[1,0]')
    for i in range(4): a(f'v_rcp_f32 v{88+i}, v{88+i}')
    for i in range(2): a(f'v_pk_mul_f32 {V(80+2*i,2)}, {V(80+2*i,2)}, {V(88+2*i,2)}')
    for i in range(2): a(f'v_pk_mul_f32 {V(84+2*i,2)}, {V(80+2*i,2)}, {V(84+2*i,2)} neg_lo:[1,0] neg_hi:[1,0]')
    a(f'''v_cvt_pk_bf16_f32 v80, v80, v81
    v_cvt_pk_bf16_f32 v81, v82, v83
    v_cvt_pk_bf16_f32 v84, v84, v85
    v_cvt_pk_bf16_f32 v85, v86, v87
    ds_write_b64 v77, v[80:81]
    ds_write_b64 v78, v[84:85]''')
    def tags():
        a('''s_waitcnt lgkmcnt(0)
        s_mul_i32 s39, s39, 0x9e3779b1
        s_add_u32 s39, s39, 0x7f4a7c15
        s_and_b32 s70, s39, 0xfc0f
        s_bfe_u32 s71, s39, 0x20004
        s_and_b32 s56, s39, 0xffff0000
        s_or_b32 s71, s71, s56''')
    a(f'''s_mov_b32 s58, 214749
    s_mov_b32 s59, 0x3f0
    v_mov_b32 v22, 8
    s_mov_b32 s63, 0xffff0000
    s_mul_i32 s66, s2, {CHS}
    s_add_u32 s66, s66, {RECS}
    s_add_u32 s67, s66, 10240''')
    tags()
    a('v_mov_b32 v23, s70')
    stamp(a,'lutdone')
    a('s_cmp_lt_u32 s3, 10\ns_cbranch_scc1 L_edge')
    st1=a.state()
    common=a.out[i0:]; del a.out[i0:]
    def arrive(c): a(f's_mov_b64 exec, 1\nds_add_u32 v22, v22 offset:{c-8}\ns_mov_b64 exec, -1')
    def spin(c,tag):
        a(f'''L_sp{tag}:
        ds_read_b32 v32, v22 offset:{c-8}
        v_cmp_ne_u32 vcc, 80, v32
        s_cbranch_vccnz L_sp{tag}''')
    a('L_edge:\ns_setprio 2')
    for i in range(4): a(f'v_mul_u32_u24 v{14+i}, s58, v{4+i}')
    stamp(a,'data')
    for i in range(4): a(f'v_lshrrev_b32 v{14+i}, 21, v{14+i}')
    for i in range(4): a(f'v_and_b32 v{14+i}, 0x3fc, v{14+i}')
    a('s_mov_b64 exec, s[64:65]')
    for i in range(4): a(f'ds_add_rtn_u32 v{18+i}, v{14+i}, v22 offset:{H1}')
    arrive(C1)
    for i in range(4): a(f'v_lshlrev_b32 v{4+i}, 4, v{4+i}')
    for i in range(4): a(f'v_and_or_b32 v{24+2*i}, v{4+i}, s59, v23')
    a('s_cmp_lg_u32 s3, 9\ns_cbranch_scc1 L_nd'); a.cond_begin()
    a(f'''v_mov_b32 v32, s70
    v_mov_b32 v33, s71
    v_lshlrev_b32 v34, 3, v3
    s_mov_b64 exec, 0xfff
    ds_write_b64 v34, v[32:33] offset:{SORT+20000}
    s_mov_b64 exec, -1''')
    a.cond_end('L_nd')
    spin(C1,'1')
    stamp(a,'E1')
    a(f'''ds_read_b128 v[4:7], v2 offset:{H1}
    v_add3_u32 v32, v4, v5, v6
    v_add_u32 v33, v32, v7''')
    scan64(a,'v33')
    a(f'''v_sub_u32 v39, v33, v7
    v_sub_u32 v38, v39, v6
    v_sub_u32 v36, v39, v32
    v_sub_u32 v37, v38, v5
    ds_write_b128 v2, v[36:39] offset:{OFF1}
    s_mov_b64 exec, s[64:65]''')
    for i in range(4): a(f'ds_read_b32 v{14+i}, v{14+i} offset:{OFF1}')
    for i in range(4): a(f'v_lshl_or_b32 v{25+2*i}, v{8+i}, 2, s71')
    for i in range(4):
        e=12+(i>>1)
        a(f'v_and_or_b32 v{24+2*i}, v{e}, s63, v{24+2*i}' if i&1 else f'v_lshl_or_b32 v{24+2*i}, v{e}, 16, v{24+2*i}')
    a('s_waitcnt lgkmcnt(0)')
    for i in range(4): a(f'v_add_u32 v{14+i}, v{14+i}, v{18+i}')
    for i in range(4): a(f'ds_write_b64 v{14+i}, v[{24+2*i}:{25+2*i}] offset:{SORT}')
    arrive(C2)
    a('s_cmp_ge_u32 s3, 2\ns_cbranch_scc1 L_nogr'); a.cond_begin()
    a(f'''v_lshlrev_b32 v40, 3, v0
    ds_read_b64 v[4:5], v40 offset:{H1}
    ds_read_b64 v[6:7], v40 offset:{OFF1}
    s_lshl_b32 s56, s2, 11
    s_add_u32 s56, s56, {GR}
    v_mov_b32 v37, s39
    v_mov_b32 v39, s39
    v_lshl_or_b32 v36, v4, 16, v6
    v_lshl_or_b32 v38, v5, 16, v7
    buffer_store_dwordx4 v[36:39], v1, s[24:27], s56 offen{SC}''')
    a.cond_end('L_nogr')
    stamp(a,'aE2')
    spin(C2,'2')
    stamp(a,'E2')
    a(f'''ds_read_b128 v[12:15], v1 offset:{SORT}
    ds_read_b128 v[16:19], v1 offset:{SORT+10240}
    v_cmp_gt_u32 vcc, 616, v0
    buffer_store_dwordx4 v[12:15], v1, s[24:27], s66 offen{SC}
    s_mov_b64 exec, vcc
    buffer_store_dwordx4 v[16:19], v1, s[24:27], s67 offen{SC}
    s_mov_b64 exec, -1
    s_branch L_c1''')
    stE=a.state()
    a.out+=common
    a.set_state(st1); a.vm=[]
    a(f'''L_h3:
    s_cmp_ge_u32 s3, 12
    s_cbranch_scc1 L_h4
    s_setprio 1
    s_sub_u32 s59, 11, s3
    s_lshl_b32 s57, s59, 13
    s_add_u32 s60, s50, s57
    s_addc_u32 s61, s51, 0
    s_add_u32 s58, s57, {WL}
    s_mov_b32 m0, s58
    v_lshrrev_b32 v4, 3, v3
    v_and_b32 v5, 7, v3
    v_xor_b32 v5, v5, v4
    v_lshlrev_b32 v5, 4, v5
    v_lshl_add_u32 v5, v4, 7, v5''')
    for i in range(4): a(f'global_load_lds_dwordx4 v2, s[60:61] offset:{1024*i}')
    a(f's_add_u32 s60, s60, 4096\ns_addc_u32 s61, s61, 0\ns_add_u32 s58, s58, 4096\ns_mov_b32 m0, s58')
    for i in range(4): a(f'global_load_lds_dwordx4 v2, s[60:61] offset:{1024*i}')
    a(f's_mul_i32 s66, s59, 5120\ns_add_u32 s58, s66, {HL}\ns_mov_b32 m0, s58')
    for i in range(4): a(f'buffer_load_dwordx4 v5, s[4:7], 0 offen offset:{1024*i} lds')
    a(f'''s_add_u32 s58, s58, 4096
    s_mov_b32 m0, s58
    s_movk_i32 s56, 0x1000
    buffer_load_dwordx4 v5, s[4:7], s56 offen lds
    s_cmp_ge_u32 s2, 16
    s_cselect_b32 s67, 0, s59
    s_cmp_eq_u32 s67, 0
    s_cbranch_scc1 L_nwh''')
    a.cond_begin()
    a(f'''; one w_h fragment (channel tile s2>>2, k block s2&3)
    s_and_b32 s56, s2, 3
    s_lshl_b32 s56, s56, 12
    s_lshr_b32 s58, s2, 2
    s_lshl_b32 s58, s58, 5
    s_add_u32 s56, s56, s58
    s_add_u32 s60, s54, s56
    s_addc_u32 s61, s55, 0
    v_lshrrev_b32 v6, 1, v3
    v_lshlrev_b32 v6, 7, v6
    v_and_or_b32 v6, v2, 16, v6
    s_mov_b32 m0, {WHL}
    global_load_lds_dwordx4 v6, s[60:61]''')
    a.cond_end('L_nwh')
    a(f'''v_lshrrev_b32 v4, 5, v3
    v_bfe_u32 v5, v3, 2, 2
    v_lshl_add_u32 v5, v4, 3, v5
    v_lshlrev_b32 v5, 7, v5
    v_and_b32 v6, 3, v3
    v_lshl_add_u32 v5, v6, 3, v5
    v_and_b32 v6, 16, v3
    v_lshl_add_u32 v5, v6, 1, v5
    v_add_u32 v5, s57, v5
    v_and_b32 v6, 31, v3
    v_and_b32 v7, 7, v3
    v_xor_b32 v7, v7, v4
    v_lshlrev_b32 v7, 4, v7
    v_lshl_add_u32 v7, v6, 7, v7
    v_add_u32 v8, s66, v7
    v_xor_b32 v9, 32, v8
    v_xor_b32 v10, 64, v8
    v_xor_b32 v11, 96, v8
    s_lshl_b32 s63, s17, 7
    s_add_u32 s28, s14, s63
    s_addc_u32 s29, s15, 0
    s_and_b32 s29, s29, 0xffff
    s_lshl_b32 s30, s18, 7
    s_mov_b32 s31, 0x20000
    s_mov_b32 s63, {hex((127-KS)<<23)}
    s_mov_b32 s64, 0x7fff0000
    s_mov_b32 s65, 0x80000000''')
    a('s_movk_i32 s56, 0x1000\ns_waitcnt vmcnt(0)')
    stamp(a,'data')
    H=12; W=28; D=[60,92]
    for kb in range(4):
        a(f'ds_read_b128 {V(H+4*kb,4)}, v{8+kb} offset:{HL}')
        for t in range(2):
            for u in range(2):
                a(f'ds_read_b64_tr_b16 {V(W+8*kb+4*t+2*u,2)}, v5 offset:{WL+kb*2048+u*512+t*64}')
    for mt in range(2):
        for kb in range(4):
            for t in range(2):
                a(f'{MF} {V(D[mt]+16*t,16)}, {V(H+4*kb,4)}, {V(W+8*kb+4*t,4)}, {V(D[mt]+16*t,16) if kb else 0}')
            if mt==0: a(f'ds_read_b128 {V(H+4*kb,4)}, v{8+kb} offset:{HL+4096}')
    groups=[(D[0]+4*j, 8*j*128, '0') for j in range(4)]+[(D[1],0,'s56')]
    a('''s_cmp_eq_u32 s59, 0
    s_cbranch_scc1 L_apack''')
    st2=a.state()
    a('v_lshlrev_b32 v7, 2, v6\nv_lshl_add_u32 v7, v4, 9, v7')
    for d,off,so in groups:
        rs=range(4)
        for r in rs: a(f'v_mul_f32 v{d+r}, s63, v{d+r}')
        for r in rs: a(f'v_mul_f32 v{8+r}, s62, abs(v{d+16+r})')
        if OPT.get('sh64'):
            for r in rs: a(f'v_subrev_u32 v{d+r}, 0x4000, v{d+r}')
        for r in rs: a(f'v_cvt_pk_bf16_f32 v{d+r}, v{d+r}, 0')
        for r in rs: a(f'v_add_u32 v{8+r}, 0x8000, v{8+r}')
        for r in rs: a(f'v_sub_u32 v{8+r}, v{8+r}, v{d+r} clamp')
        for r in rs: a(f'v_and_or_b32 v{d+r}, v{d+16+r}, s65, v{d+r}')
        for r in rs: a(f'v_and_or_b32 v{d+r}, v{8+r}, s64, v{d+r}')
        for r in rs: a(f'buffer_store_dword v{d+r}, v7, s[28:31], {so} offen offset:{off+r*128}{SC}')
    a('s_cmp_eq_u32 s67, 0\ns_cbranch_scc1 L_g0')
    a(f'''v_lshrrev_b32 v4, 4, v3
    v_bfe_u32 v5, v3, 2, 2
    v_lshl_add_u32 v5, v4, 3, v5
    v_and_b32 v6, 3, v3
    v_lshlrev_b32 v6, 3, v6
    v_lshl_add_u32 v5, v5, 5, v6
    ds_read_b64_tr_b16 v[12:13], v5 offset:{WHL}
    ds_read_b64_tr_b16 v[14:15], v5 offset:{WHL+128}
    s_lshl_b32 s56, s2, 10
    s_add_u32 s56, s56, {WF}
    buffer_store_dwordx4 v[12:15], v2, s[24:27], s56 offen{SC}
    s_branch L_g0''')
    a.set_state(st2)
    a('L_apack:\nv_lshlrev_b32 v7, 1, v6\nv_lshl_add_u32 v7, v4, 9, v7')
    for d,off,so in groups:
        rs=range(4); off+=AL+(4096 if so!='0' else 0)
        for r in rs: a(f'v_mul_f32 v{d+r}, s63, v{d+r}')
        for r in rs: a(f'v_mul_f32 v{d+16+r}, s62, v{d+16+r}')
        for r in rs: a(f'v_cvt_pk_bf16_f32 v{d+r}, v{d+r}, v{d+16+r}')
        for r in rs:
            a(f'ds_write_b16 v7, v{d+r} offset:{off+r*128}')
            a(f'ds_write_b16_d16_hi v7, v{d+r} offset:{off+r*128+64}')
    a('L_g0:\ns_branch L_c1')
    a.set_state(st1); a.vm=[]
    a(f'''L_h4:
    v_mul_u32_u24 v1, 12, v3
    s_sub_u32 s67, s3, 12
    s_mul_i32 s57, s67, {20*768}
    s_mul_i32 s67, s67, {20*1024}
    s_add_u32 s67, s67, {POS}
    v_lshlrev_b32 v11, 1, v3
    v_add_u32 v10, s17, v3
    v_mul_u32_u24 v7, 6, v10
    s_cmp_eq_u32 s3, 13
    s_cbranch_scc1 L_j13
    s_cmp_eq_u32 s3, 14
    s_cbranch_scc1 L_j14
    s_branch L_jd
    L_j13:
    s_add_u32 s60, s50, {128*128}
    s_addc_u32 s61, s51, 0
    global_load_ushort v4, v11, s[60:61]
    global_load_ushort v5, v11, s[60:61] offset:128
    global_load_ushort v6, v11, s[52:53]
    s_branch L_jd
    L_j14:
    buffer_load_ushort v8, v7, s[8:11], 0 offen
    buffer_load_ushort v4, v7, s[8:11], 0 offen offset:2
    buffer_load_ushort v9, v7, s[8:11], 0 offen offset:4
    L_jd:''')
    a.vm=[]
    for k in range(20):
        if k%5==0 and k: a(f's_add_u32 s57, s57, {5*768}')
        a(f'buffer_load_dwordx3 {V(12+4*k,3)}, v1, s[8:11], s57 offen offset:{(k%5)*768}')
    a(f'''v_add_u32 v1, s67, v2
    s_waitcnt vmcnt(20)
    s_cmp_eq_u32 s3, 13
    s_cbranch_scc1 L_k13
    s_cmp_eq_u32 s3, 14
    s_cbranch_scc0 L_kd
    v_and_b32 v10, 63, v10
    v_lshlrev_b32 v10, 3, v10
    v_lshl_or_b32 v8, v4, 16, v8
    ds_write_b64 v10, v[8:9] offset:{PD}
    v_and_b32 v6, 1, v3
    v_lshlrev_b32 v6, 4, v6
    v_mov_b32 v7, 0x3f80
    v_lshlrev_b32 v6, v6, v7
    v_bfe_u32 v7, v3, 1, 2''')
    for i in range(4): a(f'v_cmp_eq_u32 vcc, {i}, v7\nv_cndmask_b32 v{92+i}, 0, v6, vcc')
    a(f'''ds_write_b128 v2, v[92:95] offset:{OH}
    v_mov_b64 v[92:93], 0
    v_mov_b64 v[94:95], 0
    ds_write_b128 v2, v[92:95] offset:{AL+5120}
    s_branch L_kd
    L_k13:
    v_cmp_gt_u32 vcc, 32, v3
    v_mov_b32 v92, s62
    v_mov_b32 v93, {hex((127-KS)<<23)}
    v_cndmask_b32 v92, v92, v93, vcc
    v_lshlrev_b32 v4, 16, v4
    v_lshlrev_b32 v5, 16, v5
    v_lshlrev_b32 v6, 16, v6
    v_mul_f32 v93, v4, v92
    v_mul_f32 v94, v5, v92
    v_cvt_pk_bf16_f32 v94, v94, v93
    v_and_b32 v95, 0xffff0000, v94
    v_fma_f32 v93, v4, v92, -v95
    v_cvt_pk_bf16_f32 v93, v93, 0
    v_lshlrev_b32 v96, 2, v3
    v_mul_f32 v95, {hex(fbits(LN2))}, v6
    ds_write_b16 v11, v94 offset:{CR+128}
    ds_write_b16_d16_hi v11, v94 offset:{CR+256}
    ds_write_b16 v11, v93 offset:{CR+384}
    ds_write_b32 v96, v95 offset:{WX}
    L_kd:''')
    for k in range(20):
        b=12+4*k
        if k%4==0: a(f's_waitcnt vmcnt({16-k})')
        a(f'v_lshrrev_b32 v{b+3}, 16, v{b+2}\nv_alignbit_b32 v{b+2}, v{b+2}, v{b+1}, 16\nv_and_b32 v{b+1}, 0xffff, v{b+1}')
    a.set_state(stE); a.vm=[]; a.lg=[]
    cS=10; cR=11; cM=125; c0=126; c1=127; vG=113; vRA=114; vQ16=115; vW=116; vKey=117; vF2=118; vFour=119
    a(f'''L_c1:
    s_setprio 0
    v_bfe_u32 v96, v0, 2, 5
    s_lshr_b32 s56, s3, 1
    v_lshl_add_u32 v97, v96, 3, s56
    v_lshlrev_b32 v{vG}, 11, v97
    s_lshl_b32 s66, s16, 3
    s_add_u32 s66, s66, {GR}
    v_and_b32 v98, 0xf0, v2
    v_add_u32 v98, {sLUT}, v98
    s_waitcnt lgkmcnt(0)
    s_barrier ; @B2c
    ds_read_b128 {V(LL,4)}, v98 offset:{XLO*256}
    buffer_load_dwordx2 v[108:109], v{vG}, s[24:27], s66 offen{SC}
    s_cmp_lt_u32 s3, 12
    s_cbranch_scc1 L_npw''')
    a.cond_begin()
    a('s_setprio 1\ns_waitcnt lgkmcnt(0)\ns_cmp_eq_u32 s3, 15')
    for k in range(20):
        if k==18: a('s_cselect_b64 exec, 0xff, -1')
        if k==19: a('s_cselect_b64 exec, 0, -1')
        a(f'ds_write_b128 v1, {V(12+4*k,4)} offset:{1024*k}')
    a('s_mov_b64 exec, -1\ns_branch L_pw')
    a.cond_end('L_npw')
    a('s_waitcnt lgkmcnt(0)\nL_pw:')
    a(f'''v_mov_b32 v80, v96
    v_and_b32 v78, 3, v3
    v_lshlrev_b32 v{vQ16}, 4, v78
    s_mov_b32 s57, {CHS}
    v_mad_u32_u24 v{vRA}, v97, s57, v{vQ16}
    v_lshrrev_b32 v{vF2}, 1, v{vG}
    s_lshl_b32 s56, s56, 5
    v_add_u32 v80, s56, v80
    v_mul_u32_u24 v80, 625, v80
    v_add_u32 v80, 15, v80
    v_lshrrev_b32 v80, 4, v80
    v_lshl_add_u32 v81, v78, 5, s19
    v_add_lshl_u32 v{vW}, v80, v81, 7
    v_cmp_gt_u32 s[32:33], 39, v81
    v_add_u32 v80, s17, v3
    v_and_b32 v80, 63, v80
    v_lshlrev_b32 v{vKey}, 2, v80
    v_lshrrev_b32 v83, 4, v0
    v_lshl_add_u32 v79, v0, 4, {sLUT}
    v_subrev_u32 v80, {XLO}, v83
    s_mov_b32 s61, {hex(D_)}
    v_mul_lo_u32 v80, v80, s61
    v_add_u32 v81, {hex(97*D_)}, v80''')
    for i in range(4): a(f'v_add_u32 v{84+i}, v81, v{LL+i}')
    a(f'''ds_write_b128 v79, v[84:87] offset:{96*256}
    v_sub_u32 v82, {B2-128-1}, v83
    v_ashrrev_i32 v82, 31, v82
    v_and_b32 v81, {hex(((255-B2+128-161)*D_)&0xffffffff)}, v82
    s_mov_b32 s61, {hex(161*D_)}
    v_add3_u32 v81, v81, v80, s61
    v_and_b32 v82, {(255-B2+128-160)*256}, v82
    v_add_u32 v82, v82, v79''')
    for i in range(4): a(f'v_add_u32 v{88+i}, v81, v{LL+i}')
    a(f'''ds_write_b128 v82, v[88:91] offset:{160*256}
    v_sub_u32 v82, {XLO-1}, v83
    v_ashrrev_i32 v82, 31, v82
    v_and_b32 v81, {hex(33*D_)}, v82
    v_add_u32 v81, v81, v80
    v_and_b32 v82, {32*256}, v82
    v_add_u32 v{LLA}, v82, v79''')
    for i in range(4): a(f'v_add_u32 v{LL+i}, v81, v{LL+i}')
    a(f'''s_mov_b32 s57, {RECS}
    s_mov_b32 s58, 0x80078007
    s_mov_b32 s59, {1<<19}
    s_branch L_chk
    L_poll:
    s_sleep {OPT.get('slp',6)}
    s_mov_b64 exec, vcc
    buffer_load_dwordx2 v[108:109], v{vG}, s[24:27], s66 offen{SC}
    L_chk:
    s_waitcnt vmcnt(0)
    v_xor_b32 v109, s39, v109
    v_and_or_b32 v109, v108, s58, v109
    v_cmp_ne_u32 vcc, 0, v109
    s_mov_b64 exec, -1
    s_cbranch_vccz L_got
    s_sub_u32 s59, s59, 1
    s_cmp_lg_u32 s59, 0
    s_cbranch_scc1 L_poll
    v_mov_b32 v108, 0
    L_got:''')
    stamp(a,'polled')
    RR=[76+6*i for i in range(4)]; RK=100; TM=108
    PSr=lambda s: (60 if s<4 else 44)+4*(s&3)
    PDr=lambda s: PSr(s)+2
    A=lambda s: RR[s>>1]+2+2*(s&1)
    M=lambda s: f's[{40+2*s}:{41+2*s}]'
    def recloads(tag):
        a(f's_cmp_eq_u64 {M(4)}, 0\ns_cbranch_scc1 L_nr23{tag}'); a.cond_begin()
        for i in (2,3): a(f's_mov_b64 exec, {M(2*i)}\nbuffer_load_dwordx4 {V(RR[i]+2,4)}, v{vRA}, s[24:27], s57 offen offset:{64*i}{SC}')
        a.cond_end(f'L_nr23{tag}')
        for i in (0,1): a(f's_mov_b64 exec, {M(2*i)}\nbuffer_load_dwordx4 {V(RR[i]+2,4)}, v{vRA}, s[24:27], s57 offen offset:{64*i}{SC}')
        a('s_mov_b64 exec, -1')
    a(f'''v_add_u32_sdwa v{vRA}, v108, v{vRA} dst_sel:DWORD dst_unused:UNUSED_PAD src0_sel:WORD_0 src1_sel:DWORD
    v_lshrrev_b32 v76, 19, v108
    v_lshrrev_b32 v77, 3, v{vQ16}
    v_sub_u32 v77, v76, v77''')
    for s in (0,2,4,6): a(f'v_cmp_lt_i32 {M(s)}, {8*(s>>1)}, v77')
    recloads('')
    a('s_cmp_lg_u32 s3, 10\ns_cbranch_scc1 L_nsf'); a.cond_begin()
    a(f'''; this wave's table rows have landed: tell the consumers
    s_lshl_b32 s56, s2, 10
    s_add_u32 s56, s56, {F2}
    s_not_b32 s66, s39
    v_mov_b32 v108, s39
    v_mov_b32 v109, s66
    v_mov_b32 v110, s39
    v_mov_b32 v111, s66
    buffer_store_dwordx4 v[108:111], v2, s[24:27], s56 offen{SC}''')
    a.cond_end('L_nsf')
    for s in (1,3,5,7): a(f'v_cmp_lt_i32 {M(s)}, {8*(s>>1)+1}, v77')
    a(f'''v_mov_b32 v{vFour}, 4
    v_cmp_lt_u32 vcc, 32, v76
    s_mov_b64 exec, vcc
    ds_write_b32 v{vFour}, v{vFour} offset:{FLAG-4}
    s_mov_b64 exec, -1
    v_lshrrev_b32 v44, 5, v3
    v_and_b32 v45, 3, v3
    v_bfe_u32 v{cR}, v3, 2, 2
    v_bfe_u32 v46, v3, 4, 1
    v_lshl_add_u32 v{cS}, v46, 2, v45
    v_lshlrev_b32 v47, 3, v{cS}
    v_lshlrev_b32 v48, 7, v44
    v_sub_u32 v{cM}, 128, v48
    s_mov_b32 s56, {(CR-AL)&0xffffff}
    v_mad_i32_i24 v47, v44, s56, v47
    v_add_u32 v{c0}, {AL}, v47
    v_mad_u32_u24 v{c1}, v{cR}, v48, v{c0}
    s_mov_b32 s56, {VB}
    v_lshl_add_u32 {V(R.vV)}, v44, 6, s56
    s_mov_b32 s56, {REC}
    v_and_b32 v47, 1, v{cR}
    v_bfe_u32 v48, v3, 3, 2
    v_lshl_add_u32 v49, v48, 2, v45
    v_lshl_add_u32 v49, v47, 4, v49
    v_lshl_add_u32 {V(R.vR)}, v49, 4, s56
    v_lshrrev_b32 v48, 1, v{cR}
    v_lshl_add_u32 v48, v47, 2, v48
    v_lshl_add_u32 v48, v44, 4, v48
    v_lshl_add_u32 {V(R.vK)}, v48, 4, s56
    v_and_b32 v49, 2, v3
    v_add_u32 v49, v49, v45
    v_lshl_add_u32 {V(R.vQ)}, v49, 5, {V(R.vK)}''')
    for r in range(16): a(f'v_mov_b64 {V(R.ACC[0]+2*r,2)}, 0')
    a(f'''s_mov_b32 s60, 0x0000bf80
    s_mov_b32 s61, 0xbf800000
    s_mov_b32 s63, {POS}
    s_mov_b32 s34, 0xfc0f
    s_mov_b32 s35, 0xffff0003
    s_and_b32 s67, s16, 0xe0
    s_lshl_b32 s67, s67, 2
    s_add_u32 s67, s67, {F2}
    s_waitcnt lgkmcnt(0)
    s_setprio 0
    s_barrier ; @B0p
    s_waitcnt vmcnt(1)
    s_cmp_eq_u32 s3, 10
    s_cbranch_scc1 L_ut
    L_utw:
    s_waitcnt vmcnt(0)
    L_ut:
    v_mov_b32 v108, 0''')
    def untag(i):
        r=RR[i]+2
        a(f'''s_mov_b64 exec, {M(2*i)}
        v_xor_b32 v{r}, s70, v{r}
        v_xor_b32 v{r+1}, s71, v{r+1}
        v_xor_b32 v{r+2}, s70, v{r+2}
        v_xor_b32 v{r+3}, s71, v{r+3}
        v_bitop3_b32 v109, v{r}, v{r+2}, s34 bitop3:0xa8
        v_bitop3_b32 v110, v{r+1}, v{r+3}, s35 bitop3:0xa8
        v_or3_b32 v108, v108, v109, v110''')
    untag(0); untag(1)
    a(f's_cmp_eq_u64 {M(4)}, 0\ns_cbranch_scc1 L_nu23'); a.cond_begin()
    untag(2); untag(3)
    a.cond_end('L_nu23')
    a(f'''s_mov_b64 exec, -1
    v_cmp_ne_u32 vcc, 0, v108
    s_cbranch_vccnz L_retry
    L_ok:''')
    stamp(a,'recs')
    def pre(sl):
        for s in sl:
            a(f'''v_bfe_u32 v{RK+s}, v{A(s)}, 2, 8
            v_lshl_add_u32 v{PSr(s)}, v{A(s)+1}, 1, s63
            v_bfe_u32 v{PDr(s)}, v{A(s)}, 1, 9''')
        for s in sl:
            a(f'''s_mov_b64 exec, {M(s)}
            ds_read_b64 {V(PSr(s),2)}, v{PSr(s)}
            ds_read_b64 {V(PDr(s),2)}, v{PDr(s)} offset:{PD}
            ds_add_rtn_u32 v{RK+s}, v{RK+s}, v{vFour} offset:{HIST}''')
        a('s_mov_b64 exec, -1')
    Q=lambda s: PDr(s) if s&1 else A(s)-2
    def geo(sl):
        t=lambda k,n: TM+2+2*k+n
        for k,s in enumerate(sl): a(f'v_lshlrev_b32 v{t(k,0)}, 16, v{PDr(s)}\nv_and_b32 v{t(k,1)}, 0xffff0000, v{PDr(s)}\nv_lshlrev_b32 v{PDr(s)+1}, 16, v{PDr(s)+1}')
        for k,s in enumerate(sl): a(f'v_dot2_f32_bf16 v{t(k,0)}, v{PSr(s)}, s60, v{t(k,0)}')
        for k,s in enumerate(sl): a(f'v_dot2_f32_bf16 v{t(k,1)}, v{PSr(s)}, s61, v{t(k,1)}')
        for k,s in enumerate(sl): a(f'v_dot2_f32_bf16 v{PDr(s)+1}, v{PSr(s)+1}, s60, v{PDr(s)+1}')
        for k,s in enumerate(sl): a(f'v_cvt_pk_bf16_f32 v{Q(s)}, 1.0, v{t(k,0)}')
        for k,s in enumerate(sl): a(f'v_mul_f32 v{PSr(s)}, v{t(k,0)}, v{t(k,0)}')
        for k,s in enumerate(sl): a(f'v_cvt_pk_bf16_f32 v{Q(s)+1}, v{t(k,1)}, v{PDr(s)+1}')
        for k,s in enumerate(sl): a(f'v_dot2_f32_bf16 v{PSr(s)}, v{Q(s)+1}, v{Q(s)+1}, v{PSr(s)}')
        for k,s in enumerate(sl): a(f'v_bfe_u32 v{PSr(s)+1}, v{A(s)}, 2, 8')
    def rb(sl):
        for s in sl: a(f's_mov_b64 exec, {M(s)}\nds_read_b32 v{PSr(s)+1}, v{PSr(s)+1} offset:{BASE}')
        a('s_mov_b64 exec, -1')
    def wv(sl):
        for s in sl: a(f'v_add_u32 v{RK+s}, v{RK+s}, v{PSr(s)+1}')
        for s in sl: a(f's_mov_b64 exec, {M(s)}\nds_write_b32 v{RK+s}, v{A(s)+1} offset:{VB}')
        a('s_mov_b64 exec, -1')
    def wr(s):
        a(f'v_lshlrev_b32 v{RK+s}, 2, v{RK+s}\nv_cvt_pk_bf16_f32 v{A(s)+1}, v{PSr(s)}, v{PSr(s)}')
        if s&1: a(f'v_mov_b64 {V(A(s)-2,2)}, {V(PDr(s),2)}')
        a(f's_mov_b64 exec, {M(s)}\nds_write_b128 v{RK+s}, {V(A(s)-2,4)} offset:{REC}\ns_mov_b64 exec, -1')
    pre([0,1]); pre([2,3])
    a(f'buffer_load_dwordx2 v[4:5], v{vF2}, s[24:27], s67 offen{SC}')
    a(f's_cmp_eq_u64 {M(4)}, 0\ns_cbranch_scc1 L_np2'); a.cond_begin()
    pre([4,5]); geo([4,5])
    a(f's_cmp_eq_u64 {M(6)}, 0\ns_cbranch_scc0 L_p67')
    stp67=a.state()
    a.cond_end('L_np2')
    geo([0,1]); geo([2,3])
    a('s_waitcnt lgkmcnt(0)\ns_barrier ; @B1p')
    vC=108; vI=109
    a(f'''ds_read_b32 v{vC}, v{vKey} offset:{HIST}
    s_mov_b64 exec, {'s[32:33]' if OPT.get('wup',1) else 1}
    buffer_load_dword v1, v{vW}, s[24:27], 0 offen{SC}
    s_mov_b64 exec, -1
    ds_write_b128 v{LLA}, {V(LL,4)}
    v_mov_b32 v{vI}, v{vC}''')
    scan64(a,V(vI))
    a(f'''v_sub_u32 v{vC}, v{vI}, v{vC}
    v_readlane_b32 s56, v{vI}, 63
    ds_write_b32 v{vKey}, v{vC} offset:{BASE}''')
    rb(range(4))
    a(f'''s_add_u32 s57, s56, 124
    s_lshr_b32 s57, s57, 7
    s_lshr_b32 s58, s57, 4
    s_and_b32 s57, s57, 15
    s_mul_i32 s64, s58, s3
    s_min_u32 s63, s3, s57
    s_add_u32 s64, s64, s63
    s_cmp_lt_u32 s3, s57
    s_addc_u32 {sCNT}, s58, 0
    s_lshl_b32 s64, s64, 7
    s_cmp_gt_u32 s56, {4*(CAP-32)}
    s_cbranch_scc1 L_big''')
    stbig=a.state()
    a('s_waitcnt lgkmcnt(0)')
    wv(range(4))
    a(f's_cmp_eq_u64 {M(4)}, 0\ns_cbranch_scc1 L_nv2'); a.cond_begin()
    rb([4,5]); wv([4,5]); wr(4); wr(5)
    a(f's_cmp_eq_u64 {M(6)}, 0\ns_cbranch_scc0 L_v67')
    st67=a.state()
    a.cond_end('L_nv2')
    a('s_cmp_lg_u32 s3, 15\ns_cbranch_scc1 L_nopad'); a.cond_begin()
    a(f'''v_lshl_add_u32 v110, v3, 2, s56
    v_lshlrev_b32 v111, 2, v110
    s_mov_b32 exec_hi, 0
    ds_write_b32 v110, v12 offset:{VB}
    ds_write_b128 v111, v[12:15] offset:{REC}
    s_mov_b32 exec_hi, -1''')
    a.cond_end('L_nopad')
    a(f'''v_add_u32 {V(R.vV)}, s64, {V(R.vV)}
    L_f2:
    v_xor_b32 v4, s39, v4
    v_xnor_b32 v5, s39, v5
    v_or_b32 v4, v4, v5
    v_cmp_ne_u32 vcc, 0, v4
    s_cbranch_vccnz L_f2retry
    L_f2ok:
    s_waitcnt lgkmcnt(0)
    s_barrier ; @B2a''')
    for j in range(4): a(P.vr(0,j,0))
    a(f's_cmp_eq_u32 {sCNT}, 0\ns_cbranch_scc1 L_nt0')
    stnt0=a.state()
    a(f'''s_lshl_b32 s65, {sCNT}, 7
    s_add_u32 s65, s65, s64
    s_min_u32 s65, s65, s56
    s_sub_u32 s65, s65, 4
    v_cmp_ge_u32 vcc, s64, v{vI}
    s_bcnt1_i32_b64 s66, vcc
    v_cmp_ge_u32 vcc, s65, v{vI}
    s_bcnt1_i32_b64 s67, vcc
    s_sub_u32 s67, s67, s66
    s_add_u32 s63, s17, s66
    s_lshl_b32 s57, 1, s3
    s_lshl_b32 s58, s64, 2''')
    G0=OPT.get('g0',4)
    a(f's_cmp_ge_u32 s3, {G0}\ns_cbranch_scc1 L_ng0'); a.cond_begin()
    for r in range(16): a(P.ld(0,r))
    a.cond_end('L_ng0')
    for s in (0,2,1,3): wr(s)
    a(f'''v_subrev_u32 v110, s63, v{cR}
    v_and_b32 v110, 7, v110
    v_xor_b32 v111, 4, v110
    v_add_u32 v110, s66, v110
    v_add_u32 v111, s66, v111
    v_mad_u32_u24 v110, v110, v{cM}, v{c0}
    v_mad_u32_u24 v111, v111, v{cM}, v{c1}
    v_add_lshl_u32 v112, s66, v3, 2
    v_mov_b32 v113, s57
    v_cmp_ge_u32 vcc, s67, v3
    s_mov_b64 exec, vcc
    ds_or_b32 v112, v113 offset:{MASK}
    s_cmp_gt_u32 s67, 7
    s_cselect_b64 exec, 1, 0
    ds_write_b32 v{vFour}, v{vFour} offset:{FLAG-4}
    s_mov_b64 exec, -1
    ds_read_b64_tr_b16 {V(R.XB[0],2)}, v110
    ds_read_b64_tr_b16 {V(R.XB[0]+2,2)}, v111
    ds_read_b64_tr_b16 {V(R.XB[1],2)}, v110 offset:64
    ds_read_b64_tr_b16 {V(R.XB[1]+2,2)}, v111 offset:64
    v_add_u32 {V(R.vR)}, s58, {V(R.vR)}
    v_add_u32 {V(R.vQ)}, s58, {V(R.vQ)}
    v_add_u32 {V(R.vK)}, s58, {V(R.vK)}
    v_subrev_u32 v110, s63, v{cS}
    v_and_b32 v110, 7, v110
    v_add_u32 v110, s63, v110
    v_and_b32 v110, 63, v110
    v_lshlrev_b32 v110, 20, v110
    v_sub_u32 {V(R.vK)}, {V(R.vK)}, v110
    L_nowin:''')
    for j in range(4): a(P.vr(1,j,128))
    a(P.fe0)
    a('s_cmp_lg_u32 s3, 15\ns_cbranch_scc1 L_nhe'); a.cond_begin()
    a(f'''; own h rows for the node update
    v_lshrrev_b32 v110, 3, v3
    v_and_b32 v111, 7, v3
    v_xor_b32 v111, v111, v110
    v_lshlrev_b32 v111, 4, v111
    v_lshl_add_u32 v111, v110, 7, v111
    s_mov_b32 m0, {HE}''')
    for i in range(4): a(f'buffer_load_dwordx4 v111, s[4:7], 0 offen offset:{1024*i} lds')
    a(f'''s_mov_b32 m0, {HE+4096}
    s_movk_i32 s57, 0x1000
    buffer_load_dwordx4 v111, s[4:7], s57 offen lds''')
    a.cond_end('L_nhe')
    a('s_waitcnt lgkmcnt(0)\ns_barrier ; @B2b')
    a(f'ds_read_b32 v10, v{vFour} offset:{FLAG-4}')
    a(P.fe1); a(P.fq(0))
    a('v_cmp_ne_u32 vcc, 0, v10\ns_cbranch_vccnz L_slow')
    a(f's_cmp_eq_u32 {sCNT}, 0\ns_cbranch_scc1 L_tail')
    a(P.xa)
    a(f's_cmp_lt_u32 s3, {G0}\ns_cbranch_scc1 L_ng1'); a.vm=[]; a.cond_begin()
    for r in range(16): a(P.ld(0,r))
    a.cond_end('L_ng1')
    a('s_waitcnt lgkmcnt(0)')
    main_loop(a)
    stamp(a,'loopend')
    WFr=44; HF=60; HR=68; S=12; U=28
    a(f'''L_tail:
    s_waitcnt vmcnt(0) lgkmcnt(0)
    s_and_b32 s57, s3, 3
    s_lshl_b32 s59, s57, 12
    s_add_u32 s59, s59, {WF}
    s_cmp_ge_u32 s3, 12
    s_cbranch_scc1 L_nwf''')
    a.cond_begin()
    for kb in range(4): a(f'buffer_load_dwordx4 {V(WFr+4*kb,4)}, v2, s[24:27], s59 offen offset:{1024*kb}{SC}')
    a.cond_end('L_nwf')
    for e in a.vm: e[2]=True
    a(f's_cmp_eq_u32 {sCNT}, 0\ns_cbranch_scc1 L_epi'); a.cond_begin()
    a(f'''v_and_b32 v76, 31, v3
    v_lshlrev_b32 v76, 2, v76
    v_add_u32 v77, {WX}, v76
    ds_read2_b32 v[78:79], v77 offset0:0 offset1:32
    v_lshrrev_b32 v80, 5, v3
    v_subrev_u32 v80, s63, v80
    s_add_u32 s56, s66, s3
    s_mul_i32 s58, s56, {MSTR}
    s_add_u32 s58, s58, {MA}
    s_lshl_b32 s56, s56, 7
    s_add_u32 s56, s56, {XZ}
    v_add_u32 v81, s58, v76
    v_add_u32 v82, s56, v76
    s_movk_i32 s58, {MSTR}
    s_lshl_b32 s64, 2, s67
    s_sub_u32 s64, s64, 1
    s_and_b32 s56, s63, 7
    s_lshl_b32 s64, s64, s56
    s_lshr_b32 s56, s64, 8
    s_or_b32 s64, s64, s56
    s_waitcnt lgkmcnt(0)''')
    for j in range(4):
        A0=R.ACC[0]+4*j; A1=R.ACC[1]+4*j
        a(f's_and_b32 s56, s64, {3<<(2*j)}\ns_cbranch_scc0 L_nfl{j}')
        a.cond_begin()
        for q in range(1,4): a(f'v_mul_f32 v{A0+q}, v{A0+q}, v78')
        for q in range(1,4): a(f'v_fmac_f32 v{A0+q}, v{A1+q}, v79')
        a(f'v_add_u32 v83, {2*j}, v80\nv_and_b32 v83, 7, v83')
        x,y,z=V(A0+1),V(A0+2),V(A0+3)
        a(f'''v_add_f32_dpp {x}, {x}, {x} row_ror:8 row_mask:0xf bank_mask:0x3
        v_add_f32_dpp {z}, {z}, {z} row_ror:8 row_mask:0xf bank_mask:0xf
        v_mad_u32_u24 v84, v83, s58, v81
        v_add_f32_dpp {x}, {y}, {y} row_ror:8 row_mask:0xf bank_mask:0xc
        v_lshl_add_u32 v85, v83, 7, v82
        s_bitcmp1_b32 s64, {2*j}
        v_add_f32_dpp {x}, {x}, {x} row_shl:4 row_mask:0xf bank_mask:0x5
        s_cselect_b32 s40, -1, 0
        s_bitcmp1_b32 s64, {2*j+1}
        v_add_f32_dpp {x}, {z}, {z} row_shr:4 row_mask:0xf bank_mask:0x2
        s_cselect_b32 s41, -1, 0
        s_mov_b64 exec, s[40:41]
        ds_write2_b32 v84, v{A0}, v{A1} offset0:0 offset1:32
        ds_write_b32 v85, {x}
        s_mov_b64 exec, -1''')
        a.cond_end(f'L_nfl{j}')
    a.cond_end('L_epi')
    def pmask(node, base, stride):
        a(f'''v_ffbl_b32 v83, v80
        v_bcnt_u32_b32 v80, v80, 0
        v_add_u32 v83, v83, {node}
        v_mad_u32_u24 v83, v83, {stride}, {base}
        v_subrev_u32 v81, 1, v80
        v_subrev_u32 v82, 2, v80
        s_brev_b32 s59, 2
        v_and_or_b32 v81, v81, s59, v83
        v_add_u32 v83, {stride}, v83
        v_and_or_b32 v82, v82, s59, v83
        v_cmp_lt_u32 s[40:41], 2, v80''')
    def psum(stride, reads, n, tag, mid=''):
        for k,o in enumerate(reads): a(f'ds_read_b128 {V(S+4*k,4)}, v81 offset:{o}')
        for k,o in enumerate(reads): a(f'ds_read_b128 {V(U+4*k,4)}, v82 offset:{o}')
        a(mid)
        for k in range(n//2): a(f'v_pk_add_f32 {V(S+2*k,2)}, {V(S+2*k,2)}, {V(U+2*k,2)}')
        a(f's_cmp_lg_u64 s[40:41], 0\ns_cbranch_scc1 L_ps{tag}\nL_pd{tag}:')
        st=a.state()
        def more():
            a.set_state(st)
            a(f'''L_ps{tag}:
            v_subrev_u32 v80, 1, v80
            v_add_u32 v83, {stride}, v83
            v_subrev_u32 v82, 2, v80
            v_and_or_b32 v82, v82, s59, v83
            v_cmp_lt_i32 vcc, 2, v80''')
            for k,o in enumerate(reads): a(f'ds_read_b128 {V(U+4*k,4)}, v82 offset:{o}')
            for k in range(n//2): a(f'v_pk_add_f32 {V(S+2*k,2)}, {V(S+2*k,2)}, {V(U+2*k,2)}')
            a(f's_cbranch_vccnz L_ps{tag}\ns_nop 1\ns_branch L_pd{tag}')
        return more
    a('s_cmp_ge_u32 s3, 12\ns_cbranch_scc1 L_posw')
    st=a.state()
    a(f'''s_lshr_b32 s58, s3, 2
    s_lshl_b32 s58, s58, 4
    v_and_b32 v75, 15, v3
    v_add_u32 v76, s58, v75
    v_lshlrev_b32 v80, 2, v76
    ds_read_b32 v80, v80 offset:{MASK}
    v_lshrrev_b32 v77, 4, v3
    v_and_b32 v78, 7, v3
    v_xor_b32 v78, v78, v77
    v_lshlrev_b32 v78, 4, v78
    v_lshl_add_u32 v78, v76, 7, v78
    v_xor_b32 v79, 64, v78
    v_lshl_add_u32 v86, v77, 2, s58
    s_lshl_b32 s57, s57, 5
    v_lshl_add_u32 v87, v75, 1, s57
    v_lshl_add_u32 v92, v86, 7, v87
    v_and_b32 v88, 16, v3
    v_lshlrev_b32 v88, 2, v88
    v_xor_b32 v88, v88, v92
    v_xor_b32 v89, 16, v88
    v_xor_b32 v90, 32, v88
    v_xor_b32 v91, 48, v88
    s_lshl_b32 s59, s17, 7
    s_add_u32 s32, s12, s59
    s_addc_u32 s33, s13, 0
    s_and_b32 s33, s33, 0xffff
    s_lshl_b32 s34, s18, 7
    s_mov_b32 s35, 0x20000
    s_mov_b32 s58, {MA}
    v_lshl_add_u32 v77, v77, 5, s58
    s_movk_i32 s58, {MSTR}''')
    pmask('v76','v77','s58')
    a(f'''s_mov_b32 s60, {hex(fbits(LN2))}
    s_waitcnt lgkmcnt(0)
    s_barrier ; @B4
    ds_read_b128 {V(HF,4)}, v78 offset:{HE}
    ds_read_b128 {V(HF+4,4)}, v79 offset:{HE}''')
    mid='\n'.join(f'ds_read_u16_d16_hi v{HR+i}, v{88+i} offset:{HE+128*i}' for i in range(4))
    mid+=f'\n{MF16} v[96:99], {V(HF,4)}, {V(WFr,4)}, 0\n{MF16} v[96:99], {V(HF+4,4)}, {V(WFr+4,4)}, v[96:99]'
    more_h=psum('s58',[0,16,128,144],16,'h',mid)
    for k in range(8): a(f'v_cvt_pk_bf16_f32 v{S+k}, v{S+2*k}, v{S+2*k+1}')
    a(f'''{MF16} v[100:103], {V(S,4)}, {V(WFr+8,4)}, 0
    {MF16} v[100:103], {V(S+4,4)}, {V(WFr+12,4)}, v[100:103]''')
    for i in range(4): a(f'v_fma_f32 v{96+i}, v{96+i}, s62, v{100+i}')
    for i in range(4): a(f'v_exp_f32 v{100+i}, -v{96+i}')
    for i in range(4): a(f'v_mul_f32 v{96+i}, s60, v{96+i}')
    for i in range(2): a(f'v_pk_add_f32 {V(100+2*i,2)}, {V(100+2*i,2)}, 1.0 op_sel_hi:[1,0]')
    for i in range(4): a(f'v_rcp_f32 v{100+i}, v{100+i}')
    for i in range(2): a(f'v_pk_fma_f32 {V(HR+2*i,2)}, {V(96+2*i,2)}, {V(100+2*i,2)}, {V(HR+2*i,2)}')
    a(f'''v_cvt_pk_bf16_f32 v{HR}, v{HR}, v{HR+1}
    v_cvt_pk_bf16_f32 v{HR+1}, v{HR+2}, v{HR+3}
    buffer_store_short v{HR}, v92, s[32:35], 0 offen
    buffer_store_short_d16_hi v{HR}, v92, s[32:35], 0 offen offset:128
    buffer_store_short v{HR+1}, v92, s[32:35], 0 offen offset:256
    buffer_store_short_d16_hi v{HR+1}, v92, s[32:35], 0 offen offset:384''')
    finish(a)
    a.set_state(st); a.vm=[]
    a(f'''L_posw:
    s_sub_u32 s58, s3, 12
    s_lshl_b32 s58, s58, 4
    v_lshrrev_b32 v76, 2, v3
    v_add_u32 v76, s58, v76
    v_lshlrev_b32 v80, 2, v76
    ds_read_b32 v80, v80 offset:{MASK}
    v_and_b32 v78, 3, v3
    v_add_u32 v79, s17, v76
    v_and_b32 v85, 63, v79
    v_lshlrev_b32 v85, 3, v85
    v_lshl_add_u32 v85, v78, 1, v85
    ds_read_u16_d16_hi v86, v85 offset:{PD}
    v_mul_u32_u24 v79, 6, v79
    v_lshl_add_u32 v79, v78, 1, v79
    v_cmp_gt_u32 vcc, s18, v76
    v_cmp_gt_u32 s[42:43], 3, v78
    s_and_b64 s[42:43], vcc, s[42:43]
    v_bfrev_b32 v77, v78
    v_lshrrev_b32 v77, 26, v77
    v_add_u32 v77, {XZ}, v77
    s_add_u32 s32, s12, 1280000
    s_addc_u32 s33, s13, 0
    s_and_b32 s33, s33, 0xffff
    s_mov_b32 s34, 60000
    s_mov_b32 s35, 0x20000
    s_movk_i32 s58, 128''')
    pmask('v76','v77','s58')
    a('''s_waitcnt lgkmcnt(0)
    s_barrier ; @B4
    s_cmp_eq_u32 s3, 15
    s_cbranch_scc1 L_w15''')
    more_p=psum('s58',[0,64],8,'p')
    a(f'''v_pk_add_f32 {V(S,2)}, {V(S,2)}, {V(S+2,2)}
    v_pk_add_f32 {V(S+4,2)}, {V(S+4,2)}, {V(S+6,2)}
    v_pk_add_f32 {V(S,2)}, {V(S,2)}, {V(S+4,2)}
    v_add_f32 v{S}, v{S}, v{S+1}
    v_add_f32 v{S}, v{S}, v86
    v_cvt_pk_bf16_f32 v{S}, v{S}, v{S}
    s_mov_b64 exec, s[42:43]
    buffer_store_short v{S}, v79, s[32:35], 0 offen''')
    finish(a)
    a(f'''L_w15:
    s_cmp_lg_u32 s2, 0
    s_cbranch_scc1 L_w15e
    v_mov_b32 v110, {EP}
    v_mov_b32 v111, s39
    s_mov_b64 exec, 1
    buffer_store_dword v111, v110, s[24:27], 0 offen
    L_w15e:''')
    finish(a)
    more_h(); more_p()
    a.set_state(stp67); a('L_p67:'); pre([6,7]); geo([6,7]); a('s_waitcnt lgkmcnt(0)\ns_nop 2\ns_branch L_np2')
    a.set_state(st67); a('L_v67:'); rb([6,7]); wv([6,7]); wr(6); wr(7); a('s_branch L_nv2')
    a.set_state(stnt0); a('L_nt0:')
    for s in (0,2,1,3): wr(s)
    a('s_branch L_nowin')
    a(f'''L_retry:
    s_sleep 4
    s_sub_u32 s59, s59, 1
    s_cmp_gt_i32 s59, 0
    s_cbranch_scc0 L_giveup''')
    recloads('r')
    a('s_branch L_utw\nL_giveup:')
    for s in range(8): a(f's_mov_b64 {M(s)}, 0')
    a(f'''s_branch L_ok
    L_f2retry:
    s_sleep 4
    buffer_load_dwordx2 v[4:5], v{vF2}, s[24:27], s67 offen{SC}
    s_waitcnt vmcnt(0)
    s_sub_u32 s59, s59, 1
    s_cmp_gt_i32 s59, 0
    s_cbranch_scc1 L_f2
    s_branch L_f2ok''')
    a.set_state(stbig)
    a(f'''L_big:
    s_waitcnt lgkmcnt(0)
    ds_write_b32 v{vFour}, v{vFour} offset:{FLAG-4}
    s_mov_b32 {sCNT}, 0''')
    for s in range(8): a(f's_mov_b64 {M(s)}, 0')
    a(f'''s_waitcnt vmcnt(0)
    s_branch L_nopad
    L_slow:
    s_waitcnt vmcnt(0) lgkmcnt(0)
    s_load_dwordx2 s[28:29], s[0:1], 40
    s_mov_b32 {sCNT}, 0
    s_mov_b32 s40, s3
    v_lshlrev_b32 v12, 1, v3
    v_cmp_gt_u32 s[42:43], 32, v3
    v_mov_b32 v13, 1.0
    v_mov_b32 v14, {hex(fbits(LOG2E*2.0**KS))}
    v_cndmask_b32 v13, v13, v14, s[42:43]
    v_and_b32 v14, 31, v3
    v_lshlrev_b32 v14, 2, v14
    v_lshlrev_b32 v15, 2, v3
    s_waitcnt lgkmcnt(0)
    s_add_u32 s28, s28, {128*128}
    s_addc_u32 s29, s29, 0
    global_load_ushort v16, v12, s[28:29]
    global_load_ushort v17, v12, s[28:29] offset:128
    ds_read_b32 v18, v15 offset:{WX}
    v_lshlrev_b32 v16, 16, v16
    v_lshlrev_b32 v17, 16, v17
    v_mul_f32 v16, s62, v16
    v_mul_f32 v17, s62, v17
    s_lshl_b32 s56, s16, 3
    s_add_u32 s56, s56, {GR}
    s_waitcnt vmcnt(0) lgkmcnt(0)
    L_sn:
    s_cmp_ge_u32 s40, s18
    s_cbranch_scc1 L_sdone
    s_add_u32 s41, s17, s40
    s_and_b32 s44, s41, 63
    s_lshl_b32 s44, s44, 4
    s_mul_i32 s45, s41, 6
    v_mov_b32 v19, s45
    buffer_load_ushort v23, v19, s[8:11], 0 offen
    buffer_load_ushort v24, v19, s[8:11], 0 offen offset:2
    buffer_load_ushort v25, v19, s[8:11], 0 offen offset:4
    s_lshl_b32 s45, s40, 7
    v_add_u32 v20, s45, v12
    ds_read_u16 v22, v20 offset:{AL}
    v_lshlrev_b32 v23, 16, v23
    v_lshlrev_b32 v24, 16, v24
    v_lshlrev_b32 v25, 16, v25
    v_lshlrev_b32 v22, 16, v22
    v_mov_b32 v26, 0
    v_mov_b32 v27, 0
    v_mov_b32 v28, 0
    v_mov_b32 v29, 0
    s_mov_b32 s46, 0
    L_sc:
    s_lshl_b32 s47, s46, 11
    v_mov_b32 v19, s47
    buffer_load_dwordx2 v[30:31], v19, s[24:27], s56 offen{SC}
    v_readfirstlane_b32 s48, v30
    v_readfirstlane_b32 s47, v31
    s_cmp_eq_u32 s47, s39
    s_cselect_b32 s48, s48, 0
    s_mul_i32 s49, s46, {CHS}
    s_add_u32 s49, s49, {RECS}
    s_and_b32 s47, s48, 0xffff
    s_add_u32 s49, s49, s47
    s_lshr_b32 s48, s48, 16
    s_mov_b32 s50, 0
    L_sb:
    s_cmp_ge_u32 s50, s48
    s_cbranch_scc1 L_sbe
    v_lshl_add_u32 v19, v3, 3, s50
    buffer_load_dwordx2 v[30:31], v19, s[24:27], s49 offen{SC}
    v_cmp_gt_u32 s[52:53], s48, v19
    v_xor_b32 v30, s70, v30
    v_xor_b32 v31, s71, v31
    v_and_b32 v32, s34, v30
    v_and_or_b32 v32, v31, s35, v32
    v_cmp_eq_u32 vcc, 0, v32
    s_andn2_b64 s[64:65], s[52:53], vcc
    s_cbranch_scc0 L_sv
    s_sub_u32 s59, s59, 1
    s_cmp_gt_i32 s59, 0
    s_cbranch_scc1 L_sb
    s_and_b64 s[52:53], s[52:53], vcc
    L_sv:
    v_and_b32 v32, 0xffff, v30
    v_cmp_eq_u32 vcc, s44, v32
    s_and_b64 s[52:53], s[52:53], vcc
    L_se:
    s_cmp_eq_u64 s[52:53], 0
    s_cbranch_scc1 L_see
    s_ff1_i32_b64 s51, s[52:53]
    s_bitset0_b64 s[52:53], s51
    v_readlane_b32 s54, v30, s51
    v_readlane_b32 s55, v31, s51
    s_and_b32 s54, s54, 0xffff0000
    s_lshr_b32 s57, s55, 1
    s_add_u32 s57, s57, s55
    s_lshl_b32 s55, s55, 5
    v_mov_b32 v33, s57
    v_add_u32 v36, s55, v14
    buffer_load_ushort v37, v33, s[8:11], 0 offen
    buffer_load_ushort v38, v33, s[8:11], 0 offen offset:2
    buffer_load_ushort v39, v33, s[8:11], 0 offen offset:4
    buffer_load_dword v36, v36, s[24:27], 0 offen{SC}
    v_lshlrev_b32 v37, 16, v37
    v_lshlrev_b32 v38, 16, v38
    v_lshlrev_b32 v39, 16, v39
    v_sub_f32 v37, v23, v37
    v_sub_f32 v38, v24, v38
    v_sub_f32 v39, v25, v39
    v_cvt_pk_bf16_f32 v40, 1.0, v37
    v_mul_f32 v37, v37, v37
    v_cvt_pk_bf16_f32 v41, v38, v39
    v_dot2_f32_bf16 v37, v41, v41, v37
    v_cvt_pk_bf16_f32 v37, 0, v37
    v_lshlrev_b32 v42, 16, v36
    v_cndmask_b32 v36, v36, v42, s[42:43]
    v_add_f32 v36, v36, v22
    v_mul_f32 v36, v36, v13
    v_fmac_f32 v36, v37, v16
    v_fmac_f32 v36, s54, v17
    v_exp_f32 v42, -v36
    v_add_f32 v42, 1.0, v42
    v_rcp_f32 v42, v42
    v_mul_f32 v36, v36, v42
    v_and_b32 v40, 0xffff0000, v40
    v_lshlrev_b32 v42, 16, v41
    v_and_b32 v41, 0xffff0000, v41
    v_add_f32 v26, v26, v36
    v_fmac_f32 v27, v36, v40
    v_fmac_f32 v28, v36, v42
    v_fmac_f32 v29, v36, v41
    s_branch L_se
    L_see:
    s_add_u32 s50, s50, 512
    s_branch L_sb
    L_sbe:
    s_add_u32 s46, s46, 1
    s_cmp_lt_u32 s46, 256
    s_cbranch_scc1 L_sc
    s_nop 4
    v_mul_f32 v27, v27, v18
    v_mul_f32 v28, v28, v18
    v_mul_f32 v29, v29, v18''')
    xyz_reduce(a,'v27','v28','v29')
    a(f'''v_mov_b32 v28, v27
    v_permlane32_swap_b32 v27, v28
    v_add_f32 v27, v27, v28
    s_mul_i32 s45, s40, {MSTR}
    s_add_u32 s45, s45, {MA}
    v_add_u32 v19, s45, v15
    ds_write_b32 v19, v26
    s_lshl_b32 s45, s40, 7
    v_add_u32 v19, s45, v14
    ds_write_b32 v19, v27 offset:{XZ}
    s_lshl_b32 s45, s40, 2
    v_mov_b32 v19, s45
    v_mov_b32 v20, 1
    ds_write_b32 v19, v20 offset:{MASK}
    s_add_u32 s40, s40, 16
    s_waitcnt lgkmcnt(0)
    s_branch L_sn
    L_sdone:
    s_barrier
    s_branch L_tail
    L_end:
    s_endpgm''')
    stamp_tail(a)
    return a

HEAD=open('standalone__cheap_equivariant_egnn__graph.s.ref').read().split('; Override launch')[0]
def kd(name, vg, sg=96):
    return f'''.amdhsa_kernel {name}
  .amdhsa_next_free_vgpr {vg}
  .amdhsa_next_free_sgpr {sg}
  .amdhsa_accum_offset {vg}
  .amdhsa_group_segment_fixed_size 0
  .amdhsa_kernarg_size 88
  .amdhsa_user_sgpr_count 2
  .amdhsa_user_sgpr_kernarg_segment_ptr 1
  .amdhsa_system_sgpr_workgroup_id_x 1
  .amdhsa_float_denorm_mode_32 3
.end_amdhsa_kernel
'''
def diag():
    ia,ib,mult=names.index(OPT['ia']),names.index(OPT['ib']),OPT.get('mult',20)
    a=Asm()
    a(f'''s_cmp_ge_u32 s2, 1
    s_cbranch_scc1 L3_end
    s_load_dwordx2 s[4:5], s[0:1], 80
    s_memrealtime s[8:9]
    v_lshlrev_b32 v1, 11, v0
    v_add_u32 v2, {STB+4*ia+128*OPT.get('wa',0)}, v1
    v_add_u32 v3, {STB+4*ib+128*OPT.get('wb',0)}, v1
    s_waitcnt lgkmcnt(0)''')
    for i in range(4):
        a(f'global_load_dword v{10+i}, v2, s[4:5]\nglobal_load_dword v{20+i}, v3, s[4:5]\nv_add_u32 v2, 0x20000, v2\nv_add_u32 v3, 0x20000, v3')
    for i in range(4): a(f'v_sub_u32 v{10+i}, s8, v{10+i}\nv_sub_u32 v{20+i}, s8, v{20+i}')
    opa='max'; opb='min'
    for i in range(1,4): a(f'v_{opa}_u32 v10, v10, v{10+i}\nv_{opb}_u32 v20, v20, v{20+i}')
    a('v_readlane_b32 s10, v10, 0\nv_readlane_b32 s11, v20, 0')
    for l in range(1,64):
        a(f'v_readlane_b32 s12, v10, {l}\nv_readlane_b32 s13, v20, {l}\ns_{opa}_u32 s10, s10, s12\ns_{opb}_u32 s11, s11, s13')
    a(f'''s_sub_u32 s10, s10, s11
    s_max_i32 s10, s10, 0
    s_min_u32 s10, s10, 10000
    s_mul_i32 s10, s10, {mult}
    L3_spin:
    s_memrealtime s[12:13]
    s_waitcnt lgkmcnt(0)
    s_sub_u32 s12, s12, s8
    s_cmp_lt_u32 s12, s10
    s_cbranch_scc1 L3_spin
    L3_end:
    s_endpgm''')
    return a
def build():
    N='standalone__cheap_equivariant_egnn__graph_kernel'
    a=kern()
    d='ia' in OPT
    s=HEAD+(f'; @launch kernel={N} grid=(256,1,1) block=(1024,1,1) lds=163840\n; @launch kernel=diag_kernel grid=(1,1,1) block=(64,1,1) lds=0\n' if d else '; @launch grid=(256,1,1) block=(1024,1,1) lds=163840\n')
    s+='.amdgcn_target "amdgcn-amd-amdhsa--gfx950"\n.text\n'
    s+=f'.globl {N}\n.p2align 8\n.type {N},@function\n{N}:\n'+a.text()
    if d: s+='.globl diag_kernel\n.p2align 8\n.type diag_kernel,@function\ndiag_kernel:\n'+diag().text()
    s+='.section .rodata,"a"\n.p2align 6\n'+kd(N,128,102 if OPT['stamp'] else 96)
    if d: s+='.p2align 6\n'+kd('diag_kernel',32)
    return s
if __name__=='__main__':
    out=sys.argv[1]
    for x in sys.argv[2:]:
        k,v=x.split('='); OPT[k]=int(v) if v.lstrip('-').isdigit() else v
    open(out,'w').write(build())
    if names: open(out+'.names','w').write(','.join(names))
```
